```python
import torch

def _softmax(x, axis=-1):
    return torch.softmax(x, dim=axis)
def _gelu(x):
    return torch.nn.functional.gelu(x, approximate="tanh")
def _silu(x):
    return torch.nn.functional.silu(x)
def _sigmoid(x):
    return torch.sigmoid(x)
def _layernorm(x, axis=-1, eps=1e-5):
    m = x.mean(dim=axis, keepdim=True)
    v = x.var(dim=axis, keepdim=True, unbiased=False)
    return (x - m) / torch.sqrt(v + eps)
def _scatter_add(tgt, idx, src, axis=0):
    return tgt.clone().index_add_(axis, idx, src)
def _segment_sum(src, seg, n):
    out = torch.zeros((n,) + src.shape[1:], dtype=src.dtype)
    return out.index_add_(0, seg, src)
def _pad(x, pw):
    flat = tuple(v for pair in reversed(pw) for v in pair)
    return torch.nn.functional.pad(x, flat)

kernel_name = 'concat_heads__gqa_block_cached__gqa_block_cached__decode'

def setup_inputs():

    _w = (lambda a: (lambda t: t.to(torch.bfloat16) if t.is_floating_point() else t)(torch.as_tensor(a)))
    def _A_setup():
        B, Sq, D = 4, 1, 640
        Hq, Hkv, Sk, Dh = 32, 32, 4096, 128
        assert Hq % Hkv == 0, (Hq, Hkv)
        return {
            "x": _w((lambda *s: torch.randn(*s, dtype=torch.bfloat16) * 0.8)(B, Sq, D)),
            "k_cache": _w((lambda *s: torch.randn(*s, dtype=torch.bfloat16) * 0.8)(B, Hkv, Sk, Dh)),
            "v_cache": _w((lambda *s: torch.randn(*s, dtype=torch.bfloat16) * 0.05)(B, Hkv, Sk, Dh)),
            "wq": _w((lambda *s: torch.randn(*s, dtype=torch.bfloat16) * 0.8)(D, Hq * Dh) * (D ** -0.5)),
            "wo": _w((lambda *s: torch.randn(*s, dtype=torch.bfloat16) * 0.05)(Hq * Dh, D) * ((Hq * Dh) ** -0.5)),
        }
    _A_in = _A_setup()

    def _B_setup():
        B, Sq, D = 4, 1, 640
        Hq, Hkv, Sk, Dh = 32, 32, 4096, 128
        assert Hq % Hkv == 0, (Hq, Hkv)
        return {
            "x": _w((lambda *s: torch.randn(*s, dtype=torch.bfloat16) * 0.8)(B, Sq, D)),
            "k_cache": _w((lambda *s: torch.randn(*s, dtype=torch.bfloat16) * 0.8)(B, Hkv, Sk, Dh)),
            "v_cache": _w((lambda *s: torch.randn(*s, dtype=torch.bfloat16) * 0.05)(B, Hkv, Sk, Dh)),
            "wq": _w((lambda *s: torch.randn(*s, dtype=torch.bfloat16) * 0.8)(D, Hq * Dh) * (D ** -0.5)),
            "wo": _w((lambda *s: torch.randn(*s, dtype=torch.bfloat16) * 0.05)(Hq * Dh, D) * ((Hq * Dh) ** -0.5)),
        }
    _B_in = _B_setup()

    return {
        "A_x": _A_in["x"],
        "A_k_cache": _A_in["k_cache"],
        "A_v_cache": _A_in["v_cache"],
        "A_wq": _A_in["wq"],
        "A_wo": _A_in["wo"],
        "B_x": _B_in["x"],
        "B_k_cache": _B_in["k_cache"],
        "B_v_cache": _B_in["v_cache"],
        "B_wq": _B_in["wq"],
        "B_wo": _B_in["wo"],
    }

def reference(A_x, A_k_cache, A_v_cache, A_wq, A_wo, B_x, B_k_cache, B_v_cache, B_wq, B_wo):
    def _A_ref(x, k_cache, v_cache, wq, wo):
        B, Sq, D = x.shape
        Hq, Dh = 32, 128
        Hkv = k_cache.shape[1]
        rep = Hq // Hkv
        q = (lambda x, *d: x.permute(*d))((x @ wq).reshape(B, Sq, Hq, Dh), 0, 2, 1, 3)
        k = (lambda x, n, axis: torch.repeat_interleave(x, n, dim=axis))(k_cache, rep, axis=1)
        v = (lambda x, n, axis: torch.repeat_interleave(x, n, dim=axis))(v_cache, rep, axis=1)
        scores = torch.einsum("bhqd,bhkd->bhqk", q, k) * (Dh ** -0.5)
        p = _softmax(scores, axis=-1)
        o = torch.einsum("bhqk,bhkd->bhqd", p, v)
        return (lambda x, *d: x.permute(*d))(o, 0, 2, 1, 3).reshape(B, Sq, Hq * Dh) @ wo

    def _B_ref(x, k_cache, v_cache, wq, wo):
        B, Sq, D = x.shape
        Hq, Dh = 32, 128
        Hkv = k_cache.shape[1]
        rep = Hq // Hkv
        q = (lambda x, *d: x.permute(*d))((x @ wq).reshape(B, Sq, Hq, Dh), 0, 2, 1, 3)
        k = (lambda x, n, axis: torch.repeat_interleave(x, n, dim=axis))(k_cache, rep, axis=1)
        v = (lambda x, n, axis: torch.repeat_interleave(x, n, dim=axis))(v_cache, rep, axis=1)
        scores = torch.einsum("bhqd,bhkd->bhqk", q, k) * (Dh ** -0.5)
        p = _softmax(scores, axis=-1)
        o = torch.einsum("bhqk,bhkd->bhqd", p, v)
        return (lambda x, *d: x.permute(*d))(o, 0, 2, 1, 3).reshape(B, Sq, Hq * Dh) @ wo

    a = _A_ref(A_x, A_k_cache, A_v_cache, A_wq, A_wo)
    b = _B_ref(B_x, B_k_cache, B_v_cache, B_wq, B_wo)
    return torch.concatenate([a, b], axis=-1)
```

```python
import sys, math, struct
KNAME = "concat_heads__gqa_block_cached__gqa_block_cached__decode_kernel"

HEADER = """; Kernarg layout for this problem (104 bytes, ptrs only, base s[0:1]):
;
"""

def f2u(x):
    return struct.unpack("<I", struct.pack("<f", x))[0]

def gen(polKV="nt", polW="nt", layout="chunk", W=16, Wodd=None, stamps=0, hmap=1):
    o = []
    def e(s): o.append(s)
    NW = 4
    D = 16
    NIT = 16
    L_Q = 0
    L_O = 2048
    L_ML = 4096
    L_OUT = 4224
    L_S = 4224 + 10240
    LDS = L_S + 16384 + 256
    sW, sH, sB, sBr, sG = 30, 31, 32, 33, 34
    sK, sWq, sWo, sX, sIn, sDbg, sOut = 36, 40, 44, 48, 52, 56, 60
    sV = 64
    sO = 66
    sIt, sOff, sT, sT2, sT3 = 70, 71, 72, 73, 74
    sM = 76
    sCons = 84
    sSpin = 85
    sSt = 86
    def srd(b): return f"s[{b}:{b+3}]"
    vLane, vOffK, vOffV, vOffC, vOffW, vT0, vT1, vT2, vT3 = 1, 2, 3, 4, 5, 6, 7, 8, 9
    vMask = 10
    vSelE = 14
    vSelO = 18
    vS, vP, vMax, vL, vC, vMc, vSn, vFlag, vLdsS, vLdsA = 22, 23, 24, 25, 26, 27, 28, 29, 30, 31
    vA = 32
    vAcc = 40
    vQ = 44
    vD = 60
    vX = 76
    vOAcc = 108
    vRing = 128
    NV = vRing + 4 * D
    ACC_OFF = NV
    NA = 160
    def vr(b, n=4): return f"v[{b}:{b+n-1}]"
    def ar(b, n=4): return f"a[{b}:{b+n-1}]"
    def stamp(i):
        if stamps:
            e(f"s_memrealtime s[{sSt+2*i}:{sSt+2*i+1}]")

    e(HEADER.rstrip("\n"))
    e(f"; @launch grid=(256,1,1) block=(256,1,1) lds={LDS}")
    e('.amdgcn_target "amdgcn-amd-amdhsa--gfx950"')
    e(".text")
    e(f".globl {KNAME}")
    e(".p2align 8")
    e(f".type {KNAME},@function")
    e(f"{KNAME}:")
    stamp(0)
    e("s_cmp_ge_u32 s2, 256")
    e("s_cbranch_scc1 L_end")
    e("s_load_dwordx16 s[4:19], s[0:1], 0")
    e("s_load_dwordx8 s[20:27], s[0:1], 64")
    e("s_load_dwordx2 s[28:29], s[0:1], 96")
    e(f"v_lshrrev_b32 v{vT0}, 6, v0")
    e(f"v_and_b32 v{vLane}, 63, v0")
    e(f"v_readfirstlane_b32 s{sW}, v{vT0}")
    if hmap == 0:
        e(f"s_and_b32 s{sH}, s2, 7")
        e(f"s_lshr_b32 s{sT}, s2, 5")
        e(f"s_lshr_b32 s{sBr}, s{sT}, 2")
        e(f"s_and_b32 s{sT}, s{sT}, 3")
        e(f"s_lshl_b32 s{sT}, s{sT}, 3")
        e(f"s_add_u32 s{sH}, s{sH}, s{sT}")
    else:
        e(f"s_and_b32 s{sH}, s2, 3")
        e(f"s_lshl_b32 s{sH}, s{sH}, 3")
        e(f"s_lshr_b32 s{sT}, s2, 5")
        e(f"s_add_u32 s{sH}, s{sH}, s{sT}")
        e(f"s_bfe_u32 s{sBr}, s2, 0x10002")
    e(f"s_lshr_b32 s{sB}, s2, 3")
    e(f"s_and_b32 s{sB}, s{sB}, 3")
    e(f"s_lshl_b32 s{sG}, s{sBr}, 2")
    e(f"s_add_u32 s{sG}, s{sG}, s{sB}")
    e(f"v_lshrrev_b32 v{vT0}, 4, v{vLane}")
    e(f"v_and_b32 v{vT1}, 15, v{vLane}")
    e(f"v_mul_u32_u24 v{vT2}, 80, v{vT0}")
    e(f"v_lshlrev_b32 v{vT3}, 4, v{vT1}")
    e(f"v_mul_u32_u24 v{vOffW}, {40*8192}, v{vT0}")
    e(f"v_add_u32 v{vOffW}, v{vOffW}, v{vT3}")
    e(f"v_lshlrev_b32 v{vOffV}, 4, v{vLane}")
    e(f"v_lshrrev_b32 v{vOffK}, 2, v{vT1}")
    e(f"v_lshlrev_b32 v{vOffK}, 8, v{vOffK}")
    e(f"v_lshl_add_u32 v{vOffK}, v{vT0}, 6, v{vOffK}")
    e(f"v_and_b32 v{vS}, 3, v{vLane}")
    e(f"v_lshl_add_u32 v{vOffK}, v{vS}, 4, v{vOffK}")
    e(f"v_mov_b32 v{vOffC}, v{vOffK}")
    e(f"s_lshl_b32 s{sT}, s{sB}, 5")
    e(f"s_add_u32 s{sT}, s{sT}, s{sH}")
    e(f"s_lshl_b32 s{sT}, s{sT}, 20")
    e(f"s_mul_i32 s{sT2}, s{sB}, 1280")
    e(f"s_lshl_b32 s{sT3}, s{sH}, 8")
    e(f"s_cmp_eq_u32 s{sBr}, 0")
    e("s_waitcnt lgkmcnt(0)")
    e("s_cselect_b64 s[4:5], s[4:5], s[14:15]")
    e("s_cselect_b64 s[6:7], s[6:7], s[16:17]")
    e("s_cselect_b64 s[8:9], s[8:9], s[18:19]")
    e("s_cselect_b64 s[10:11], s[10:11], s[20:21]")
    e("s_cselect_b64 s[12:13], s[12:13], s[22:23]")
    e(f"s_add_u32 s{sX}, s4, s{sT2}")
    e(f"s_addc_u32 s{sX+1}, s5, 0")
    e(f"s_mov_b32 s{sX+2}, 1280")
    e(f"s_mov_b32 s{sX+3}, 0x20000")
    e(f"s_add_u32 s{sWq}, s10, s{sT3}")
    e(f"s_addc_u32 s{sWq+1}, s11, 0")
    e(f"s_sub_u32 s{sWq+2}, {640*8192}, s{sT3}")
    e(f"s_mov_b32 s{sWq+3}, 0x20000")
    e(f"s_mul_i32 s{sT2}, s{sW}, 320")
    for i in range(5):
        e(f"buffer_load_dwordx4 {vr(vX+4*i)}, v{vT2}, {srd(sX)}, s{sT2} offen offset:{16*i}")
    e(f"s_mul_i32 s{sT2}, s{sW}, {160*8192}")
    for r in range(40):
        e(f"buffer_load_dwordx4 {ar(4*r)}, v{vOffW}, {srd(sWq)}, s{sT2} offen {polW}")
        if r < 39: e(f"s_add_u32 s{sT2}, s{sT2}, 8192")
    e(f"s_add_u32 s{sK}, s6, s{sT}")
    e(f"s_addc_u32 s{sK+1}, s7, 0")
    e(f"s_mov_b32 s{sK+2}, 0x100000")
    e(f"s_mov_b32 s{sK+3}, 0x20000")
    e(f"s_add_u32 s{sV}, s8, s{sT}")
    e(f"s_addc_u32 s{sV+1}, s9, 0")
    if layout == "chunk":
        wbase, step = 262144, 16384
    else:
        wbase, step = 16384, 65536
    e(f"s_mul_i32 s{sOff}, s{sW}, {wbase}")
    def soffs():
        e(f"s_mov_b32 s{sO}, s{sOff}")
        for i in range(1, 4):
            e(f"s_add_u32 s{sO+i}, s{sOff}, {4096*i}")
    def ringload(s):
        e(f"buffer_load_dwordx4 {vr(vRing+4*s)}, v{vOffC}, {srd(sK)}, s{sO+s//4} offen offset:{(s%4)*1024} {polKV}")
    soffs()
    for s in range(D): ringload(s)
    stamp(1)
    e(f"s_mul_i32 s{sT}, s{sH}, 163840")
    e(f"s_add_u32 s{sWo}, s12, s{sT}")
    e(f"s_addc_u32 s{sWo+1}, s13, 0")
    e(f"s_mov_b32 s{sWo+2}, 163840")
    e(f"s_mov_b32 s{sWo+3}, 0x20000")
    e(f"s_mul_i32 s{sT}, s{sG}, {20*4096}")
    e(f"s_add_u32 s{sIn}, s28, s{sT}")
    e(f"s_addc_u32 s{sIn+1}, s29, 0")
    e(f"s_mov_b32 s{sIn+2}, {20*4096}")
    e(f"s_mov_b32 s{sIn+3}, 0x20000")
    e(f"s_mov_b32 s{sDbg}, s26")
    e(f"s_mov_b32 s{sDbg+1}, s27")
    e(f"s_mov_b32 s{sDbg+2}, 256")
    e(f"s_mov_b32 s{sDbg+3}, 0x20000")
    e(f"s_mov_b32 s{sOut}, s24")
    e(f"s_mov_b32 s{sOut+1}, s25")
    e(f"s_mov_b32 s{sOut+2}, 10240")
    e(f"s_mov_b32 s{sOut+3}, 0x20000")
    e(f"s_cmp_lt_u32 s{sH}, 20")
    e(f"s_cselect_b32 s{sCons}, 1, 0")
    e(f"s_cmp_eq_u32 s{sW}, 3")
    e(f"s_cselect_b32 s{sCons}, s{sCons}, 0")
    e(f"v_mul_u32_u24 v{vOffW}, {8*1280}, v{vT0}")
    e(f"v_add_u32 v{vOffW}, v{vOffW}, v{vT3}")
    e(f"v_and_b32 v{vS}, 1, v{vLane}")
    e(f"v_cmp_eq_u32 vcc, 1, v{vS}")
    e(f"v_mov_b32 v{vT1}, 0x0000ffff")
    e(f"v_mov_b32 v{vT2}, 0xffff0000")
    e(f"v_cndmask_b32 v{vP}, v{vT1}, v{vT2}, vcc")
    e(f"v_mov_b32 v{vT1}, 0x0c0c0100")
    e(f"v_mov_b32 v{vT2}, 0x01000c0c")
    e(f"v_cndmask_b32 v{vMax}, v{vT1}, v{vT2}, vcc")
    e(f"v_mov_b32 v{vT1}, 0x0c0c0302")
    e(f"v_mov_b32 v{vT2}, 0x03020c0c")
    e(f"v_cndmask_b32 v{vL}, v{vT1}, v{vT2}, vcc")
    e(f"v_mov_b32 v{vT1}, 0x0c0c0c0c")
    for i in range(4):
        e(f"s_mov_b32 s{sM+2*i}, {hex(0x00030003 << (2*i))}")
        e(f"s_mov_b32 s{sM+2*i+1}, {hex(0x00030003 << (2*i))}")
    for i in range(4):
        m = f"s[{sM+2*i}:{sM+2*i+1}]"
        e(f"v_cndmask_b32 v{vMask+i}, 0, v{vP}, {m}")
        e(f"v_cndmask_b32 v{vSelE+i}, v{vT1}, v{vMax}, {m}")
        e(f"v_cndmask_b32 v{vSelO+i}, v{vT1}, v{vL}, {m}")
    for t in range(4):
        e(f"s_mov_b32 s{sM+2*t}, {hex(0x11111111 << t)}")
        e(f"s_mov_b32 s{sM+2*t+1}, {hex(0x11111111 << t)}")
    for i in range(4): e(f"v_mov_b32 v{vAcc+i}, 0")
    e(f"v_mov_b32 v{vMax}, 0xff800000")
    e(f"v_mov_b32 v{vL}, 0")
    e(f"v_mov_b32 v{vC}, {hex(f2u(128 ** -0.5 * math.log2(math.e)))}")
    e(f"s_lshl_b32 s{sT}, s{sW}, 12")
    e(f"s_add_u32 s{sT}, s{sT}, {L_S}")
    e(f"v_lshl_add_u32 v{vLdsS}, v{vLane}, 2, s{sT}")
    e(f"s_lshl_b32 s{sT}, s{sW}, 9")
    e(f"v_lshlrev_b32 v{vLdsA}, 1, v{vT3}")
    e(f"v_lshl_add_u32 v{vLdsA}, v{vT0}, 4, v{vLdsA}")
    e(f"v_add_u32 v{vLdsA}, s{sT}, v{vLdsA}")
    e(f"s_mul_i32 s{sT2}, s{sW}, {32*1280}")
    def xsel(r, dst):
        sel = vSelE if r % 2 == 0 else vSelO
        for i in range(4):
            e(f"v_perm_b32 v{dst+i}, v{vX+r//2}, v{vX+r//2}, v{sel+i}")
    e("s_waitcnt vmcnt(56)")
    xsel(0, vA)
    for r in range(40):
        if r < 39: xsel(r+1, vA + 4*((r+1) % 2))
        else: e("s_nop 1")
        e("s_waitcnt vmcnt(55)")
        c = "0" if r == 0 else vr(vD)
        e(f"v_mfma_f32_16x16x32_bf16 {vr(vD)}, {vr(vA+4*(r%2))}, {ar(4*r)}, {c}")
        rr, T = r // 5, r % 5
        e(f"buffer_load_dwordx4 {ar(4*r)}, v{vOffW}, {srd(sWo)}, s{sT2} offen offset:{T*256} {polW}")
        if T == 4 and r < 39: e(f"s_add_u32 s{sT2}, s{sT2}, 1280")
    stamp(2)
    e(f"s_cmp_eq_u32 s{sCons}, 0")
    e("s_cbranch_scc1 L_noclear")
    e(f"s_lshl_b32 s{sT}, s{sH}, 12")
    for i in range(4): e(f"v_mov_b32 v{vX+i}, -1")
    for i in range(4):
        e(f"buffer_store_dwordx4 {vr(vX)}, v{vOffV}, {srd(sIn)}, s{sT} offen offset:{1024*i} sc0 sc1")
    e("L_noclear:")
    e("s_nop 7")
    e("s_mov_b32 exec_hi, 0")
    e(f"ds_write_b128 v{vLdsA}, {vr(vD)} offset:{L_Q}")
    e("s_mov_b32 exec_hi, -1")
    e(f"v_lshrrev_b32 v{vT1}, 2, v{vLane}")
    e(f"v_lshlrev_b32 v{vT1}, 5, v{vT1}")
    e("s_waitcnt lgkmcnt(0)")
    e("s_barrier")
    for w in range(4):
        e(f"ds_read_b128 {vr(vX+8*w)}, v{vT1} offset:{L_Q + 512*w}")
        e(f"ds_read_b128 {vr(vX+8*w+4)}, v{vT1} offset:{L_Q + 512*w + 16}")
    e("s_waitcnt lgkmcnt(4)")
    for j in range(8): e(f"v_add_f32 v{vX+j}, v{vX+j}, v{vX+8+j}")
    e("s_waitcnt lgkmcnt(0)")
    for j in range(8): e(f"v_add_f32 v{vX+16+j}, v{vX+16+j}, v{vX+24+j}")
    for j in range(8): e(f"v_add_f32 v{vX+j}, v{vX+j}, v{vX+16+j}")
    for i in range(4): e(f"v_cvt_pk_bf16_f32 v{vX+8+i}, v{vX+2*i}, v{vX+2*i+1}")
    for t in range(4):
        for i in range(4):
            e(f"v_cndmask_b32 v{vQ+4*t+i}, 0, v{vX+8+i}, s[{sM+2*t}:{sM+2*t+1}]")
    e(f"s_mov_b32 s{sIt}, 0")
    stamp(3)

    def kloop(tag, Wn):
        e(f"L_k{tag}:")
        e(f"s_add_u32 s{sOff}, s{sOff}, {step}")
        e(f"s_cmp_lg_u32 s{sIt}, {NIT-1}")
        e(f"s_cbranch_scc1 L_k{tag}_go")
        e(f"s_mov_b32 s{sK}, s{sV}")
        e(f"s_mov_b32 s{sK+1}, s{sV+1}")
        e(f"s_mul_i32 s{sOff}, s{sW}, {wbase}")
        e(f"v_mov_b32 v{vOffC}, v{vOffV}")
        e(f"s_cmp_eq_u32 s{sCons}, 0")
        e(f"s_cbranch_scc1 L_k{tag}_go")
        e(f"s_lshl_b32 s{sT}, s{sG}, 2")
        e(f"v_mov_b32 v{vT0}, 1")
        e("s_mov_b64 exec, 1")
        e(f"buffer_atomic_add v{vT0}, off, {srd(sDbg)}, s{sT} sc1")
        e("s_mov_b64 exec, -1")
        e(f"L_k{tag}_go:")
        soffs()
        for s in range(16):
            b, t = s // 4, s % 4
            e(f"s_waitcnt vmcnt({Wn-1})")
            c = "0" if t == 0 else vr(vD+4*b)
            e(f"v_mfma_f32_16x16x32_bf16 {vr(vD+4*b)}, {vr(vRing+4*s)}, {vr(vQ+4*t)}, {c}")
            ringload(s)
        for r in range(4):
            if r == 3: e("s_nop 0")
            for k in range(4):
                cc = (r + k) % 4
                rot = (4 * (r - cc)) % 16
                ctl = "quad_perm:[0,1,2,3]" if rot == 0 else f"row_ror:{rot}"
                if k == 0:
                    e(f"v_mov_b32_dpp v{vS}, v{vD+4*r+cc} {ctl} row_mask:0xf bank_mask:{hex(1<<r)}")
                else:
                    e(f"v_add_f32_dpp v{vS}, v{vD+4*r+cc}, v{vS} {ctl} row_mask:0xf bank_mask:{hex(1<<r)}")
        e(f"s_add_u32 s{sIt}, s{sIt}, 1")
        e(f"v_max_f32 v{vMax}, v{vMax}, v{vS}")
        e(f"ds_write_b32 v{vLdsS}, v{vS}")
        e(f"v_add_u32 v{vLdsS}, 256, v{vLdsS}")
        e(f"s_cmp_lt_u32 s{sIt}, {NIT}")
        e(f"s_cbranch_scc1 L_k{tag}")

    def transition():
        e(f"v_subrev_u32 v{vLdsS}, {256*NIT}, v{vLdsS}")
        e("s_waitcnt lgkmcnt(0)")
        e(f"ds_read_b32 v{vSn}, v{vLdsS}")
        for n in (8, 4, 2, 1):
            e("s_nop 1")
            e(f"v_max_f32_dpp v{vMax}, v{vMax}, v{vMax} row_ror:{n} row_mask:0xf bank_mask:0xf")
        e(f"v_mov_b32 v{vT0}, v{vMax}")
        e("s_nop 1")
        e(f"v_permlane16_swap_b32 v{vMax}, v{vT0}")
        e("s_nop 0")
        e(f"v_max_f32 v{vMax}, v{vMax}, v{vT0}")
        e(f"v_mov_b32 v{vT0}, v{vMax}")
        e("s_nop 1")
        e(f"v_permlane32_swap_b32 v{vMax}, v{vT0}")
        e("s_nop 0")
        e(f"v_max_f32 v{vMax}, v{vMax}, v{vT0}")
        e(f"v_mul_f32 v{vMc}, v{vMax}, v{vC}")
        e(f"s_mov_b32 s{sIt}, 0")

    def vloop(tag, Wn):
        def asel(s):
            dst = vA + 4 * (s % 2)
            for i in range(4):
                e(f"v_and_b32_dpp v{dst+i}, v{vP}, v{vMask+i} row_newbcast:{s} row_mask:0xf bank_mask:0xf")
        e(f"L_v{tag}:")
        e(f"s_add_u32 s{sOff}, s{sOff}, {step}")
        e(f"s_cmp_lg_u32 s{sIt}, {NIT-1}")
        e(f"s_cbranch_scc1 L_v{tag}_go")
        e(f"s_mov_b32 s{sK+2}, 0")
        e(f"s_lshl_b32 s{sT}, s{sG}, 2")
        e(f"buffer_load_dword v{vFlag}, off, {srd(sDbg)}, s{sT} sc1")
        e(f"L_v{tag}_go:")
        e("s_waitcnt lgkmcnt(0)")
        e(f"v_fma_f32 v{vT0}, v{vSn}, v{vC}, -v{vMc}")
        e(f"v_add_u32 v{vLdsS}, 256, v{vLdsS}")
        e(f"v_exp_f32 v{vT0}, v{vT0}")
        e(f"ds_read_b32 v{vSn}, v{vLdsS}")
        soffs()
        e(f"v_cvt_pk_bf16_f32 v{vP}, v{vT0}, v{vT0}")
        e(f"v_add_f32 v{vL}, v{vL}, v{vT0}")
        e(f"s_add_u32 s{sIt}, s{sIt}, 1")
        asel(0)
        for s in range(16):
            if s < 15: asel(s+1)
            else: e("s_nop 0")
            e(f"s_waitcnt vmcnt({Wn-1})")
            e(f"v_mfma_f32_16x16x32_bf16 {vr(vAcc)}, {vr(vA+4*(s%2))}, {vr(vRing+4*s)}, {vr(vAcc)}")
            ringload(s)
        e(f"s_cmp_lt_u32 s{sIt}, {NIT}")
        e(f"s_cbranch_scc1 L_v{tag}")

    if Wodd is None:
        kloop("", W); transition(); stamp(4); vloop("", W)
    else:
        e(f"s_getreg_b32 s{sT}, hwreg(HW_REG_XCC_ID)")
        e(f"s_bitcmp1_b32 s{sT}, 0")
        e("s_cbranch_scc1 L_odd")
        kloop("e", W); transition(); stamp(4); vloop("e", W)
        e("s_branch L_tail")
        e("L_odd:")
        kloop("o", Wodd); transition(); stamp(4); vloop("o", Wodd)
        e("L_tail:")
    stamp(5)
    for n in (8, 4, 2, 1):
        e(f"v_add_f32_dpp v{vL}, v{vL}, v{vL} row_ror:{n} row_mask:0xf bank_mask:0xf")
        e("s_nop 1")
    e(f"v_mov_b32 v{vT0}, v{vL}")
    e("s_mov_b32 exec_hi, 0")
    e(f"ds_write_b128 v{vLdsA}, {vr(vAcc)} offset:{L_O}")
    e("s_mov_b32 exec_hi, -1")
    e(f"v_permlane16_swap_b32 v{vL}, v{vT0}")
    e(f"s_lshl_b32 s{sT}, s{sW}, 3")
    e(f"v_add_f32 v{vL}, v{vL}, v{vT0}")
    e(f"v_mov_b32 v{vT1}, s{sT}")
    e(f"v_mov_b32 v{vT0}, v{vL}")
    e("s_nop 1")
    e(f"v_permlane32_swap_b32 v{vL}, v{vT0}")
    e(f"v_mov_b32 v{vT2}, v{vMc}")
    e(f"v_add_f32 v{vT3}, v{vL}, v{vT0}")
    e(f"ds_write_b64 v{vT1}, v[{vT2}:{vT3}] offset:{L_ML}")
    e(f"s_cmp_lg_u32 s{sW}, 0")
    e("s_cbranch_scc1 L_flag_ok")
    e("s_waitcnt vmcnt(16)")
    e(f"s_mov_b32 s{sSpin}, 0")
    e("L_flag_chk:")
    e(f"v_readfirstlane_b32 s{sT}, v{vFlag}")
    e(f"s_add_u32 s{sSpin}, s{sSpin}, 1")
    e(f"s_cmp_ge_u32 s{sT}, 20")
    e("s_cbranch_scc1 L_flag_ok")
    e(f"s_cmp_ge_u32 s{sSpin}, 0x400000")
    e("s_cbranch_scc1 L_flag_ok")
    e(f"s_lshl_b32 s{sT}, s{sG}, 2")
    e(f"buffer_load_dword v{vFlag}, off, {srd(sDbg)}, s{sT} sc1")
    e("s_waitcnt vmcnt(0)")
    e("s_branch L_flag_chk")
    e("L_flag_ok:")
    e(f"v_lshrrev_b32 v{vT0}, 4, v{vLane}")
    e(f"s_lshl_b32 s{sT}, s{sW}, 7")
    e(f"v_lshl_add_u32 v{vT1}, v{vT0}, 5, s{sT}")
    e(f"v_mov_b32 v{vT0}, 0")
    e("s_waitcnt lgkmcnt(0)")
    e("s_barrier")
    vML = vD
    e(f"ds_read_b128 {vr(vML)}, v{vT0} offset:{L_ML}")
    e(f"ds_read_b128 {vr(vML+4)}, v{vT0} offset:{L_ML+16}")
    for w in range(4):
        e(f"ds_read_b128 {vr(vX+8*w)}, v{vT1} offset:{L_O + 512*w}")
        e(f"ds_read_b128 {vr(vX+8*w+4)}, v{vT1} offset:{L_O + 512*w + 16}")
    e("s_waitcnt lgkmcnt(8)")
    e(f"v_max3_f32 v{vT0}, v{vML}, v{vML+2}, v{vML+4}")
    e(f"v_max_f32 v{vT0}, v{vT0}, v{vML+6}")
    for w in range(4): e(f"v_sub_f32 v{vML+2*w}, v{vML+2*w}, v{vT0}")
    for w in range(4): e(f"v_exp_f32 v{vML+2*w}, v{vML+2*w}")
    e("s_nop 0")
    e(f"v_mul_f32 v{vT0}, v{vML}, v{vML+1}")
    for w in range(1, 4): e(f"v_fmac_f32 v{vT0}, v{vML+2*w}, v{vML+2*w+1}")
    e(f"v_rcp_f32 v{vT0}, v{vT0}")
    e("s_waitcnt lgkmcnt(0)")
    for w in range(4): e(f"v_mul_f32 v{vML+2*w}, v{vML+2*w}, v{vT0}")
    for j in range(8): e(f"v_mul_f32 v{vX+j}, v{vX+j}, v{vML}")
    for w in range(1, 4):
        for j in range(8): e(f"v_fmac_f32 v{vX+j}, v{vX+8*w+j}, v{vML+2*w}")
    for i in range(4): e(f"v_cvt_pk_bf16_f32 v{vX+i}, v{vX+2*i}, v{vX+2*i+1}")
    xsel(0, vA)
    for rr in range(8):
        if rr < 7: xsel(rr+1, vA + 4*((rr+1) % 2))
        else: e("s_nop 0")
        if rr == 0: e("s_nop 0")
        for T in range(5):
            c = "0" if rr == 0 else vr(vOAcc+4*T)
            e(f"v_mfma_f32_16x16x32_bf16 {vr(vOAcc+4*T)}, {vr(vA+4*(rr%2))}, {ar(4*(rr*5+T))}, {c}")
    e(f"s_lshl_b32 s{sT}, s{sW}, 11")
    e(f"v_add_u32 v{vT0}, s{sT}, v{vLdsA}")
    e(f"v_lshlrev_b32 v{vT1}, 4, v0")
    e(f"v_lshrrev_b32 v{vT2}, 3, v0")
    e(f"v_lshlrev_b32 v{vT2}, 12, v{vT2}")
    e(f"v_and_b32 v{vT3}, 7, v0")
    e(f"v_lshl_add_u32 v{vT2}, v{vT3}, 4, v{vT2}")
    e(f"s_lshl_b32 s{sT2}, s{sH}, 7")
    e("s_mov_b32 exec_hi, 0")
    for T in range(5):
        e(f"ds_write_b128 v{vT0}, {vr(vOAcc+4*T)} offset:{L_OUT + 512*T}")
    e("s_mov_b32 exec_hi, -1")
    e("s_waitcnt lgkmcnt(0)")
    e("s_barrier")
    e(f"s_cmp_eq_u32 s{sW}, 3")
    e("s_cbranch_scc1 L_consume")
    for w in range(4):
        e(f"ds_read_b128 {vr(vX+4*w)}, v{vT1} offset:{L_OUT + 2560*w}")
    e(f"v_mov_b32 v{vT3}, -2")
    e("s_waitcnt lgkmcnt(2)")
    for j in range(4): e(f"v_add_f32 v{vX+j}, v{vX+j}, v{vX+4+j}")
    e("s_waitcnt lgkmcnt(0)")
    for j in range(4): e(f"v_add_f32 v{vX+8+j}, v{vX+8+j}, v{vX+12+j}")
    for j in range(4): e(f"v_add_f32 v{vX+j}, v{vX+j}, v{vX+8+j}")
    for j in range(4): e(f"v_min_u32 v{vX+j}, v{vX+j}, v{vT3}")
    e(f"buffer_store_dwordx4 {vr(vX)}, v{vT2}, {srd(sIn)}, s{sT2} offen sc0 sc1")
    stamp(6)
    e("s_branch L_fin")
    e("L_consume:")
    e(f"s_cmp_eq_u32 s{sCons}, 0")
    e("s_cbranch_scc1 L_fin")
    e(f"s_lshl_b32 s{sT}, s{sH}, 12")
    e(f"s_mov_b32 s{sSpin}, 0")
    e("L_poll:")
    for i in range(4):
        e(f"buffer_load_dwordx4 {vr(vX+4*i)}, v{vOffV}, {srd(sIn)}, s{sT} offen offset:{1024*i} sc0 sc1")
    e(f"s_add_u32 s{sSpin}, s{sSpin}, 1")
    e("s_waitcnt vmcnt(0)")
    e(f"v_max3_u32 v{vT0}, v{vX}, v{vX+1}, v{vX+2}")
    e(f"v_max3_u32 v{vT1}, v{vX+3}, v{vX+4}, v{vX+5}")
    e(f"v_max3_u32 v{vT2}, v{vX+6}, v{vX+7}, v{vX+8}")
    e(f"v_max3_u32 v{vT3}, v{vX+9}, v{vX+10}, v{vX+11}")
    e(f"v_max3_u32 v{vT0}, v{vT0}, v{vX+12}, v{vX+13}")
    e(f"v_max3_u32 v{vT1}, v{vT1}, v{vX+14}, v{vX+15}")
    e(f"v_max3_u32 v{vT0}, v{vT0}, v{vT2}, v{vT3}")
    e(f"v_max_u32 v{vT0}, v{vT0}, v{vT1}")
    e(f"v_cmp_eq_u32 vcc, -1, v{vT0}")
    e(f"s_cmp_ge_u32 s{sSpin}, 0x200000")
    e("s_cbranch_scc1 L_polled")
    e("s_cbranch_vccnz L_poll")
    e("L_polled:")
    for j in range(4): e(f"v_add_f32 v{vX+j}, v{vX+j}, v{vX+4+j}")
    for j in range(4): e(f"v_add_f32 v{vX+8+j}, v{vX+8+j}, v{vX+12+j}")
    for j in range(4): e(f"v_add_f32 v{vX+j}, v{vX+j}, v{vX+8+j}")
    e("s_nop 1")
    for j in range(4): e(f"v_add_f32_dpp v{vX+j}, v{vX+j}, v{vX+j} row_ror:8 row_mask:0xf bank_mask:0xf")
    for j in range(4): e(f"v_mov_b32 v{vX+4+j}, v{vX+j}")
    e("s_nop 1")
    for j in range(4): e(f"v_permlane16_swap_b32 v{vX+j}, v{vX+4+j}")
    for j in range(4): e(f"v_add_f32 v{vX+j}, v{vX+j}, v{vX+4+j}")
    for j in range(4): e(f"v_mov_b32 v{vX+4+j}, v{vX+j}")
    e("s_nop 1")
    for j in range(4): e(f"v_permlane32_swap_b32 v{vX+j}, v{vX+4+j}")
    for j in range(4): e(f"v_add_f32 v{vX+j}, v{vX+j}, v{vX+4+j}")
    e(f"s_mul_i32 s{sT}, s{sB}, 2560")
    e(f"s_mul_i32 s{sT2}, s{sBr}, 1280")
    e(f"s_add_u32 s{sT}, s{sT}, s{sT2}")
    e(f"s_lshl_b32 s{sT2}, s{sH}, 6")
    e(f"s_add_u32 s{sT}, s{sT}, s{sT2}")
    e(f"v_cvt_pk_bf16_f32 v{vX}, v{vX}, v{vX+1}")
    e(f"v_cvt_pk_bf16_f32 v{vX+1}, v{vX+2}, v{vX+3}")
    e(f"v_lshlrev_b32 v{vT0}, 3, v{vLane}")
    e("s_mov_b64 exec, 0xff")
    e(f"buffer_store_dwordx2 v[{vX}:{vX+1}], v{vT0}, {srd(sOut)}, s{sT} offen")
    e("s_mov_b64 exec, -1")
    stamp(6)
    e("L_fin:")
    if stamps:
        e("s_waitcnt vmcnt(0) lgkmcnt(0)")
        e(f"s_memrealtime s[{sSt+14}:{sSt+15}]")
        e(f"s_getreg_b32 s{sT3}, hwreg(HW_REG_XCC_ID)")
        e(f"s_add_u32 s{sIn}, s28, 0x100000")
        e(f"s_addc_u32 s{sIn+1}, s29, 0")
        e(f"s_mov_b32 s{sIn+2}, 0x20000")
        e(f"s_lshl_b32 s{sT}, s2, 2")
        e(f"s_add_u32 s{sT}, s{sT}, s{sW}")
        e(f"s_lshl_b32 s{sT}, s{sT}, 7")
        e("s_waitcnt lgkmcnt(0)")
        e(f"v_mov_b32 v{vT0}, 0")
        e("s_mov_b64 exec, 1")
        for i in range(8):
            e(f"v_mov_b32 v{vX+2*i}, s{sSt+2*i}")
            e(f"v_mov_b32 v{vX+2*i+1}, s{sSt+2*i+1}")
        e(f"v_mov_b32 v{vX+16}, s{sT3}")
        for i in range(4):
            e(f"buffer_store_dwordx4 {vr(vX+4*i)}, v{vT0}, {srd(sIn)}, s{sT} offen offset:{16*i}")
        e(f"buffer_store_dword v{vX+16}, v{vT0}, {srd(sIn)}, s{sT} offen offset:64")
    e("L_end:")
    e("s_endpgm")
    e('.section .rodata,"a"')
    e(".p2align 6")
    e(f".amdhsa_kernel {KNAME}")
    e(f"  .amdhsa_next_free_vgpr {ACC_OFF + NA}")
    e("  .amdhsa_next_free_sgpr 102")
    e(f"  .amdhsa_accum_offset {ACC_OFF}")
    e("  .amdhsa_group_segment_fixed_size 0")
    e("  .amdhsa_kernarg_size 104")
    e("  .amdhsa_user_sgpr_count 2")
    e("  .amdhsa_user_sgpr_kernarg_segment_ptr 1")
    e("  .amdhsa_system_sgpr_workgroup_id_x 1")
    e("  .amdhsa_float_denorm_mode_32 3")
    e(".end_amdhsa_kernel")
    return "\n".join(o) + "\n"

if __name__ == "__main__":
    cfg = eval("dict(" + (sys.argv[2] if len(sys.argv) > 2 else "") + ")")
    open(sys.argv[1], "w").write(gen(**cfg))
```

```python
import sys, math, struct
KNAME = "concat_heads__gqa_block_cached__gqa_block_cached__decode_kernel"

HEADER = """; Kernarg layout for this problem (104 bytes, ptrs only, base s[0:1]):
;
"""

def f2u(x):
    return struct.unpack("<I", struct.pack("<f", x))[0]

def gen(polKV="nt", polW="nt", layout="chunk", W=16, Wodd=None, stamps=0, hmap=1, pols=None):
    o = []
    def e(s): o.append(s)
    NW = 4
    D = 16
    NIT = 16
    L_Q = 0
    L_O = 2048
    L_ML = 4096
    L_OUT = 4224
    L_S = 4224 + 10240
    LDS = L_S + 16384 + 256
    sW, sH, sB, sBr, sG = 30, 31, 32, 33, 34
    sK, sWq, sWo, sX, sIn, sDbg, sOut = 36, 40, 44, 48, 52, 56, 60
    sV = 64
    sO = 66
    sIt, sOff, sT, sT2, sT3 = 70, 71, 72, 73, 74
    sM = 76
    sCons = 84
    sSpin = 85
    sSt = 86
    def srd(b): return f"s[{b}:{b+3}]"
    vLane, vOffK, vOffV, vOffC, vOffW, vT0, vT1, vT2, vT3 = 1, 2, 3, 4, 5, 6, 7, 8, 9
    vMask = 10
    vSelE = 14
    vSelO = 18
    vS, vP, vMax, vL, vC, vMc, vSn, vFlag, vLdsS, vLdsA = 22, 23, 24, 25, 26, 27, 28, 29, 30, 31
    vA = 32
    vAcc = 40
    vQ = 44
    vD = 60
    vX = 76
    vOAcc = 108
    vRing = 128
    NV = vRing + 4 * D
    ACC_OFF = NV
    NA = 160
    def vr(b, n=4): return f"v[{b}:{b+n-1}]"
    def ar(b, n=4): return f"a[{b}:{b+n-1}]"
    def stamp(i):
        if stamps:
            e(f"s_memrealtime s[{sSt+2*i}:{sSt+2*i+1}]")

    e(HEADER.rstrip("\n"))
    e(f"; @launch grid=(256,1,1) block=(256,1,1) lds={LDS}")
    e('.amdgcn_target "amdgcn-amd-amdhsa--gfx950"')
    e(".text")
    e(f".globl {KNAME}")
    e(".p2align 8")
    e(f".type {KNAME},@function")
    e(f"{KNAME}:")
    stamp(0)
    e("s_cmp_ge_u32 s2, 256")
    e("s_cbranch_scc1 L_end")
    e("s_load_dwordx16 s[4:19], s[0:1], 0")
    e("s_load_dwordx8 s[20:27], s[0:1], 64")
    e("s_load_dwordx2 s[28:29], s[0:1], 96")
    e(f"v_lshrrev_b32 v{vT0}, 6, v0")
    e(f"v_and_b32 v{vLane}, 63, v0")
    e(f"v_readfirstlane_b32 s{sW}, v{vT0}")
    if hmap == 0:
        e(f"s_and_b32 s{sH}, s2, 7")
        e(f"s_lshr_b32 s{sT}, s2, 5")
        e(f"s_lshr_b32 s{sBr}, s{sT}, 2")
        e(f"s_and_b32 s{sT}, s{sT}, 3")
        e(f"s_lshl_b32 s{sT}, s{sT}, 3")
        e(f"s_add_u32 s{sH}, s{sH}, s{sT}")
    else:
        e(f"s_and_b32 s{sH}, s2, 3")
        e(f"s_lshl_b32 s{sH}, s{sH}, 3")
        e(f"s_lshr_b32 s{sT}, s2, 5")
        e(f"s_add_u32 s{sH}, s{sH}, s{sT}")
        e(f"s_bfe_u32 s{sBr}, s2, 0x10002")
    e(f"s_lshr_b32 s{sB}, s2, 3")
    e(f"s_and_b32 s{sB}, s{sB}, 3")
    e(f"s_lshl_b32 s{sG}, s{sBr}, 2")
    e(f"s_add_u32 s{sG}, s{sG}, s{sB}")
    e(f"v_lshrrev_b32 v{vT0}, 4, v{vLane}")
    e(f"v_and_b32 v{vT1}, 15, v{vLane}")
    e(f"v_mul_u32_u24 v{vT2}, 80, v{vT0}")
    e(f"v_lshlrev_b32 v{vT3}, 4, v{vT1}")
    e(f"v_mul_u32_u24 v{vOffW}, {40*8192}, v{vT0}")
    e(f"v_add_u32 v{vOffW}, v{vOffW}, v{vT3}")
    e(f"v_lshlrev_b32 v{vOffV}, 4, v{vLane}")
    e(f"v_lshrrev_b32 v{vOffK}, 2, v{vT1}")
    e(f"v_lshlrev_b32 v{vOffK}, 8, v{vOffK}")
    e(f"v_lshl_add_u32 v{vOffK}, v{vT0}, 6, v{vOffK}")
    e(f"v_and_b32 v{vS}, 3, v{vLane}")
    e(f"v_lshl_add_u32 v{vOffK}, v{vS}, 4, v{vOffK}")
    e(f"v_mov_b32 v{vOffC}, v{vOffK}")
    e(f"s_lshl_b32 s{sT}, s{sB}, 5")
    e(f"s_add_u32 s{sT}, s{sT}, s{sH}")
    e(f"s_lshl_b32 s{sT}, s{sT}, 20")
    e(f"s_mul_i32 s{sT2}, s{sB}, 1280")
    e(f"s_lshl_b32 s{sT3}, s{sH}, 8")
    e(f"s_cmp_eq_u32 s{sBr}, 0")
    e("s_waitcnt lgkmcnt(0)")
    e("s_cselect_b64 s[4:5], s[4:5], s[14:15]")
    e("s_cselect_b64 s[6:7], s[6:7], s[16:17]")
    e("s_cselect_b64 s[8:9], s[8:9], s[18:19]")
    e("s_cselect_b64 s[10:11], s[10:11], s[20:21]")
    e("s_cselect_b64 s[12:13], s[12:13], s[22:23]")
    e(f"s_add_u32 s{sX}, s4, s{sT2}")
    e(f"s_addc_u32 s{sX+1}, s5, 0")
    e(f"s_mov_b32 s{sX+2}, 1280")
    e(f"s_mov_b32 s{sX+3}, 0x20000")
    e(f"s_add_u32 s{sWq}, s10, s{sT3}")
    e(f"s_addc_u32 s{sWq+1}, s11, 0")
    e(f"s_sub_u32 s{sWq+2}, {640*8192}, s{sT3}")
    e(f"s_mov_b32 s{sWq+3}, 0x20000")
    e(f"s_mul_i32 s{sT2}, s{sW}, 320")
    for i in range(5):
        e(f"buffer_load_dwordx4 {vr(vX+4*i)}, v{vT2}, {srd(sX)}, s{sT2} offen offset:{16*i}")
    e(f"s_mul_i32 s{sT2}, s{sW}, {160*8192}")
    for r in range(40):
        e(f"buffer_load_dwordx4 {ar(4*r)}, v{vOffW}, {srd(sWq)}, s{sT2} offen {polW}")
        if r < 39: e(f"s_add_u32 s{sT2}, s{sT2}, 8192")
    e(f"s_add_u32 s{sK}, s6, s{sT}")
    e(f"s_addc_u32 s{sK+1}, s7, 0")
    e(f"s_mov_b32 s{sK+2}, 0x100000")
    e(f"s_mov_b32 s{sK+3}, 0x20000")
    e(f"s_add_u32 s{sV}, s8, s{sT}")
    e(f"s_addc_u32 s{sV+1}, s9, 0")
    if layout == "chunk":
        wbase, step = 262144, 16384
    else:
        wbase, step = 16384, 65536
    e(f"s_mul_i32 s{sOff}, s{sW}, {wbase}")
    def soffs():
        e(f"s_mov_b32 s{sO}, s{sOff}")
        for i in range(1, 4):
            e(f"s_add_u32 s{sO+i}, s{sOff}, {4096*i}")
    def ringload(s, pol=None):
        if pol is None: pol = polKV
        e(f"buffer_load_dwordx4 {vr(vRing+4*s)}, v{vOffC}, {srd(sK)}, s{sO+s//4} offen offset:{(s%4)*1024} {pol}")
    soffs()
    for s in range(D): ringload(s)
    stamp(1)
    e(f"s_mul_i32 s{sT}, s{sH}, 163840")
    e(f"s_add_u32 s{sWo}, s12, s{sT}")
    e(f"s_addc_u32 s{sWo+1}, s13, 0")
    e(f"s_mov_b32 s{sWo+2}, 163840")
    e(f"s_mov_b32 s{sWo+3}, 0x20000")
    e(f"s_mul_i32 s{sT}, s{sG}, {20*4096}")
    e(f"s_add_u32 s{sIn}, s28, s{sT}")
    e(f"s_addc_u32 s{sIn+1}, s29, 0")
    e(f"s_mov_b32 s{sIn+2}, {20*4096}")
    e(f"s_mov_b32 s{sIn+3}, 0x20000")
    e(f"s_mov_b32 s{sDbg}, s26")
    e(f"s_mov_b32 s{sDbg+1}, s27")
    e(f"s_mov_b32 s{sDbg+2}, 256")
    e(f"s_mov_b32 s{sDbg+3}, 0x20000")
    e(f"s_mov_b32 s{sOut}, s24")
    e(f"s_mov_b32 s{sOut+1}, s25")
    e(f"s_mov_b32 s{sOut+2}, 10240")
    e(f"s_mov_b32 s{sOut+3}, 0x20000")
    e(f"s_cmp_lt_u32 s{sH}, 20")
    e(f"s_cselect_b32 s{sCons}, 1, 0")
    e(f"s_cmp_eq_u32 s{sW}, 3")
    e(f"s_cselect_b32 s{sCons}, s{sCons}, 0")
    e(f"v_mul_u32_u24 v{vOffW}, {8*1280}, v{vT0}")
    e(f"v_add_u32 v{vOffW}, v{vOffW}, v{vT3}")
    e(f"v_and_b32 v{vS}, 1, v{vLane}")
    e(f"v_cmp_eq_u32 vcc, 1, v{vS}")
    e(f"v_mov_b32 v{vT1}, 0x0000ffff")
    e(f"v_mov_b32 v{vT2}, 0xffff0000")
    e(f"v_cndmask_b32 v{vP}, v{vT1}, v{vT2}, vcc")
    e(f"v_mov_b32 v{vT1}, 0x0c0c0100")
    e(f"v_mov_b32 v{vT2}, 0x01000c0c")
    e(f"v_cndmask_b32 v{vMax}, v{vT1}, v{vT2}, vcc")
    e(f"v_mov_b32 v{vT1}, 0x0c0c0302")
    e(f"v_mov_b32 v{vT2}, 0x03020c0c")
    e(f"v_cndmask_b32 v{vL}, v{vT1}, v{vT2}, vcc")
    e(f"v_mov_b32 v{vT1}, 0x0c0c0c0c")
    for i in range(4):
        e(f"s_mov_b32 s{sM+2*i}, {hex(0x00030003 << (2*i))}")
        e(f"s_mov_b32 s{sM+2*i+1}, {hex(0x00030003 << (2*i))}")
    for i in range(4):
        m = f"s[{sM+2*i}:{sM+2*i+1}]"
        e(f"v_cndmask_b32 v{vMask+i}, 0, v{vP}, {m}")
        e(f"v_cndmask_b32 v{vSelE+i}, v{vT1}, v{vMax}, {m}")
        e(f"v_cndmask_b32 v{vSelO+i}, v{vT1}, v{vL}, {m}")
    for t in range(4):
        e(f"s_mov_b32 s{sM+2*t}, {hex(0x11111111 << t)}")
        e(f"s_mov_b32 s{sM+2*t+1}, {hex(0x11111111 << t)}")
    for i in range(4): e(f"v_mov_b32 v{vAcc+i}, 0")
    e(f"v_mov_b32 v{vMax}, 0xff800000")
    e(f"v_mov_b32 v{vL}, 0")
    e(f"v_mov_b32 v{vC}, {hex(f2u(128 ** -0.5 * math.log2(math.e)))}")
    e(f"s_lshl_b32 s{sT}, s{sW}, 12")
    e(f"s_add_u32 s{sT}, s{sT}, {L_S}")
    e(f"v_lshl_add_u32 v{vLdsS}, v{vLane}, 2, s{sT}")
    e(f"s_lshl_b32 s{sT}, s{sW}, 9")
    e(f"v_lshlrev_b32 v{vLdsA}, 1, v{vT3}")
    e(f"v_lshl_add_u32 v{vLdsA}, v{vT0}, 4, v{vLdsA}")
    e(f"v_add_u32 v{vLdsA}, s{sT}, v{vLdsA}")
    e(f"s_mul_i32 s{sT2}, s{sW}, {32*1280}")
    def xsel(r, dst):
        sel = vSelE if r % 2 == 0 else vSelO
        for i in range(4):
            e(f"v_perm_b32 v{dst+i}, v{vX+r//2}, v{vX+r//2}, v{sel+i}")
    e("s_waitcnt vmcnt(56)")
    xsel(0, vA)
    for r in range(40):
        if r < 39: xsel(r+1, vA + 4*((r+1) % 2))
        else: e("s_nop 1")
        e("s_waitcnt vmcnt(55)")
        c = "0" if r == 0 else vr(vD)
        e(f"v_mfma_f32_16x16x32_bf16 {vr(vD)}, {vr(vA+4*(r%2))}, {ar(4*r)}, {c}")
        rr, T = r // 5, r % 5
        e(f"buffer_load_dwordx4 {ar(4*r)}, v{vOffW}, {srd(sWo)}, s{sT2} offen offset:{T*256} {polW}")
        if T == 4 and r < 39: e(f"s_add_u32 s{sT2}, s{sT2}, 1280")
    stamp(2)
    e(f"s_cmp_eq_u32 s{sCons}, 0")
    e("s_cbranch_scc1 L_noclear")
    e(f"s_lshl_b32 s{sT}, s{sH}, 12")
    for i in range(4): e(f"v_mov_b32 v{vX+i}, -1")
    for i in range(4):
        e(f"buffer_store_dwordx4 {vr(vX)}, v{vOffV}, {srd(sIn)}, s{sT} offen offset:{1024*i} sc0 sc1")
    e("L_noclear:")
    e("s_nop 7")
    e("s_mov_b32 exec_hi, 0")
    e(f"ds_write_b128 v{vLdsA}, {vr(vD)} offset:{L_Q}")
    e("s_mov_b32 exec_hi, -1")
    e(f"v_lshrrev_b32 v{vT1}, 2, v{vLane}")
    e(f"v_lshlrev_b32 v{vT1}, 5, v{vT1}")
    e("s_waitcnt lgkmcnt(0)")
    e("s_barrier")
    for w in range(4):
        e(f"ds_read_b128 {vr(vX+8*w)}, v{vT1} offset:{L_Q + 512*w}")
        e(f"ds_read_b128 {vr(vX+8*w+4)}, v{vT1} offset:{L_Q + 512*w + 16}")
    e("s_waitcnt lgkmcnt(4)")
    for j in range(8): e(f"v_add_f32 v{vX+j}, v{vX+j}, v{vX+8+j}")
    e("s_waitcnt lgkmcnt(0)")
    for j in range(8): e(f"v_add_f32 v{vX+16+j}, v{vX+16+j}, v{vX+24+j}")
    for j in range(8): e(f"v_add_f32 v{vX+j}, v{vX+j}, v{vX+16+j}")
    for i in range(4): e(f"v_cvt_pk_bf16_f32 v{vX+8+i}, v{vX+2*i}, v{vX+2*i+1}")
    for t in range(4):
        for i in range(4):
            e(f"v_cndmask_b32 v{vQ+4*t+i}, 0, v{vX+8+i}, s[{sM+2*t}:{sM+2*t+1}]")
    e(f"s_mov_b32 s{sIt}, 0")
    stamp(3)

    def kloop(tag, Wn, pol=None):
        e(f"L_k{tag}:")
        e(f"s_add_u32 s{sOff}, s{sOff}, {step}")
        e(f"s_cmp_lg_u32 s{sIt}, {NIT-1}")
        e(f"s_cbranch_scc1 L_k{tag}_go")
        e(f"s_mov_b32 s{sK}, s{sV}")
        e(f"s_mov_b32 s{sK+1}, s{sV+1}")
        e(f"s_mul_i32 s{sOff}, s{sW}, {wbase}")
        e(f"v_mov_b32 v{vOffC}, v{vOffV}")
        e(f"s_cmp_eq_u32 s{sCons}, 0")
        e(f"s_cbranch_scc1 L_k{tag}_go")
        e(f"s_lshl_b32 s{sT}, s{sG}, 2")
        e(f"v_mov_b32 v{vT0}, 1")
        e("s_mov_b64 exec, 1")
        e(f"buffer_atomic_add v{vT0}, off, {srd(sDbg)}, s{sT} sc1")
        e("s_mov_b64 exec, -1")
        e(f"L_k{tag}_go:")
        soffs()
        for s in range(16):
            b, t = s // 4, s % 4
            e(f"s_waitcnt vmcnt({Wn-1})")
            c = "0" if t == 0 else vr(vD+4*b)
            e(f"v_mfma_f32_16x16x32_bf16 {vr(vD+4*b)}, {vr(vRing+4*s)}, {vr(vQ+4*t)}, {c}")
            ringload(s, pol)
        for r in range(4):
            if r == 3: e("s_nop 0")
            for k in range(4):
                cc = (r + k) % 4
                rot = (4 * (r - cc)) % 16
                ctl = "quad_perm:[0,1,2,3]" if rot == 0 else f"row_ror:{rot}"
                if k == 0:
                    e(f"v_mov_b32_dpp v{vS}, v{vD+4*r+cc} {ctl} row_mask:0xf bank_mask:{hex(1<<r)}")
                else:
                    e(f"v_add_f32_dpp v{vS}, v{vD+4*r+cc}, v{vS} {ctl} row_mask:0xf bank_mask:{hex(1<<r)}")
        e(f"s_add_u32 s{sIt}, s{sIt}, 1")
        e(f"v_max_f32 v{vMax}, v{vMax}, v{vS}")
        e(f"ds_write_b32 v{vLdsS}, v{vS}")
        e(f"v_add_u32 v{vLdsS}, 256, v{vLdsS}")
        e(f"s_cmp_lt_u32 s{sIt}, {NIT}")
        e(f"s_cbranch_scc1 L_k{tag}")

    def transition():
        e(f"v_subrev_u32 v{vLdsS}, {256*NIT}, v{vLdsS}")
        e("s_waitcnt lgkmcnt(0)")
        e(f"ds_read_b32 v{vSn}, v{vLdsS}")
        for n in (8, 4, 2, 1):
            e("s_nop 1")
            e(f"v_max_f32_dpp v{vMax}, v{vMax}, v{vMax} row_ror:{n} row_mask:0xf bank_mask:0xf")
        e(f"v_mov_b32 v{vT0}, v{vMax}")
        e("s_nop 1")
        e(f"v_permlane16_swap_b32 v{vMax}, v{vT0}")
        e("s_nop 0")
        e(f"v_max_f32 v{vMax}, v{vMax}, v{vT0}")
        e(f"v_mov_b32 v{vT0}, v{vMax}")
        e("s_nop 1")
        e(f"v_permlane32_swap_b32 v{vMax}, v{vT0}")
        e("s_nop 0")
        e(f"v_max_f32 v{vMax}, v{vMax}, v{vT0}")
        e(f"v_mul_f32 v{vMc}, v{vMax}, v{vC}")
        e(f"s_mov_b32 s{sIt}, 0")

    def vloop(tag, Wn, pol=None):
        def asel(s):
            dst = vA + 4 * (s % 2)
            for i in range(4):
                e(f"v_and_b32_dpp v{dst+i}, v{vP}, v{vMask+i} row_newbcast:{s} row_mask:0xf bank_mask:0xf")
        e(f"L_v{tag}:")
        e(f"s_add_u32 s{sOff}, s{sOff}, {step}")
        e(f"s_cmp_lg_u32 s{sIt}, {NIT-1}")
        e(f"s_cbranch_scc1 L_v{tag}_go")
        e(f"s_mov_b32 s{sK+2}, 0")
        e(f"s_lshl_b32 s{sT}, s{sG}, 2")
        e(f"buffer_load_dword v{vFlag}, off, {srd(sDbg)}, s{sT} sc1")
        e(f"L_v{tag}_go:")
        e("s_waitcnt lgkmcnt(0)")
        e(f"v_fma_f32 v{vT0}, v{vSn}, v{vC}, -v{vMc}")
        e(f"v_add_u32 v{vLdsS}, 256, v{vLdsS}")
        e(f"v_exp_f32 v{vT0}, v{vT0}")
        e(f"ds_read_b32 v{vSn}, v{vLdsS}")
        soffs()
        e(f"v_cvt_pk_bf16_f32 v{vP}, v{vT0}, v{vT0}")
        e(f"v_add_f32 v{vL}, v{vL}, v{vT0}")
        e(f"s_add_u32 s{sIt}, s{sIt}, 1")
        asel(0)
        for s in range(16):
            if s < 15: asel(s+1)
            else: e("s_nop 0")
            e(f"s_waitcnt vmcnt({Wn-1})")
            e(f"v_mfma_f32_16x16x32_bf16 {vr(vAcc)}, {vr(vA+4*(s%2))}, {vr(vRing+4*s)}, {vr(vAcc)}")
            ringload(s, pol)
        e(f"s_cmp_lt_u32 s{sIt}, {NIT}")
        e(f"s_cbranch_scc1 L_v{tag}")

    if pols is not None:
        e(f"s_cmp_eq_u32 s{sBr}, 1")
        e("s_cbranch_scc1 L_odd")
        kloop("e", W, pols[0]); transition(); stamp(4); vloop("e", W, pols[1])
        e("s_branch L_tail")
        e("L_odd:")
        kloop("o", W, pols[2]); transition(); stamp(4); vloop("o", W, pols[3])
        e("L_tail:")
    elif Wodd is None:
        kloop("", W); transition(); stamp(4); vloop("", W)
    else:
        e(f"s_getreg_b32 s{sT}, hwreg(HW_REG_XCC_ID)")
        e(f"s_bitcmp1_b32 s{sT}, 0")
        e("s_cbranch_scc1 L_odd")
        kloop("e", W); transition(); stamp(4); vloop("e", W)
        e("s_branch L_tail")
        e("L_odd:")
        kloop("o", Wodd); transition(); stamp(4); vloop("o", Wodd)
        e("L_tail:")
    stamp(5)
    for n in (8, 4, 2, 1):
        e(f"v_add_f32_dpp v{vL}, v{vL}, v{vL} row_ror:{n} row_mask:0xf bank_mask:0xf")
        e("s_nop 1")
    e(f"v_mov_b32 v{vT0}, v{vL}")
    e("s_mov_b32 exec_hi, 0")
    e(f"ds_write_b128 v{vLdsA}, {vr(vAcc)} offset:{L_O}")
    e("s_mov_b32 exec_hi, -1")
    e(f"v_permlane16_swap_b32 v{vL}, v{vT0}")
    e(f"s_lshl_b32 s{sT}, s{sW}, 3")
    e(f"v_add_f32 v{vL}, v{vL}, v{vT0}")
    e(f"v_mov_b32 v{vT1}, s{sT}")
    e(f"v_mov_b32 v{vT0}, v{vL}")
    e("s_nop 1")
    e(f"v_permlane32_swap_b32 v{vL}, v{vT0}")
    e(f"v_mov_b32 v{vT2}, v{vMc}")
    e(f"v_add_f32 v{vT3}, v{vL}, v{vT0}")
    e(f"ds_write_b64 v{vT1}, v[{vT2}:{vT3}] offset:{L_ML}")
    e(f"s_cmp_lg_u32 s{sW}, 0")
    e("s_cbranch_scc1 L_flag_ok")
    e("s_waitcnt vmcnt(16)")
    e(f"s_mov_b32 s{sSpin}, 0")
    e("L_flag_chk:")
    e(f"v_readfirstlane_b32 s{sT}, v{vFlag}")
    e(f"s_add_u32 s{sSpin}, s{sSpin}, 1")
    e(f"s_cmp_ge_u32 s{sT}, 20")
    e("s_cbranch_scc1 L_flag_ok")
    e(f"s_cmp_ge_u32 s{sSpin}, 0x400000")
    e("s_cbranch_scc1 L_flag_ok")
    e(f"s_lshl_b32 s{sT}, s{sG}, 2")
    e(f"buffer_load_dword v{vFlag}, off, {srd(sDbg)}, s{sT} sc1")
    e("s_waitcnt vmcnt(0)")
    e("s_branch L_flag_chk")
    e("L_flag_ok:")
    e(f"v_lshrrev_b32 v{vT0}, 4, v{vLane}")
    e(f"s_lshl_b32 s{sT}, s{sW}, 7")
    e(f"v_lshl_add_u32 v{vT1}, v{vT0}, 5, s{sT}")
    e(f"v_mov_b32 v{vT0}, 0")
    e("s_waitcnt lgkmcnt(0)")
    e("s_barrier")
    vML = vD
    e(f"ds_read_b128 {vr(vML)}, v{vT0} offset:{L_ML}")
    e(f"ds_read_b128 {vr(vML+4)}, v{vT0} offset:{L_ML+16}")
    for w in range(4):
        e(f"ds_read_b128 {vr(vX+8*w)}, v{vT1} offset:{L_O + 512*w}")
        e(f"ds_read_b128 {vr(vX+8*w+4)}, v{vT1} offset:{L_O + 512*w + 16}")
    e("s_waitcnt lgkmcnt(8)")
    e(f"v_max3_f32 v{vT0}, v{vML}, v{vML+2}, v{vML+4}")
    e(f"v_max_f32 v{vT0}, v{vT0}, v{vML+6}")
    for w in range(4): e(f"v_sub_f32 v{vML+2*w}, v{vML+2*w}, v{vT0}")
    for w in range(4): e(f"v_exp_f32 v{vML+2*w}, v{vML+2*w}")
    e("s_nop 0")
    e(f"v_mul_f32 v{vT0}, v{vML}, v{vML+1}")
    for w in range(1, 4): e(f"v_fmac_f32 v{vT0}, v{vML+2*w}, v{vML+2*w+1}")
    e(f"v_rcp_f32 v{vT0}, v{vT0}")
    e("s_waitcnt lgkmcnt(0)")
    for w in range(4): e(f"v_mul_f32 v{vML+2*w}, v{vML+2*w}, v{vT0}")
    for j in range(8): e(f"v_mul_f32 v{vX+j}, v{vX+j}, v{vML}")
    for w in range(1, 4):
        for j in range(8): e(f"v_fmac_f32 v{vX+j}, v{vX+8*w+j}, v{vML+2*w}")
    for i in range(4): e(f"v_cvt_pk_bf16_f32 v{vX+i}, v{vX+2*i}, v{vX+2*i+1}")
    xsel(0, vA)
    for rr in range(8):
        if rr < 7: xsel(rr+1, vA + 4*((rr+1) % 2))
        else: e("s_nop 0")
        if rr == 0: e("s_nop 0")
        for T in range(5):
            c = "0" if rr == 0 else vr(vOAcc+4*T)
            e(f"v_mfma_f32_16x16x32_bf16 {vr(vOAcc+4*T)}, {vr(vA+4*(rr%2))}, {ar(4*(rr*5+T))}, {c}")
    e(f"s_lshl_b32 s{sT}, s{sW}, 11")
    e(f"v_add_u32 v{vT0}, s{sT}, v{vLdsA}")
    e(f"v_lshlrev_b32 v{vT1}, 4, v0")
    e(f"v_lshrrev_b32 v{vT2}, 3, v0")
    e(f"v_lshlrev_b32 v{vT2}, 12, v{vT2}")
    e(f"v_and_b32 v{vT3}, 7, v0")
    e(f"v_lshl_add_u32 v{vT2}, v{vT3}, 4, v{vT2}")
    e(f"s_lshl_b32 s{sT2}, s{sH}, 7")
    e("s_mov_b32 exec_hi, 0")
    for T in range(5):
        e(f"ds_write_b128 v{vT0}, {vr(vOAcc+4*T)} offset:{L_OUT + 512*T}")
    e("s_mov_b32 exec_hi, -1")
    e("s_waitcnt lgkmcnt(0)")
    e("s_barrier")
    e(f"s_cmp_eq_u32 s{sW}, 3")
    e("s_cbranch_scc1 L_consume")
    for w in range(4):
        e(f"ds_read_b128 {vr(vX+4*w)}, v{vT1} offset:{L_OUT + 2560*w}")
    e(f"v_mov_b32 v{vT3}, -2")
    e("s_waitcnt lgkmcnt(2)")
    for j in range(4): e(f"v_add_f32 v{vX+j}, v{vX+j}, v{vX+4+j}")
    e("s_waitcnt lgkmcnt(0)")
    for j in range(4): e(f"v_add_f32 v{vX+8+j}, v{vX+8+j}, v{vX+12+j}")
    for j in range(4): e(f"v_add_f32 v{vX+j}, v{vX+j}, v{vX+8+j}")
    for j in range(4): e(f"v_min_u32 v{vX+j}, v{vX+j}, v{vT3}")
    e(f"buffer_store_dwordx4 {vr(vX)}, v{vT2}, {srd(sIn)}, s{sT2} offen sc0 sc1")
    stamp(6)
    e("s_branch L_fin")
    e("L_consume:")
    e(f"s_cmp_eq_u32 s{sCons}, 0")
    e("s_cbranch_scc1 L_fin")
    e(f"s_lshl_b32 s{sT}, s{sH}, 12")
    e(f"s_mov_b32 s{sSpin}, 0")
    e("L_poll:")
    for i in range(4):
        e(f"buffer_load_dwordx4 {vr(vX+4*i)}, v{vOffV}, {srd(sIn)}, s{sT} offen offset:{1024*i} sc0 sc1")
    e(f"s_add_u32 s{sSpin}, s{sSpin}, 1")
    e("s_waitcnt vmcnt(0)")
    e(f"v_max3_u32 v{vT0}, v{vX}, v{vX+1}, v{vX+2}")
    e(f"v_max3_u32 v{vT1}, v{vX+3}, v{vX+4}, v{vX+5}")
    e(f"v_max3_u32 v{vT2}, v{vX+6}, v{vX+7}, v{vX+8}")
    e(f"v_max3_u32 v{vT3}, v{vX+9}, v{vX+10}, v{vX+11}")
    e(f"v_max3_u32 v{vT0}, v{vT0}, v{vX+12}, v{vX+13}")
    e(f"v_max3_u32 v{vT1}, v{vT1}, v{vX+14}, v{vX+15}")
    e(f"v_max3_u32 v{vT0}, v{vT0}, v{vT2}, v{vT3}")
    e(f"v_max_u32 v{vT0}, v{vT0}, v{vT1}")
    e(f"v_cmp_eq_u32 vcc, -1, v{vT0}")
    e(f"s_cmp_ge_u32 s{sSpin}, 0x200000")
    e("s_cbranch_scc1 L_polled")
    e("s_cbranch_vccnz L_poll")
    e("L_polled:")
    for j in range(4): e(f"v_add_f32 v{vX+j}, v{vX+j}, v{vX+4+j}")
    for j in range(4): e(f"v_add_f32 v{vX+8+j}, v{vX+8+j}, v{vX+12+j}")
    for j in range(4): e(f"v_add_f32 v{vX+j}, v{vX+j}, v{vX+8+j}")
    e("s_nop 1")
    for j in range(4): e(f"v_add_f32_dpp v{vX+j}, v{vX+j}, v{vX+j} row_ror:8 row_mask:0xf bank_mask:0xf")
    for j in range(4): e(f"v_mov_b32 v{vX+4+j}, v{vX+j}")
    e("s_nop 1")
    for j in range(4): e(f"v_permlane16_swap_b32 v{vX+j}, v{vX+4+j}")
    for j in range(4): e(f"v_add_f32 v{vX+j}, v{vX+j}, v{vX+4+j}")
    for j in range(4): e(f"v_mov_b32 v{vX+4+j}, v{vX+j}")
    e("s_nop 1")
    for j in range(4): e(f"v_permlane32_swap_b32 v{vX+j}, v{vX+4+j}")
    for j in range(4): e(f"v_add_f32 v{vX+j}, v{vX+j}, v{vX+4+j}")
    e(f"s_mul_i32 s{sT}, s{sB}, 2560")
    e(f"s_mul_i32 s{sT2}, s{sBr}, 1280")
    e(f"s_add_u32 s{sT}, s{sT}, s{sT2}")
    e(f"s_lshl_b32 s{sT2}, s{sH}, 6")
    e(f"s_add_u32 s{sT}, s{sT}, s{sT2}")
    e(f"v_cvt_pk_bf16_f32 v{vX}, v{vX}, v{vX+1}")
    e(f"v_cvt_pk_bf16_f32 v{vX+1}, v{vX+2}, v{vX+3}")
    e(f"v_lshlrev_b32 v{vT0}, 3, v{vLane}")
    e("s_mov_b64 exec, 0xff")
    e(f"buffer_store_dwordx2 v[{vX}:{vX+1}], v{vT0}, {srd(sOut)}, s{sT} offen")
    e("s_mov_b64 exec, -1")
    stamp(6)
    e("L_fin:")
    if stamps:
        e("s_waitcnt vmcnt(0) lgkmcnt(0)")
        e(f"s_memrealtime s[{sSt+14}:{sSt+15}]")
        e(f"s_getreg_b32 s{sT3}, hwreg(HW_REG_XCC_ID)")
        e(f"s_add_u32 s{sIn}, s28, 0x100000")
        e(f"s_addc_u32 s{sIn+1}, s29, 0")
        e(f"s_mov_b32 s{sIn+2}, 0x20000")
        e(f"s_lshl_b32 s{sT}, s2, 2")
        e(f"s_add_u32 s{sT}, s{sT}, s{sW}")
        e(f"s_lshl_b32 s{sT}, s{sT}, 7")
        e("s_waitcnt lgkmcnt(0)")
        e(f"v_mov_b32 v{vT0}, 0")
        e("s_mov_b64 exec, 1")
        for i in range(8):
            e(f"v_mov_b32 v{vX+2*i}, s{sSt+2*i}")
            e(f"v_mov_b32 v{vX+2*i+1}, s{sSt+2*i+1}")
        e(f"v_mov_b32 v{vX+16}, s{sT3}")
        for i in range(4):
            e(f"buffer_store_dwordx4 {vr(vX+4*i)}, v{vT0}, {srd(sIn)}, s{sT} offen offset:{16*i}")
        e(f"buffer_store_dword v{vX+16}, v{vT0}, {srd(sIn)}, s{sT} offen offset:64")
    e("L_end:")
    e("s_endpgm")
    e('.section .rodata,"a"')
    e(".p2align 6")
    e(f".amdhsa_kernel {KNAME}")
    e(f"  .amdhsa_next_free_vgpr {ACC_OFF + NA}")
    e("  .amdhsa_next_free_sgpr 102")
    e(f"  .amdhsa_accum_offset {ACC_OFF}")
    e("  .amdhsa_group_segment_fixed_size 0")
    e("  .amdhsa_kernarg_size 104")
    e("  .amdhsa_user_sgpr_count 2")
    e("  .amdhsa_user_sgpr_kernarg_segment_ptr 1")
    e("  .amdhsa_system_sgpr_workgroup_id_x 1")
    e("  .amdhsa_float_denorm_mode_32 3")
    e(".end_amdhsa_kernel")
    return "\n".join(o) + "\n"

if __name__ == "__main__":
    cfg = eval("dict(" + (sys.argv[2] if len(sys.argv) > 2 else "") + ")")
    open(sys.argv[1], "w").write(gen(**cfg))
```

```python
import sys, math, struct
KNAME = "concat_heads__gqa_block_cached__gqa_block_cached__decode_kernel"

HEADER = """; Kernarg layout for this problem (104 bytes, ptrs only, base s[0:1]):
;
"""

def f2u(x):
    return struct.unpack("<I", struct.pack("<f", x))[0]

class VM:
    def __init__(self, e): self.e = e; self.ops = []
    def issue(self, tag):
        self.ops.append(tag); assert len(self.ops) <= 63, len(self.ops)
    def wait(self, tag):
        i = max(k for k, t in enumerate(self.ops) if t == tag)
        n = len(self.ops) - 1 - i
        self.e(f"s_waitcnt vmcnt({n})")
        self.ops = self.ops[i+1:]
    def room(self): return 63 - len(self.ops)

def gen(polKV="nt", polW="nt", polWo=None, layout="fine", F=4, D=16, W=16, Wodd=None, stamps=0, hmap=0,
        pols=None, womode="burst", wo0=1, ilv=(5, 2), Wv=None):
    o = []
    def e(s): o.append(s)
    if polWo is None: polWo = polW
    SUB = D // 16
    NIT = 16 // SUB
    L_Q = 0
    L_O = 2048
    L_ML = 4096
    L_OUT = 4224
    L_S = 4224 + 10240
    LDS = L_S + 16384 + 256
    sO = 14
    sW, sH, sB, sBr, sG, sWoIt = 30, 31, 32, 33, 34, 35
    sK, sWq, sWo, sX, sIn, sDbg, sOut = 36, 40, 44, 48, 52, 56, 60
    sV = 64
    sIt, sOff, sT, sT2, sT3, sCons, sSpin = 66, 67, 68, 69, 70, 71, 72
    sM = 74
    sSt = 82
    def srd(b): return f"s[{b}:{b+3}]"
    vLane, vOffV, vOffW, vC, vMc, vT0, vT1, vT2, vT3 = 1, 2, 3, 4, 5, 6, 7, 8, 9
    vMask = 10
    vSelE = 14
    vSelO = 18
    vS, vP, vMax, vL, vSn, vFlag, vLdsS, vLdsA = 22, 23, 24, 25, 26, 27, 28, 29
    vA = 32
    vAcc = 40
    vQ = 44
    vD = 60
    vOAcc = 44
    vX = 76
    vML = 108
    vOffC = 116
    vRing = 120
    NV = vRing + 4 * D
    ACC_OFF = NV
    NA = 160
    def vr(b, n=4): return f"v[{b}:{b+n-1}]"
    def ar(b, n=4): return f"a[{b}:{b+n-1}]"
    def stamp(i):
        if stamps: e(f"s_memrealtime s[{sSt+2*i}:{sSt+2*i+1}]")
    if layout == "chunk": Fe, wbase, step = D, 262144, D * 1024
    elif layout == "inter": Fe, wbase, step = D, D * 1024, D * 4096
    else: Fe, wbase, step = F, F * 1024, D * 4096
    def off(s): return (s // Fe) * Fe * 4096 + (s % Fe) * 1024
    his = sorted(set(off(s) // 4096 * 4096 for s in range(D)))
    hs = his[1] - his[0]
    assert his == [k * hs for k in range(len(his))]
    ns = min(len(his), 8); nv = len(his) // ns
    assert nv <= 4
    def soffs():
        e(f"s_mov_b32 s{sO}, s{sOff}")
        for i in range(1, ns): e(f"s_add_u32 s{sO+i}, s{sOff}, {i*nv*hs}")
    def ringload(s, pol=None):
        if pol is None: pol = polKV
        k = his.index(off(s) // 4096 * 4096)
        e(f"buffer_load_dwordx4 {vr(vRing+4*s)}, v{vOffC+k%nv}, {srd(sK)}, s{sO+k//nv} offen offset:{off(s)%4096} {pol}")
    def woload(r):
        e(f"buffer_load_dwordx4 {ar(4*r)}, v{vOffW}, {srd(sWo)}, s{sT2} offen offset:{(r%5)*256} {polWo}")
        if r % 5 == 4 and r < 39: e(f"s_add_u32 s{sT2}, s{sT2}, 1280")

    e(HEADER.rstrip("\n"))
    e(f"; @launch grid=(256,1,1) block=(256,1,1) lds={LDS}")
    e('.amdgcn_target "amdgcn-amd-amdhsa--gfx950"')
    e(".text")
    e(f".globl {KNAME}")
    e(".p2align 8")
    e(f".type {KNAME},@function")
    e(f"{KNAME}:")
    stamp(0)
    e("s_cmp_ge_u32 s2, 256")
    e("s_cbranch_scc1 L_end")
    e("s_load_dwordx16 s[4:19], s[0:1], 0")
    e("s_load_dwordx8 s[20:27], s[0:1], 64")
    e("s_load_dwordx2 s[28:29], s[0:1], 96")
    e(f"v_lshrrev_b32 v{vT0}, 6, v0")
    e(f"v_and_b32 v{vLane}, 63, v0")
    e(f"v_readfirstlane_b32 s{sW}, v{vT0}")
    if hmap == 0:
        e(f"s_and_b32 s{sH}, s2, 7")
        e(f"s_lshr_b32 s{sT}, s2, 5")
        e(f"s_lshr_b32 s{sBr}, s{sT}, 2")
        e(f"s_and_b32 s{sT}, s{sT}, 3")
        e(f"s_lshl_b32 s{sT}, s{sT}, 3")
        e(f"s_add_u32 s{sH}, s{sH}, s{sT}")
    else:
        e(f"s_and_b32 s{sH}, s2, 3")
        e(f"s_lshl_b32 s{sH}, s{sH}, 3")
        e(f"s_lshr_b32 s{sT}, s2, 5")
        e(f"s_add_u32 s{sH}, s{sH}, s{sT}")
        e(f"s_bfe_u32 s{sBr}, s2, 0x10002")
    e(f"s_lshr_b32 s{sB}, s2, 3")
    e(f"s_and_b32 s{sB}, s{sB}, 3")
    e(f"s_lshl_b32 s{sG}, s{sBr}, 2")
    e(f"s_add_u32 s{sG}, s{sG}, s{sB}")
    e(f"v_lshrrev_b32 v{vT0}, 4, v{vLane}")
    e(f"v_and_b32 v{vT1}, 15, v{vLane}")
    e(f"v_mul_u32_u24 v{vT2}, 80, v{vT0}")
    e(f"v_lshlrev_b32 v{vT3}, 4, v{vT1}")
    e(f"v_mul_u32_u24 v{vOffW}, {40*8192}, v{vT0}")
    e(f"v_add_u32 v{vOffW}, v{vOffW}, v{vT3}")
    e(f"v_lshlrev_b32 v{vOffV}, 4, v{vLane}")
    e(f"v_lshrrev_b32 v{vOffC}, 2, v{vT1}")
    e(f"v_lshlrev_b32 v{vOffC}, 8, v{vOffC}")
    e(f"v_lshl_add_u32 v{vOffC}, v{vT0}, 6, v{vOffC}")
    e(f"v_and_b32 v{vS}, 3, v{vLane}")
    e(f"v_lshl_add_u32 v{vOffC}, v{vS}, 4, v{vOffC}")
    for j in range(1, nv): e(f"v_add_u32 v{vOffC+j}, {j*hs}, v{vOffC}")
    e(f"s_lshl_b32 s{sT}, s{sB}, 5")
    e(f"s_add_u32 s{sT}, s{sT}, s{sH}")
    e(f"s_lshl_b32 s{sT}, s{sT}, 20")
    e(f"s_mul_i32 s{sT2}, s{sB}, 1280")
    e(f"s_lshl_b32 s{sT3}, s{sH}, 8")
    e(f"s_mul_i32 s{sOff}, s{sW}, {wbase}")
    e(f"s_mov_b32 s{sX+2}, 1280")
    e(f"s_mov_b32 s{sX+3}, 0x20000")
    e(f"s_sub_u32 s{sWq+2}, {640*8192}, s{sT3}")
    e(f"s_mov_b32 s{sWq+3}, 0x20000")
    e(f"s_mov_b32 s{sK+2}, 0x100000")
    e(f"s_mov_b32 s{sK+3}, 0x20000")
    e(f"s_mul_i32 s{sSpin}, s{sW}, 320")
    e(f"s_cmp_eq_u32 s{sBr}, 0")
    e("s_waitcnt lgkmcnt(0)")
    e("s_cselect_b64 s[4:5], s[4:5], s[14:15]")
    e("s_cselect_b64 s[10:11], s[10:11], s[20:21]")
    e("s_cselect_b64 s[6:7], s[6:7], s[16:17]")
    e("s_cselect_b64 s[8:9], s[8:9], s[18:19]")
    e("s_cselect_b64 s[12:13], s[12:13], s[22:23]")
    e(f"s_add_u32 s{sX}, s4, s{sT2}")
    e(f"s_addc_u32 s{sX+1}, s5, 0")
    e(f"s_add_u32 s{sWq}, s10, s{sT3}")
    e(f"s_addc_u32 s{sWq+1}, s11, 0")
    vm = VM(e)
    for i in range(5):
        e(f"buffer_load_dwordx4 {vr(vX+4*i)}, v{vT2}, {srd(sX)}, s{sSpin} offen offset:{16*i}"); vm.issue("x")
    e(f"s_mul_i32 s{sT2}, s{sW}, {160*8192}")
    e(f"s_add_u32 s{sK}, s6, s{sT}")
    e(f"s_addc_u32 s{sK+1}, s7, 0")
    e(f"s_add_u32 s{sV}, s8, s{sT}")
    e(f"s_addc_u32 s{sV+1}, s9, 0")
    soffs()
    nk = 0
    def kpre():
        nonlocal nk
        ringload(nk); vm.issue(f"k{nk}"); nk += 1
    a, b = ilv
    r = 0
    KFIRST = min(D, 18)
    while r < 40:
        for _ in range(a):
            if r < 40:
                e(f"buffer_load_dwordx4 {ar(4*r)}, v{vOffW}, {srd(sWq)}, s{sT2} offen {polW}"); vm.issue(f"wq{r}")
                if r < 39: e(f"s_add_u32 s{sT2}, s{sT2}, 8192")
                r += 1
        for _ in range(b):
            if nk < KFIRST: kpre()
    while nk < KFIRST: kpre()
    stamp(1)
    e(f"s_mul_i32 s{sT}, s{sH}, 163840")
    e(f"s_add_u32 s{sWo}, s12, s{sT}")
    e(f"s_addc_u32 s{sWo+1}, s13, 0")
    e(f"s_mov_b32 s{sWo+2}, 163840")
    e(f"s_mov_b32 s{sWo+3}, 0x20000")
    e(f"s_mul_i32 s{sT}, s{sG}, {20*4096}")
    e(f"s_add_u32 s{sIn}, s28, s{sT}")
    e(f"s_addc_u32 s{sIn+1}, s29, 0")
    e(f"s_mov_b32 s{sIn+2}, {20*4096}")
    e(f"s_mov_b32 s{sIn+3}, 0x20000")
    e(f"s_mov_b32 s{sDbg}, s26")
    e(f"s_mov_b32 s{sDbg+1}, s27")
    e(f"s_mov_b32 s{sDbg+2}, 256")
    e(f"s_mov_b32 s{sDbg+3}, 0x20000")
    e(f"s_mov_b32 s{sOut}, s24")
    e(f"s_mov_b32 s{sOut+1}, s25")
    e(f"s_mov_b32 s{sOut+2}, 10240")
    e(f"s_mov_b32 s{sOut+3}, 0x20000")
    e(f"s_cmp_lt_u32 s{sH}, 20")
    e(f"s_cselect_b32 s{sCons}, 1, 0")
    e(f"s_cmp_eq_u32 s{sW}, 3")
    e(f"s_cselect_b32 s{sCons}, s{sCons}, 0")
    e(f"s_add_u32 s{sWoIt}, s{sW}, {wo0}")
    e(f"v_mul_u32_u24 v{vOffW}, {8*1280}, v{vT0}")
    e(f"v_add_u32 v{vOffW}, v{vOffW}, v{vT3}")
    e(f"v_and_b32 v{vS}, 1, v{vLane}")
    e(f"v_cmp_eq_u32 vcc, 1, v{vS}")
    e(f"v_mov_b32 v{vT1}, 0x0000ffff")
    e(f"v_mov_b32 v{vT2}, 0xffff0000")
    e(f"v_cndmask_b32 v{vP}, v{vT1}, v{vT2}, vcc")
    e(f"v_mov_b32 v{vT1}, 0x0c0c0100")
    e(f"v_mov_b32 v{vT2}, 0x01000c0c")
    e(f"v_cndmask_b32 v{vMax}, v{vT1}, v{vT2}, vcc")
    e(f"v_mov_b32 v{vT1}, 0x0c0c0302")
    e(f"v_mov_b32 v{vT2}, 0x03020c0c")
    e(f"v_cndmask_b32 v{vL}, v{vT1}, v{vT2}, vcc")
    e(f"v_mov_b32 v{vT1}, 0x0c0c0c0c")
    for i in range(4):
        e(f"s_mov_b32 s{sM+2*i}, {hex(0x00030003 << (2*i))}")
        e(f"s_mov_b32 s{sM+2*i+1}, {hex(0x00030003 << (2*i))}")
    for i in range(4):
        m = f"s[{sM+2*i}:{sM+2*i+1}]"
        e(f"v_cndmask_b32 v{vMask+i}, 0, v{vP}, {m}")
        e(f"v_cndmask_b32 v{vSelE+i}, v{vT1}, v{vMax}, {m}")
        e(f"v_cndmask_b32 v{vSelO+i}, v{vT1}, v{vL}, {m}")
    for t in range(4):
        e(f"s_mov_b32 s{sM+2*t}, {hex(0x11111111 << t)}")
        e(f"s_mov_b32 s{sM+2*t+1}, {hex(0x11111111 << t)}")
    for i in range(4): e(f"v_mov_b32 v{vAcc+i}, 0")
    e(f"v_mov_b32 v{vMax}, 0xff800000")
    e(f"v_mov_b32 v{vL}, 0")
    e(f"v_mov_b32 v{vC}, {hex(f2u(128 ** -0.5 * math.log2(math.e)))}")
    e(f"s_lshl_b32 s{sT}, s{sW}, 12")
    e(f"s_add_u32 s{sT}, s{sT}, {L_S}")
    e(f"v_lshl_add_u32 v{vLdsS}, v{vLane}, 2, s{sT}")
    e(f"s_lshl_b32 s{sT}, s{sW}, 9")
    e(f"v_lshlrev_b32 v{vLdsA}, 1, v{vT3}")
    e(f"v_lshl_add_u32 v{vLdsA}, v{vT0}, 4, v{vLdsA}")
    e(f"v_add_u32 v{vLdsA}, s{sT}, v{vLdsA}")
    e(f"s_mul_i32 s{sT2}, s{sW}, {32*1280}")
    def xsel(r, dst):
        sel = vSelE if r % 2 == 0 else vSelO
        for i in range(4):
            e(f"v_perm_b32 v{dst+i}, v{vX+r//2}, v{vX+r//2}, v{sel+i}")
    vm.wait("x")
    xsel(0, vA)
    for r in range(40):
        if r < 39: xsel(r+1, vA + 4*((r+1) % 2))
        else: e("s_nop 1")
        vm.wait(f"wq{r}")
        c = "0" if r == 0 else vr(vD)
        e(f"v_mfma_f32_16x16x32_bf16 {vr(vD)}, {vr(vA+4*(r%2))}, {ar(4*r)}, {c}")
        if nk < D and vm.room() > 0: kpre()
        if womode == "early":
            woload(r); vm.issue(f"wo{r}")
    assert nk == D
    stamp(2)
    e(f"s_cmp_eq_u32 s{sCons}, 0")
    e("s_cbranch_scc1 L_noclear")
    assert vm.room() >= 4
    e(f"s_lshl_b32 s{sT}, s{sH}, 12")
    for i in range(4): e(f"v_mov_b32 v{vX+i}, -1")
    for i in range(4):
        e(f"buffer_store_dwordx4 {vr(vX)}, v{vOffV}, {srd(sIn)}, s{sT} offen offset:{1024*i} sc0 sc1")
    e("L_noclear:")
    e("s_nop 7")
    e("s_mov_b32 exec_hi, 0")
    e(f"ds_write_b128 v{vLdsA}, {vr(vD)} offset:{L_Q}")
    e("s_mov_b32 exec_hi, -1")
    e(f"v_lshrrev_b32 v{vT1}, 2, v{vLane}")
    e(f"v_lshlrev_b32 v{vT1}, 5, v{vT1}")
    e("s_waitcnt lgkmcnt(0)")
    e("s_barrier")
    for w in range(4):
        e(f"ds_read_b128 {vr(vX+8*w)}, v{vT1} offset:{L_Q + 512*w}")
        e(f"ds_read_b128 {vr(vX+8*w+4)}, v{vT1} offset:{L_Q + 512*w + 16}")
    e("s_waitcnt lgkmcnt(4)")
    for j in range(8): e(f"v_add_f32 v{vX+j}, v{vX+j}, v{vX+8+j}")
    e("s_waitcnt lgkmcnt(0)")
    for j in range(8): e(f"v_add_f32 v{vX+16+j}, v{vX+16+j}, v{vX+24+j}")
    for j in range(8): e(f"v_add_f32 v{vX+j}, v{vX+j}, v{vX+16+j}")
    for i in range(4): e(f"v_cvt_pk_bf16_f32 v{vX+8+i}, v{vX+2*i}, v{vX+2*i+1}")
    for t in range(4):
        for i in range(4):
            e(f"v_cndmask_b32 v{vQ+4*t+i}, 0, v{vX+8+i}, s[{sM+2*t}:{sM+2*t+1}]")
    e(f"s_mov_b32 s{sIt}, 0")
    stamp(3)

    def kloop(tag, Wn, pol=None):
        e(f"L_k{tag}:")
        e(f"s_add_u32 s{sOff}, s{sOff}, {step}")
        if womode == "burst":
            e(f"s_cmp_lg_u32 s{sIt}, s{sWoIt}")
            e(f"s_cbranch_scc1 L_k{tag}_nowo")
            if max(Wn, 1) > 23 or wo0 == 0: e("s_waitcnt vmcnt(23)")
            for r in range(40): woload(r)
            e(f"L_k{tag}_nowo:")
        e(f"s_cmp_lg_u32 s{sIt}, {NIT-1}")
        e(f"s_cbranch_scc1 L_k{tag}_go")
        e(f"s_mov_b32 s{sK}, s{sV}")
        e(f"s_mov_b32 s{sK+1}, s{sV+1}")
        e(f"s_mul_i32 s{sOff}, s{sW}, {wbase}")
        e(f"v_mov_b32 v{vOffC}, v{vOffV}")
        for j in range(1, nv): e(f"v_add_u32 v{vOffC+j}, {j*hs}, v{vOffV}")
        e(f"s_cmp_eq_u32 s{sCons}, 0")
        e(f"s_cbranch_scc1 L_k{tag}_go")
        e(f"s_lshl_b32 s{sT}, s{sG}, 2")
        e(f"v_mov_b32 v{vT0}, 1")
        e("s_mov_b64 exec, 1")
        e(f"buffer_atomic_add v{vT0}, off, {srd(sDbg)}, s{sT} sc1")
        e("s_mov_b64 exec, -1")
        e(f"L_k{tag}_go:")
        soffs()
        e(f"s_add_u32 s{sIt}, s{sIt}, 1")
        for u in range(SUB):
            for s16 in range(16):
                s = u * 16 + s16
                b, t = s16 // 4, s16 % 4
                e(f"s_waitcnt vmcnt({Wn-1})")
                c = "0" if t == 0 else vr(vD+4*b)
                e(f"v_mfma_f32_16x16x32_bf16 {vr(vD+4*b)}, {vr(vRing+4*s)}, {vr(vQ+4*t)}, {c}")
                ringload(s, pol)
            for r in range(4):
                for k in range(4):
                    cc = (r + k) % 4
                    rot = (4 * (r - cc)) % 16
                    ctl = "quad_perm:[0,1,2,3]" if rot == 0 else f"row_ror:{rot}"
                    if k == 0:
                        e(f"v_mov_b32_dpp v{vS}, v{vD+4*r+cc} {ctl} row_mask:0xf bank_mask:{hex(1<<r)}")
                    else:
                        e(f"v_add_f32_dpp v{vS}, v{vD+4*r+cc}, v{vS} {ctl} row_mask:0xf bank_mask:{hex(1<<r)}")
            e(f"v_max_f32 v{vMax}, v{vMax}, v{vS}")
            e(f"ds_write_b32 v{vLdsS}, v{vS} offset:{256*u}")
        e(f"v_add_u32 v{vLdsS}, {256*SUB}, v{vLdsS}")
        e(f"s_cmp_lt_u32 s{sIt}, {NIT}")
        e(f"s_cbranch_scc1 L_k{tag}")

    def transition():
        e(f"v_subrev_u32 v{vLdsS}, {256*16}, v{vLdsS}")
        e("s_waitcnt lgkmcnt(0)")
        e(f"ds_read_b32 v{vSn}, v{vLdsS}")
        for n in (8, 4, 2, 1):
            e("s_nop 1")
            e(f"v_max_f32_dpp v{vMax}, v{vMax}, v{vMax} row_ror:{n} row_mask:0xf bank_mask:0xf")
        e(f"v_mov_b32 v{vT0}, v{vMax}")
        e("s_nop 1")
        e(f"v_permlane16_swap_b32 v{vMax}, v{vT0}")
        e("s_nop 0")
        e(f"v_max_f32 v{vMax}, v{vMax}, v{vT0}")
        e(f"v_mov_b32 v{vT0}, v{vMax}")
        e("s_nop 1")
        e(f"v_permlane32_swap_b32 v{vMax}, v{vT0}")
        e("s_nop 0")
        e(f"v_max_f32 v{vMax}, v{vMax}, v{vT0}")
        e(f"v_mul_f32 v{vMc}, v{vMax}, v{vC}")
        e(f"s_mov_b32 s{sIt}, 0")

    def vloop(tag, Wn, pol=None):
        def asel(s):
            dst = vA + 4 * (s % 2)
            for i in range(4):
                e(f"v_and_b32_dpp v{dst+i}, v{vP}, v{vMask+i} row_newbcast:{s} row_mask:0xf bank_mask:0xf")
        e(f"L_v{tag}:")
        e(f"s_add_u32 s{sOff}, s{sOff}, {step}")
        e(f"s_cmp_lg_u32 s{sIt}, {NIT-1}")
        e(f"s_cbranch_scc1 L_v{tag}_go")
        e(f"s_mov_b32 s{sK+2}, 0")
        e(f"s_lshl_b32 s{sT}, s{sG}, 2")
        e(f"buffer_load_dword v{vFlag}, off, {srd(sDbg)}, s{sT} sc1")
        e(f"L_v{tag}_go:")
        soffs()
        e(f"s_add_u32 s{sIt}, s{sIt}, 1")
        for u in range(SUB):
            e("s_waitcnt lgkmcnt(0)")
            e(f"v_fma_f32 v{vT0}, v{vSn}, v{vC}, -v{vMc}")
            e(f"v_add_u32 v{vLdsS}, 256, v{vLdsS}")
            e(f"v_exp_f32 v{vT0}, v{vT0}")
            e(f"ds_read_b32 v{vSn}, v{vLdsS}")
            e(f"v_cvt_pk_bf16_f32 v{vP}, v{vT0}, v{vT0}")
            e(f"v_add_f32 v{vL}, v{vL}, v{vT0}")
            e("s_nop 0")
            asel(0)
            for s16 in range(16):
                s = u * 16 + s16
                if s16 < 15: asel(s16+1)
                else: e("s_nop 0")
                e(f"s_waitcnt vmcnt({Wn-1})")
                e(f"v_mfma_f32_16x16x32_bf16 {vr(vAcc)}, {vr(vA+4*(s16%2))}, {vr(vRing+4*s)}, {vr(vAcc)}")
                ringload(s, pol)
        e(f"s_cmp_lt_u32 s{sIt}, {NIT}")
        e(f"s_cbranch_scc1 L_v{tag}")

    if Wv is None: Wv = W
    if pols is not None:
        e(f"s_cmp_eq_u32 s{sBr}, 1")
        e("s_cbranch_scc1 L_odd")
        kloop("e", W, pols[0]); transition(); stamp(4); vloop("e", Wv, pols[1])
        e("s_branch L_tail")
        e("L_odd:")
        kloop("o", W, pols[2]); transition(); stamp(4); vloop("o", Wv, pols[3])
        e("L_tail:")
    elif Wodd is None:
        kloop("", W); transition(); stamp(4); vloop("", Wv)
    else:
        e(f"s_getreg_b32 s{sT}, hwreg(HW_REG_XCC_ID)")
        e(f"s_bitcmp1_b32 s{sT}, 0")
        e("s_cbranch_scc1 L_odd")
        kloop("e", W); transition(); stamp(4); vloop("e", W)
        e("s_branch L_tail")
        e("L_odd:")
        kloop("o", Wodd); transition(); stamp(4); vloop("o", Wodd)
        e("L_tail:")
    stamp(5)
    for n in (8, 4, 2, 1):
        e(f"v_add_f32_dpp v{vL}, v{vL}, v{vL} row_ror:{n} row_mask:0xf bank_mask:0xf")
        e("s_nop 1")
    e(f"v_mov_b32 v{vT0}, v{vL}")
    e("s_mov_b32 exec_hi, 0")
    e(f"ds_write_b128 v{vLdsA}, {vr(vAcc)} offset:{L_O}")
    e("s_mov_b32 exec_hi, -1")
    e(f"v_permlane16_swap_b32 v{vL}, v{vT0}")
    e(f"s_lshl_b32 s{sT}, s{sW}, 3")
    e(f"v_add_f32 v{vL}, v{vL}, v{vT0}")
    e(f"v_mov_b32 v{vT1}, s{sT}")
    e(f"v_mov_b32 v{vT0}, v{vL}")
    e("s_nop 1")
    e(f"v_permlane32_swap_b32 v{vL}, v{vT0}")
    e(f"v_mov_b32 v{vT2}, v{vMc}")
    e(f"v_add_f32 v{vT3}, v{vL}, v{vT0}")
    e(f"ds_write_b64 v{vT1}, v[{vT2}:{vT3}] offset:{L_ML}")
    e(f"s_cmp_lg_u32 s{sW}, 0")
    e("s_cbranch_scc1 L_flag_ok")
    e(f"s_waitcnt vmcnt({D})")
    e(f"s_mov_b32 s{sSpin}, 0")
    e("L_flag_chk:")
    e(f"v_readfirstlane_b32 s{sT}, v{vFlag}")
    e(f"s_add_u32 s{sSpin}, s{sSpin}, 1")
    e(f"s_cmp_ge_u32 s{sT}, 20")
    e("s_cbranch_scc1 L_flag_ok")
    e(f"s_cmp_ge_u32 s{sSpin}, 0x400000")
    e("s_cbranch_scc1 L_flag_ok")
    e(f"s_lshl_b32 s{sT}, s{sG}, 2")
    e(f"buffer_load_dword v{vFlag}, off, {srd(sDbg)}, s{sT} sc1")
    e("s_waitcnt vmcnt(0)")
    e("s_branch L_flag_chk")
    e("L_flag_ok:")
    e(f"v_lshrrev_b32 v{vT0}, 4, v{vLane}")
    e(f"s_lshl_b32 s{sT}, s{sW}, 7")
    e(f"v_lshl_add_u32 v{vT1}, v{vT0}, 5, s{sT}")
    e(f"v_mov_b32 v{vT0}, 0")
    e("s_waitcnt lgkmcnt(0)")
    e("s_barrier")
    e(f"ds_read_b128 {vr(vML)}, v{vT0} offset:{L_ML}")
    e(f"ds_read_b128 {vr(vML+4)}, v{vT0} offset:{L_ML+16}")
    for w in range(4):
        e(f"ds_read_b128 {vr(vX+8*w)}, v{vT1} offset:{L_O + 512*w}")
        e(f"ds_read_b128 {vr(vX+8*w+4)}, v{vT1} offset:{L_O + 512*w + 16}")
    e("s_waitcnt lgkmcnt(8)")
    e(f"v_max3_f32 v{vT0}, v{vML}, v{vML+2}, v{vML+4}")
    e(f"v_max_f32 v{vT0}, v{vT0}, v{vML+6}")
    for w in range(4): e(f"v_sub_f32 v{vML+2*w}, v{vML+2*w}, v{vT0}")
    for w in range(4): e(f"v_exp_f32 v{vML+2*w}, v{vML+2*w}")
    e("s_nop 0")
    e(f"v_mul_f32 v{vT0}, v{vML}, v{vML+1}")
    for w in range(1, 4): e(f"v_fmac_f32 v{vT0}, v{vML+2*w}, v{vML+2*w+1}")
    e(f"v_rcp_f32 v{vT0}, v{vT0}")
    e("s_waitcnt lgkmcnt(0)")
    for w in range(4): e(f"v_mul_f32 v{vML+2*w}, v{vML+2*w}, v{vT0}")
    for j in range(8): e(f"v_mul_f32 v{vX+j}, v{vX+j}, v{vML}")
    for w in range(1, 4):
        for j in range(8): e(f"v_fmac_f32 v{vX+j}, v{vX+8*w+j}, v{vML+2*w}")
    for i in range(4): e(f"v_cvt_pk_bf16_f32 v{vX+i}, v{vX+2*i}, v{vX+2*i+1}")
    xsel(0, vA)
    for rr in range(8):
        if rr < 7: xsel(rr+1, vA + 4*((rr+1) % 2))
        else: e("s_nop 0")
        if rr == 0: e("s_nop 0")
        for T in range(5):
            c = "0" if rr == 0 else vr(vOAcc+4*T)
            e(f"v_mfma_f32_16x16x32_bf16 {vr(vOAcc+4*T)}, {vr(vA+4*(rr%2))}, {ar(4*(rr*5+T))}, {c}")
    e(f"s_lshl_b32 s{sT}, s{sW}, 11")
    e(f"v_add_u32 v{vT0}, s{sT}, v{vLdsA}")
    e(f"v_lshlrev_b32 v{vT1}, 4, v0")
    e(f"v_lshrrev_b32 v{vT2}, 3, v0")
    e(f"v_lshlrev_b32 v{vT2}, 12, v{vT2}")
    e(f"v_and_b32 v{vT3}, 7, v0")
    e(f"v_lshl_add_u32 v{vT2}, v{vT3}, 4, v{vT2}")
    e(f"s_lshl_b32 s{sT2}, s{sH}, 7")
    e("s_mov_b32 exec_hi, 0")
    for T in range(5):
        e(f"ds_write_b128 v{vT0}, {vr(vOAcc+4*T)} offset:{L_OUT + 512*T}")
    e("s_mov_b32 exec_hi, -1")
    e("s_waitcnt lgkmcnt(0)")
    e("s_barrier")
    e(f"s_cmp_eq_u32 s{sW}, 3")
    e("s_cbranch_scc1 L_consume")
    for w in range(4):
        e(f"ds_read_b128 {vr(vX+4*w)}, v{vT1} offset:{L_OUT + 2560*w}")
    e(f"v_mov_b32 v{vT3}, -2")
    e("s_waitcnt lgkmcnt(2)")
    for j in range(4): e(f"v_add_f32 v{vX+j}, v{vX+j}, v{vX+4+j}")
    e("s_waitcnt lgkmcnt(0)")
    for j in range(4): e(f"v_add_f32 v{vX+8+j}, v{vX+8+j}, v{vX+12+j}")
    for j in range(4): e(f"v_add_f32 v{vX+j}, v{vX+j}, v{vX+8+j}")
    for j in range(4): e(f"v_min_u32 v{vX+j}, v{vX+j}, v{vT3}")
    e(f"buffer_store_dwordx4 {vr(vX)}, v{vT2}, {srd(sIn)}, s{sT2} offen sc0 sc1")
    stamp(6)
    e("s_branch L_fin")
    e("L_consume:")
    e(f"s_cmp_eq_u32 s{sCons}, 0")
    e("s_cbranch_scc1 L_fin")
    e(f"s_lshl_b32 s{sT}, s{sH}, 12")
    e(f"s_mov_b32 s{sSpin}, 0")
    e("L_poll:")
    for i in range(4):
        e(f"buffer_load_dwordx4 {vr(vX+4*i)}, v{vOffV}, {srd(sIn)}, s{sT} offen offset:{1024*i} sc0 sc1")
    e(f"s_add_u32 s{sSpin}, s{sSpin}, 1")
    e("s_waitcnt vmcnt(0)")
    e(f"v_max3_u32 v{vT0}, v{vX}, v{vX+1}, v{vX+2}")
    e(f"v_max3_u32 v{vT1}, v{vX+3}, v{vX+4}, v{vX+5}")
    e(f"v_max3_u32 v{vT2}, v{vX+6}, v{vX+7}, v{vX+8}")
    e(f"v_max3_u32 v{vT3}, v{vX+9}, v{vX+10}, v{vX+11}")
    e(f"v_max3_u32 v{vT0}, v{vT0}, v{vX+12}, v{vX+13}")
    e(f"v_max3_u32 v{vT1}, v{vT1}, v{vX+14}, v{vX+15}")
    e(f"v_max3_u32 v{vT0}, v{vT0}, v{vT2}, v{vT3}")
    e(f"v_max_u32 v{vT0}, v{vT0}, v{vT1}")
    e(f"v_cmp_eq_u32 vcc, -1, v{vT0}")
    e(f"s_cmp_ge_u32 s{sSpin}, 0x200000")
    e("s_cbranch_scc1 L_polled")
    e("s_cbranch_vccnz L_poll")
    e("L_polled:")
    for j in range(4): e(f"v_add_f32 v{vX+j}, v{vX+j}, v{vX+4+j}")
    for j in range(4): e(f"v_add_f32 v{vX+8+j}, v{vX+8+j}, v{vX+12+j}")
    for j in range(4): e(f"v_add_f32 v{vX+j}, v{vX+j}, v{vX+8+j}")
    e("s_nop 1")
    for j in range(4): e(f"v_add_f32_dpp v{vX+j}, v{vX+j}, v{vX+j} row_ror:8 row_mask:0xf bank_mask:0xf")
    for j in range(4): e(f"v_mov_b32 v{vX+4+j}, v{vX+j}")
    e("s_nop 1")
    for j in range(4): e(f"v_permlane16_swap_b32 v{vX+j}, v{vX+4+j}")
    for j in range(4): e(f"v_add_f32 v{vX+j}, v{vX+j}, v{vX+4+j}")
    for j in range(4): e(f"v_mov_b32 v{vX+4+j}, v{vX+j}")
    e("s_nop 1")
    for j in range(4): e(f"v_permlane32_swap_b32 v{vX+j}, v{vX+4+j}")
    for j in range(4): e(f"v_add_f32 v{vX+j}, v{vX+j}, v{vX+4+j}")
    e(f"s_mul_i32 s{sT}, s{sB}, 2560")
    e(f"s_mul_i32 s{sT2}, s{sBr}, 1280")
    e(f"s_add_u32 s{sT}, s{sT}, s{sT2}")
    e(f"s_lshl_b32 s{sT2}, s{sH}, 6")
    e(f"s_add_u32 s{sT}, s{sT}, s{sT2}")
    e(f"v_cvt_pk_bf16_f32 v{vX}, v{vX}, v{vX+1}")
    e(f"v_cvt_pk_bf16_f32 v{vX+1}, v{vX+2}, v{vX+3}")
    e(f"v_lshlrev_b32 v{vT0}, 3, v{vLane}")
    e("s_mov_b64 exec, 0xff")
    e(f"buffer_store_dwordx2 v[{vX}:{vX+1}], v{vT0}, {srd(sOut)}, s{sT} offen")
    e("s_mov_b64 exec, -1")
    stamp(6)
    e("L_fin:")
    if stamps:
        e("s_waitcnt vmcnt(0) lgkmcnt(0)")
        e(f"s_memrealtime s[{sSt+14}:{sSt+15}]")
        e(f"s_getreg_b32 s{sT3}, hwreg(HW_REG_XCC_ID)")
        e(f"s_add_u32 s{sIn}, s28, 0x100000")
        e(f"s_addc_u32 s{sIn+1}, s29, 0")
        e(f"s_mov_b32 s{sIn+2}, 0x20000")
        e(f"s_lshl_b32 s{sT}, s2, 2")
        e(f"s_add_u32 s{sT}, s{sT}, s{sW}")
        e(f"s_lshl_b32 s{sT}, s{sT}, 7")
        e("s_waitcnt lgkmcnt(0)")
        e(f"v_mov_b32 v{vT0}, 0")
        e("s_mov_b64 exec, 1")
        for i in range(8):
            e(f"v_mov_b32 v{vX+2*i}, s{sSt+2*i}")
            e(f"v_mov_b32 v{vX+2*i+1}, s{sSt+2*i+1}")
        e(f"v_mov_b32 v{vX+16}, s{sT3}")
        for i in range(4):
            e(f"buffer_store_dwordx4 {vr(vX+4*i)}, v{vT0}, {srd(sIn)}, s{sT} offen offset:{16*i}")
        e(f"buffer_store_dword v{vX+16}, v{vT0}, {srd(sIn)}, s{sT} offen offset:64")
    e("L_end:")
    e("s_endpgm")
    e('.section .rodata,"a"')
    e(".p2align 6")
    e(f".amdhsa_kernel {KNAME}")
    e(f"  .amdhsa_next_free_vgpr {ACC_OFF + NA}")
    e("  .amdhsa_next_free_sgpr 102")
    e(f"  .amdhsa_accum_offset {ACC_OFF}")
    e("  .amdhsa_group_segment_fixed_size 0")
    e("  .amdhsa_kernarg_size 104")
    e("  .amdhsa_user_sgpr_count 2")
    e("  .amdhsa_user_sgpr_kernarg_segment_ptr 1")
    e("  .amdhsa_system_sgpr_workgroup_id_x 1")
    e("  .amdhsa_float_denorm_mode_32 3")
    e(".end_amdhsa_kernel")
    return "\n".join(o) + "\n"

if __name__ == "__main__":
    cfg = eval("dict(" + (sys.argv[2] if len(sys.argv) > 2 else "") + ")")
    open(sys.argv[1], "w").write(gen(**cfg))
```

```python
import sys, math, struct
KNAME = "concat_heads__gqa_block_cached__gqa_block_cached__decode_kernel"

HEADER = """; Kernarg layout for this problem (104 bytes, ptrs only, base s[0:1]):
;
"""

def f2u(x):
    return struct.unpack("<I", struct.pack("<f", x))[0]

class VM:
    def __init__(self, e): self.e = e; self.ops = []
    def issue(self, tag):
        self.ops.append(tag); assert len(self.ops) <= 63, len(self.ops)
    def wait(self, tag):
        i = max(k for k, t in enumerate(self.ops) if t == tag)
        n = len(self.ops) - 1 - i
        self.e(f"s_waitcnt vmcnt({n})")
        self.ops = self.ops[i+1:]
    def room(self): return 63 - len(self.ops)

def gen(polKV="nt", polW="nt", polWo=None, layout="fine", F=4, D=16, W=16, Wodd=None, stamps=0, hmap=0,
        pols=None, womode="burst", wo0=1, ilv=(5, 2), Wv=None, Wend=None, nend=4, rot=0, kfirst=18, wqrot=0):
    o = []
    def e(s): o.append(s)
    if polWo is None: polWo = polW
    SUB = D // 16
    NIT = 16 // SUB
    L_Q = 0
    L_O = 2048
    L_ML = 4096
    L_OUT = 4224
    L_S = 4224 + 10240
    LDS = L_S + 16384 + 256
    sO = 14
    sW, sH, sB, sBr, sG, sWoIt = 30, 31, 32, 33, 34, 35
    sK, sWq, sWo, sX, sIn, sDbg, sOut = 36, 40, 44, 48, 52, 56, 60
    sV = 64
    sIt, sOff, sT, sT2, sT3, sCons, sSpin, sOff0 = 66, 67, 68, 69, 70, 71, 72, 73
    sM = 74
    sSt = 82
    def srd(b): return f"s[{b}:{b+3}]"
    vLane, vOffV, vOffW, vC, vMc, vT0, vT1, vT2, vT3 = 1, 2, 3, 4, 5, 6, 7, 8, 9
    vMask = 10
    vSelE = 14
    vSelO = 18
    vS, vP, vMax, vL, vSn, vFlag, vLdsS, vLdsA = 22, 23, 24, 25, 26, 27, 28, 29
    vA = 32
    vAcc = 40
    vQ = 44
    vD = 60
    vOAcc = 44
    vX = 76
    vML = 108
    vOffC = 116
    vRing = 120
    NV = vRing + 4 * D
    ACC_OFF = NV
    NA = 160
    def vr(b, n=4): return f"v[{b}:{b+n-1}]"
    def ar(b, n=4): return f"a[{b}:{b+n-1}]"
    def stamp(i):
        if stamps == 1 or (stamps == 2 and i not in (1, 2, 3, 4)): e(f"s_memrealtime s[{sSt+2*i}:{sSt+2*i+1}]")
    def tstamp(i):
        if stamps == 2: e(f"s_memrealtime s[{sSt+2*i}:{sSt+2*i+1}]")
    if layout == "chunk": Fe, wbase, step = D, 262144, D * 1024
    elif layout == "inter": Fe, wbase, step = D, D * 1024, D * 4096
    else: Fe, wbase, step = F, F * 1024, D * 4096
    def off(s): return (s // Fe) * Fe * 4096 + (s % Fe) * 1024
    his = sorted(set(off(s) // 4096 * 4096 for s in range(D)))
    hs = his[1] - his[0]
    assert his == [k * hs for k in range(len(his))]
    ns = min(len(his), 8); nv = len(his) // ns
    assert nv <= 4
    def soffs():
        e(f"s_mov_b32 s{sO}, s{sOff}")
        for i in range(1, ns): e(f"s_add_u32 s{sO+i}, s{sOff}, {i*nv*hs}")
    def ringload(s, pol=None):
        if pol is None: pol = polKV
        k = his.index(off(s) // 4096 * 4096)
        e(f"buffer_load_dwordx4 {vr(vRing+4*s)}, v{vOffC+k%nv}, {srd(sK)}, s{sO+k//nv} offen offset:{off(s)%4096} {pol}")
    def woload(r):
        e(f"buffer_load_dwordx4 {ar(4*r)}, v{vOffW}, {srd(sWo)}, s{sT2} offen offset:{(r%5)*256} {polWo}")
        if r % 5 == 4 and r < 39: e(f"s_add_u32 s{sT2}, s{sT2}, 1280")

    e(HEADER.rstrip("\n"))
    e(f"; @launch grid=(256,1,1) block=(256,1,1) lds={LDS}")
    e('.amdgcn_target "amdgcn-amd-amdhsa--gfx950"')
    e(".text")
    e(f".globl {KNAME}")
    e(".p2align 8")
    e(f".type {KNAME},@function")
    e(f"{KNAME}:")
    stamp(0)
    e("s_cmp_ge_u32 s2, 256")
    e("s_cbranch_scc1 L_end")
    e("s_load_dwordx16 s[4:19], s[0:1], 0")
    e("s_load_dwordx8 s[20:27], s[0:1], 64")
    e("s_load_dwordx2 s[28:29], s[0:1], 96")
    e(f"v_lshrrev_b32 v{vT0}, 6, v0")
    e(f"v_and_b32 v{vLane}, 63, v0")
    e(f"v_readfirstlane_b32 s{sW}, v{vT0}")
    if hmap == 0:
        e(f"s_and_b32 s{sH}, s2, 7")
        e(f"s_lshr_b32 s{sT}, s2, 5")
        e(f"s_lshr_b32 s{sBr}, s{sT}, 2")
        e(f"s_and_b32 s{sT}, s{sT}, 3")
        e(f"s_lshl_b32 s{sT}, s{sT}, 3")
        e(f"s_add_u32 s{sH}, s{sH}, s{sT}")
    elif hmap == 2:
        e(f"s_and_b32 s{sH}, s2, 7")
        e(f"s_lshl_b32 s{sH}, s{sH}, 2")
        e(f"s_bfe_u32 s{sT}, s2, 0x20005")
        e(f"s_add_u32 s{sH}, s{sH}, s{sT}")
        e(f"s_lshr_b32 s{sBr}, s2, 7")
    else:
        e(f"s_and_b32 s{sH}, s2, 3")
        e(f"s_lshl_b32 s{sH}, s{sH}, 3")
        e(f"s_lshr_b32 s{sT}, s2, 5")
        e(f"s_add_u32 s{sH}, s{sH}, s{sT}")
        e(f"s_bfe_u32 s{sBr}, s2, 0x10002")
    e(f"s_lshr_b32 s{sB}, s2, 3")
    e(f"s_and_b32 s{sB}, s{sB}, 3")
    e(f"s_lshl_b32 s{sG}, s{sBr}, 2")
    e(f"s_add_u32 s{sG}, s{sG}, s{sB}")
    e(f"v_lshrrev_b32 v{vT0}, 4, v{vLane}")
    e(f"v_and_b32 v{vT1}, 15, v{vLane}")
    e(f"v_mul_u32_u24 v{vT2}, 80, v{vT0}")
    e(f"v_lshlrev_b32 v{vT3}, 4, v{vT1}")
    e(f"v_mul_u32_u24 v{vOffW}, {40*8192}, v{vT0}")
    e(f"v_add_u32 v{vOffW}, v{vOffW}, v{vT3}")
    e(f"v_lshlrev_b32 v{vOffV}, 4, v{vLane}")
    e(f"v_lshrrev_b32 v{vOffC}, 2, v{vT1}")
    e(f"v_lshlrev_b32 v{vOffC}, 8, v{vOffC}")
    e(f"v_lshl_add_u32 v{vOffC}, v{vT0}, 6, v{vOffC}")
    e(f"v_and_b32 v{vS}, 3, v{vLane}")
    e(f"v_lshl_add_u32 v{vOffC}, v{vS}, 4, v{vOffC}")
    for j in range(1, nv): e(f"v_add_u32 v{vOffC+j}, {j*hs}, v{vOffC}")
    e(f"s_lshl_b32 s{sT}, s{sB}, 5")
    e(f"s_add_u32 s{sT}, s{sT}, s{sH}")
    e(f"s_lshl_b32 s{sT}, s{sT}, 20")
    e(f"s_mul_i32 s{sT2}, s{sB}, 1280")
    e(f"s_lshl_b32 s{sT3}, s{sH}, 8")
    e(f"s_mul_i32 s{sOff0}, s{sW}, {wbase}")
    if rot:
        assert layout != "chunk"
        e(f"s_lshr_b32 s{sOff}, s2, 3")
        e(f"s_mul_i32 s{sOff}, s{sOff}, {rot}")
        e(f"s_add_u32 s{sOff}, s{sOff}, s2")
        e(f"s_and_b32 s{sOff}, s{sOff}, {NIT-1}")
        e(f"s_mul_i32 s{sOff}, s{sOff}, {step}")
        e(f"s_add_u32 s{sOff0}, s{sOff0}, s{sOff}")
    e(f"s_mov_b32 s{sOff}, s{sOff0}")
    e(f"s_mov_b32 s{sX+2}, 1280")
    e(f"s_mov_b32 s{sX+3}, 0x20000")
    e(f"s_sub_u32 s{sWq+2}, {640*8192}, s{sT3}")
    e(f"s_mov_b32 s{sWq+3}, 0x20000")
    e(f"s_mov_b32 s{sK+2}, 0x100000")
    e(f"s_mov_b32 s{sK+3}, 0x20000")
    e(f"s_mul_i32 s{sSpin}, s{sW}, 320")
    e(f"s_cmp_eq_u32 s{sBr}, 0")
    e("s_waitcnt lgkmcnt(0)")
    e("s_cselect_b64 s[4:5], s[4:5], s[14:15]")
    e("s_cselect_b64 s[10:11], s[10:11], s[20:21]")
    e("s_cselect_b64 s[6:7], s[6:7], s[16:17]")
    e("s_cselect_b64 s[8:9], s[8:9], s[18:19]")
    e("s_cselect_b64 s[12:13], s[12:13], s[22:23]")
    e(f"s_add_u32 s{sX}, s4, s{sT2}")
    e(f"s_addc_u32 s{sX+1}, s5, 0")
    e(f"s_add_u32 s{sWq}, s10, s{sT3}")
    e(f"s_addc_u32 s{sWq+1}, s11, 0")
    vm = VM(e)
    for i in range(5):
        e(f"buffer_load_dwordx4 {vr(vX+4*i)}, v{vT2}, {srd(sX)}, s{sSpin} offen offset:{16*i}"); vm.issue("x")
    e(f"s_mul_i32 s{sT2}, s{sW}, {160*8192}")
    e(f"s_add_u32 s{sK}, s6, s{sT}")
    e(f"s_addc_u32 s{sK+1}, s7, 0")
    e(f"s_add_u32 s{sV}, s8, s{sT}")
    e(f"s_addc_u32 s{sV+1}, s9, 0")
    soffs()
    nk = 0
    def kpre():
        nonlocal nk
        ringload(nk); vm.issue(f"k{nk}"); nk += 1
    a, b = ilv
    r = 0
    KFIRST = min(D, kfirst)
    while r < 40:
        for _ in range(a):
            if r < 40:
                e(f"buffer_load_dwordx4 {ar(4*r)}, v{vOffW}, {srd(sWq)}, s{sT2} offen {polW}"); vm.issue(f"wq{r}")
                if r < 39: e(f"s_add_u32 s{sT2}, s{sT2}, 8192")
                r += 1
        for _ in range(b):
            if nk < KFIRST: kpre()
    while nk < KFIRST: kpre()
    stamp(1)
    e(f"s_mul_i32 s{sT}, s{sH}, 163840")
    e(f"s_add_u32 s{sWo}, s12, s{sT}")
    e(f"s_addc_u32 s{sWo+1}, s13, 0")
    e(f"s_mov_b32 s{sWo+2}, 163840")
    e(f"s_mov_b32 s{sWo+3}, 0x20000")
    e(f"s_mul_i32 s{sT}, s{sG}, {20*4096}")
    e(f"s_add_u32 s{sIn}, s28, s{sT}")
    e(f"s_addc_u32 s{sIn+1}, s29, 0")
    e(f"s_mov_b32 s{sIn+2}, {20*4096}")
    e(f"s_mov_b32 s{sIn+3}, 0x20000")
    e(f"s_mov_b32 s{sDbg}, s26")
    e(f"s_mov_b32 s{sDbg+1}, s27")
    e(f"s_mov_b32 s{sDbg+2}, 256")
    e(f"s_mov_b32 s{sDbg+3}, 0x20000")
    e(f"s_mov_b32 s{sOut}, s24")
    e(f"s_mov_b32 s{sOut+1}, s25")
    e(f"s_mov_b32 s{sOut+2}, 10240")
    e(f"s_mov_b32 s{sOut+3}, 0x20000")
    e(f"s_cmp_lt_u32 s{sH}, 20")
    e(f"s_cselect_b32 s{sCons}, 1, 0")
    e(f"s_cmp_eq_u32 s{sW}, 3")
    e(f"s_cselect_b32 s{sCons}, s{sCons}, 0")
    e(f"s_add_u32 s{sWoIt}, s{sW}, {wo0}")
    e(f"v_mul_u32_u24 v{vOffW}, {8*1280}, v{vT0}")
    e(f"v_add_u32 v{vOffW}, v{vOffW}, v{vT3}")
    e(f"v_and_b32 v{vS}, 1, v{vLane}")
    e(f"v_cmp_eq_u32 vcc, 1, v{vS}")
    e(f"v_mov_b32 v{vT1}, 0x0000ffff")
    e(f"v_mov_b32 v{vT2}, 0xffff0000")
    e(f"v_cndmask_b32 v{vP}, v{vT1}, v{vT2}, vcc")
    e(f"v_mov_b32 v{vT1}, 0x0c0c0100")
    e(f"v_mov_b32 v{vT2}, 0x01000c0c")
    e(f"v_cndmask_b32 v{vMax}, v{vT1}, v{vT2}, vcc")
    e(f"v_mov_b32 v{vT1}, 0x0c0c0302")
    e(f"v_mov_b32 v{vT2}, 0x03020c0c")
    e(f"v_cndmask_b32 v{vL}, v{vT1}, v{vT2}, vcc")
    e(f"v_mov_b32 v{vT1}, 0x0c0c0c0c")
    for i in range(4):
        e(f"s_mov_b32 s{sM+2*i}, {hex(0x00030003 << (2*i))}")
        e(f"s_mov_b32 s{sM+2*i+1}, {hex(0x00030003 << (2*i))}")
    for i in range(4):
        m = f"s[{sM+2*i}:{sM+2*i+1}]"
        e(f"v_cndmask_b32 v{vMask+i}, 0, v{vP}, {m}")
        e(f"v_cndmask_b32 v{vSelE+i}, v{vT1}, v{vMax}, {m}")
        e(f"v_cndmask_b32 v{vSelO+i}, v{vT1}, v{vL}, {m}")
    for t in range(4):
        e(f"s_mov_b32 s{sM+2*t}, {hex(0x11111111 << t)}")
        e(f"s_mov_b32 s{sM+2*t+1}, {hex(0x11111111 << t)}")
    for i in range(4): e(f"v_mov_b32 v{vAcc+i}, 0")
    e(f"v_mov_b32 v{vMax}, 0xff800000")
    e(f"v_mov_b32 v{vL}, 0")
    e(f"v_mov_b32 v{vC}, {hex(f2u(128 ** -0.5 * math.log2(math.e)))}")
    e(f"s_lshl_b32 s{sT}, s{sW}, 12")
    e(f"s_add_u32 s{sT}, s{sT}, {L_S}")
    e(f"v_lshl_add_u32 v{vLdsS}, v{vLane}, 2, s{sT}")
    e(f"s_lshl_b32 s{sT}, s{sW}, 9")
    e(f"v_lshlrev_b32 v{vLdsA}, 1, v{vT3}")
    e(f"v_lshl_add_u32 v{vLdsA}, v{vT0}, 4, v{vLdsA}")
    e(f"v_add_u32 v{vLdsA}, s{sT}, v{vLdsA}")
    e(f"s_mul_i32 s{sT2}, s{sW}, {32*1280}")
    def xsel(r, dst):
        sel = vSelE if r % 2 == 0 else vSelO
        for i in range(4):
            e(f"v_perm_b32 v{dst+i}, v{vX+r//2}, v{vX+r//2}, v{sel+i}")
    vm.wait("x")
    xsel(0, vA)
    for r in range(40):
        if r < 39: xsel(r+1, vA + 4*((r+1) % 2))
        else: e("s_nop 1")
        vm.wait(f"wq{r}")
        c = "0" if r == 0 else vr(vD)
        e(f"v_mfma_f32_16x16x32_bf16 {vr(vD)}, {vr(vA+4*(r%2))}, {ar(4*r)}, {c}")
        if nk < D and vm.room() > 0 and (kfirst > 0 or r >= 40 - D): kpre()
        if womode == "early":
            woload(r); vm.issue(f"wo{r}")
    assert nk == D
    stamp(2)
    e(f"s_cmp_eq_u32 s{sCons}, 0")
    e("s_cbranch_scc1 L_noclear")
    assert vm.room() >= 4
    e(f"s_lshl_b32 s{sT}, s{sH}, 12")
    for i in range(4): e(f"v_mov_b32 v{vX+i}, -1")
    for i in range(4):
        e(f"buffer_store_dwordx4 {vr(vX)}, v{vOffV}, {srd(sIn)}, s{sT} offen offset:{1024*i} sc0 sc1")
    e("L_noclear:")
    e("s_nop 7")
    e("s_mov_b32 exec_hi, 0")
    e(f"ds_write_b128 v{vLdsA}, {vr(vD)} offset:{L_Q}")
    e("s_mov_b32 exec_hi, -1")
    e(f"v_lshrrev_b32 v{vT1}, 2, v{vLane}")
    e(f"v_lshlrev_b32 v{vT1}, 5, v{vT1}")
    e("s_waitcnt lgkmcnt(0)")
    e("s_barrier")
    for w in range(4):
        e(f"ds_read_b128 {vr(vX+8*w)}, v{vT1} offset:{L_Q + 512*w}")
        e(f"ds_read_b128 {vr(vX+8*w+4)}, v{vT1} offset:{L_Q + 512*w + 16}")
    e("s_waitcnt lgkmcnt(4)")
    for j in range(8): e(f"v_add_f32 v{vX+j}, v{vX+j}, v{vX+8+j}")
    e("s_waitcnt lgkmcnt(0)")
    for j in range(8): e(f"v_add_f32 v{vX+16+j}, v{vX+16+j}, v{vX+24+j}")
    for j in range(8): e(f"v_add_f32 v{vX+j}, v{vX+j}, v{vX+16+j}")
    for i in range(4): e(f"v_cvt_pk_bf16_f32 v{vX+8+i}, v{vX+2*i}, v{vX+2*i+1}")
    for t in range(4):
        for i in range(4):
            e(f"v_cndmask_b32 v{vQ+4*t+i}, 0, v{vX+8+i}, s[{sM+2*t}:{sM+2*t+1}]")
    e(f"s_mov_b32 s{sIt}, 0")
    stamp(3)

    def wcnt(Wn, s):
        return int(math.floor((s + 1) * Wn + 1e-9) - math.floor(s * Wn + 1e-9)) - 1
    def kloop(tag, Wn, pol=None):
        e(f"L_k{tag}:")
        e(f"s_add_u32 s{sOff}, s{sOff}, {step}")
        if rot: e(f"s_and_b32 s{sOff}, s{sOff}, 0xfffff")
        if womode == "burst":
            e(f"s_cmp_lg_u32 s{sIt}, s{sWoIt}")
            e(f"s_cbranch_scc1 L_k{tag}_nowo")
            if max(Wn, 1) > 23 or wo0 == 0: e("s_waitcnt vmcnt(23)")
            for r in range(40): woload(r)
            e(f"L_k{tag}_nowo:")
        e(f"s_cmp_lg_u32 s{sIt}, {NIT-1}")
        e(f"s_cbranch_scc1 L_k{tag}_go")
        e(f"s_mov_b32 s{sK}, s{sV}")
        e(f"s_mov_b32 s{sK+1}, s{sV+1}")
        e(f"s_mov_b32 s{sOff}, s{sOff0}")
        e(f"v_mov_b32 v{vOffC}, v{vOffV}")
        for j in range(1, nv): e(f"v_add_u32 v{vOffC+j}, {j*hs}, v{vOffV}")
        e(f"s_cmp_eq_u32 s{sCons}, 0")
        e(f"s_cbranch_scc1 L_k{tag}_go")
        e(f"s_lshl_b32 s{sT}, s{sG}, 2")
        e(f"v_mov_b32 v{vT0}, 1")
        e("s_mov_b64 exec, 1")
        e(f"buffer_atomic_add v{vT0}, off, {srd(sDbg)}, s{sT} sc1")
        e("s_mov_b64 exec, -1")
        e(f"L_k{tag}_go:")
        soffs()
        e(f"s_add_u32 s{sIt}, s{sIt}, 1")
        for u in range(SUB):
            for s16 in range(16):
                s = u * 16 + s16
                b, t = s16 // 4, s16 % 4
                e(f"s_waitcnt vmcnt({wcnt(Wn, s)})")
                c = "0" if t == 0 else vr(vD+4*b)
                e(f"v_mfma_f32_16x16x32_bf16 {vr(vD+4*b)}, {vr(vRing+4*s)}, {vr(vQ+4*t)}, {c}")
                ringload(s, pol)
            for r in range(4):
                for k in range(4):
                    cc = (r + k) % 4
                    ror = (4 * (r - cc)) % 16
                    ctl = "quad_perm:[0,1,2,3]" if ror == 0 else f"row_ror:{ror}"
                    if k == 0:
                        e(f"v_mov_b32_dpp v{vS}, v{vD+4*r+cc} {ctl} row_mask:0xf bank_mask:{hex(1<<r)}")
                    else:
                        e(f"v_add_f32_dpp v{vS}, v{vD+4*r+cc}, v{vS} {ctl} row_mask:0xf bank_mask:{hex(1<<r)}")
            e(f"v_max_f32 v{vMax}, v{vMax}, v{vS}")
            e(f"ds_write_b32 v{vLdsS}, v{vS} offset:{256*u}")
        e(f"v_add_u32 v{vLdsS}, {256*SUB}, v{vLdsS}")
        e(f"s_cmp_lt_u32 s{sIt}, {NIT}")
        e(f"s_cbranch_scc1 L_k{tag}")

    def transition():
        e(f"v_subrev_u32 v{vLdsS}, {256*16}, v{vLdsS}")
        e("s_waitcnt lgkmcnt(0)")
        e(f"ds_read_b32 v{vSn}, v{vLdsS}")
        for n in (8, 4, 2, 1):
            e("s_nop 1")
            e(f"v_max_f32_dpp v{vMax}, v{vMax}, v{vMax} row_ror:{n} row_mask:0xf bank_mask:0xf")
        e(f"v_mov_b32 v{vT0}, v{vMax}")
        e("s_nop 1")
        e(f"v_permlane16_swap_b32 v{vMax}, v{vT0}")
        e("s_nop 0")
        e(f"v_max_f32 v{vMax}, v{vMax}, v{vT0}")
        e(f"v_mov_b32 v{vT0}, v{vMax}")
        e("s_nop 1")
        e(f"v_permlane32_swap_b32 v{vMax}, v{vT0}")
        e("s_nop 0")
        e(f"v_max_f32 v{vMax}, v{vMax}, v{vT0}")
        e(f"v_mul_f32 v{vMc}, v{vMax}, v{vC}")
        e(f"s_mov_b32 s{sIt}, 0")

    def vloop(tag, Wn, pol=None, upto=None):
        if upto is None: upto = NIT
        def asel(s):
            dst = vA + 4 * (s % 2)
            for i in range(4):
                e(f"v_and_b32_dpp v{dst+i}, v{vP}, v{vMask+i} row_newbcast:{s} row_mask:0xf bank_mask:0xf")
        e(f"L_v{tag}:")
        e(f"s_add_u32 s{sOff}, s{sOff}, {step}")
        if rot: e(f"s_and_b32 s{sOff}, s{sOff}, 0xfffff")
        e(f"s_cmp_lg_u32 s{sIt}, {NIT-1}")
        e(f"s_cbranch_scc1 L_v{tag}_go")
        e(f"s_mov_b32 s{sK+2}, 0")
        e(f"s_lshl_b32 s{sT}, s{sG}, 2")
        e(f"buffer_load_dword v{vFlag}, off, {srd(sDbg)}, s{sT} sc1")
        e(f"L_v{tag}_go:")
        soffs()
        e(f"s_add_u32 s{sIt}, s{sIt}, 1")
        for u in range(SUB):
            e("s_waitcnt lgkmcnt(0)")
            e(f"v_fma_f32 v{vT0}, v{vSn}, v{vC}, -v{vMc}")
            e(f"v_add_u32 v{vLdsS}, 256, v{vLdsS}")
            e(f"v_exp_f32 v{vT0}, v{vT0}")
            e(f"ds_read_b32 v{vSn}, v{vLdsS}")
            e(f"v_cvt_pk_bf16_f32 v{vP}, v{vT0}, v{vT0}")
            e(f"v_add_f32 v{vL}, v{vL}, v{vT0}")
            e("s_nop 0")
            asel(0)
            for s16 in range(16):
                s = u * 16 + s16
                if s16 < 15: asel(s16+1)
                else: e("s_nop 0")
                e(f"s_waitcnt vmcnt({wcnt(Wn, s)})")
                e(f"v_mfma_f32_16x16x32_bf16 {vr(vAcc)}, {vr(vA+4*(s16%2))}, {vr(vRing+4*s)}, {vr(vAcc)}")
                ringload(s, pol)
        e(f"s_cmp_lt_u32 s{sIt}, {upto}")
        e(f"s_cbranch_scc1 L_v{tag}")

    if Wv is None: Wv = W
    if pols is not None:
        e(f"s_cmp_eq_u32 s{sBr}, 1")
        e("s_cbranch_scc1 L_odd")
        kloop("e", W, pols[0]); transition(); stamp(4); vloop("e", Wv, pols[1])
        e("s_branch L_tail")
        e("L_odd:")
        kloop("o", W, pols[2]); transition(); stamp(4); vloop("o", Wv, pols[3])
        e("L_tail:")
    elif Wend is not None:
        kloop("", W); transition(); stamp(4); vloop("a", Wv, upto=NIT-nend); vloop("b", Wend)
    elif Wodd is None:
        kloop("", W); transition(); stamp(4); vloop("", Wv)
    else:
        e(f"s_getreg_b32 s{sT}, hwreg(HW_REG_XCC_ID)")
        e(f"s_bitcmp1_b32 s{sT}, 0")
        e("s_cbranch_scc1 L_odd")
        kloop("e", W); transition(); stamp(4); vloop("e", W)
        e("s_branch L_tail")
        e("L_odd:")
        kloop("o", Wodd); transition(); stamp(4); vloop("o", Wodd)
        e("L_tail:")
    stamp(5)
    for n in (8, 4, 2, 1):
        e(f"v_add_f32_dpp v{vL}, v{vL}, v{vL} row_ror:{n} row_mask:0xf bank_mask:0xf")
        e("s_nop 1")
    e(f"v_mov_b32 v{vT0}, v{vL}")
    e("s_mov_b32 exec_hi, 0")
    e(f"ds_write_b128 v{vLdsA}, {vr(vAcc)} offset:{L_O}")
    e("s_mov_b32 exec_hi, -1")
    e(f"v_permlane16_swap_b32 v{vL}, v{vT0}")
    e(f"s_lshl_b32 s{sT}, s{sW}, 3")
    e(f"v_add_f32 v{vL}, v{vL}, v{vT0}")
    e(f"v_mov_b32 v{vT1}, s{sT}")
    e(f"v_mov_b32 v{vT0}, v{vL}")
    e("s_nop 1")
    e(f"v_permlane32_swap_b32 v{vL}, v{vT0}")
    e(f"v_mov_b32 v{vT2}, v{vMc}")
    e(f"v_add_f32 v{vT3}, v{vL}, v{vT0}")
    e(f"ds_write_b64 v{vT1}, v[{vT2}:{vT3}] offset:{L_ML}")
    e(f"s_cmp_lg_u32 s{sW}, 0")
    e("s_cbranch_scc1 L_flag_ok")
    e(f"s_waitcnt vmcnt({D})")
    e(f"s_mov_b32 s{sSpin}, 0")
    e("L_flag_chk:")
    e(f"v_readfirstlane_b32 s{sT}, v{vFlag}")
    e(f"s_add_u32 s{sSpin}, s{sSpin}, 1")
    e(f"s_cmp_ge_u32 s{sT}, 20")
    e("s_cbranch_scc1 L_flag_ok")
    e(f"s_cmp_ge_u32 s{sSpin}, 0x400000")
    e("s_cbranch_scc1 L_flag_ok")
    e(f"s_lshl_b32 s{sT}, s{sG}, 2")
    e(f"buffer_load_dword v{vFlag}, off, {srd(sDbg)}, s{sT} sc1")
    e("s_waitcnt vmcnt(0)")
    e("s_branch L_flag_chk")
    e("L_flag_ok:")
    e(f"v_lshrrev_b32 v{vT0}, 4, v{vLane}")
    e(f"s_lshl_b32 s{sT}, s{sW}, 7")
    e(f"v_lshl_add_u32 v{vT1}, v{vT0}, 5, s{sT}")
    e(f"v_mov_b32 v{vT0}, 0")
    e("s_waitcnt lgkmcnt(0)")
    e("s_barrier")
    tstamp(1)
    e(f"ds_read_b128 {vr(vML)}, v{vT0} offset:{L_ML}")
    e(f"ds_read_b128 {vr(vML+4)}, v{vT0} offset:{L_ML+16}")
    for w in range(4):
        e(f"ds_read_b128 {vr(vX+8*w)}, v{vT1} offset:{L_O + 512*w}")
        e(f"ds_read_b128 {vr(vX+8*w+4)}, v{vT1} offset:{L_O + 512*w + 16}")
    e("s_waitcnt lgkmcnt(8)" if stamps != 2 else "s_waitcnt lgkmcnt(0)")
    e(f"v_max3_f32 v{vT0}, v{vML}, v{vML+2}, v{vML+4}")
    e(f"v_max_f32 v{vT0}, v{vT0}, v{vML+6}")
    for w in range(4): e(f"v_sub_f32 v{vML+2*w}, v{vML+2*w}, v{vT0}")
    for w in range(4): e(f"v_exp_f32 v{vML+2*w}, v{vML+2*w}")
    e("s_nop 0")
    e(f"v_mul_f32 v{vT0}, v{vML}, v{vML+1}")
    for w in range(1, 4): e(f"v_fmac_f32 v{vT0}, v{vML+2*w}, v{vML+2*w+1}")
    e(f"v_rcp_f32 v{vT0}, v{vT0}")
    e("s_waitcnt lgkmcnt(0)")
    for w in range(4): e(f"v_mul_f32 v{vML+2*w}, v{vML+2*w}, v{vT0}")
    for j in range(8): e(f"v_mul_f32 v{vX+j}, v{vX+j}, v{vML}")
    for w in range(1, 4):
        for j in range(8): e(f"v_fmac_f32 v{vX+j}, v{vX+8*w+j}, v{vML+2*w}")
    for i in range(4): e(f"v_cvt_pk_bf16_f32 v{vX+i}, v{vX+2*i}, v{vX+2*i+1}")
    tstamp(2)
    xsel(0, vA)
    for rr in range(8):
        if rr < 7: xsel(rr+1, vA + 4*((rr+1) % 2))
        else: e("s_nop 0")
        if rr == 0: e("s_nop 0")
        for T in range(5):
            c = "0" if rr == 0 else vr(vOAcc+4*T)
            e(f"v_mfma_f32_16x16x32_bf16 {vr(vOAcc+4*T)}, {vr(vA+4*(rr%2))}, {ar(4*(rr*5+T))}, {c}")
    tstamp(3)
    e(f"s_lshl_b32 s{sT}, s{sW}, 11")
    e(f"v_add_u32 v{vT0}, s{sT}, v{vLdsA}")
    e(f"v_lshlrev_b32 v{vT1}, 4, v0")
    e(f"v_lshrrev_b32 v{vT2}, 3, v0")
    e(f"v_lshlrev_b32 v{vT2}, 12, v{vT2}")
    e(f"v_and_b32 v{vT3}, 7, v0")
    e(f"v_lshl_add_u32 v{vT2}, v{vT3}, 4, v{vT2}")
    e(f"s_lshl_b32 s{sT2}, s{sH}, 7")
    e("s_mov_b32 exec_hi, 0")
    for T in range(5):
        e(f"ds_write_b128 v{vT0}, {vr(vOAcc+4*T)} offset:{L_OUT + 512*T}")
    e("s_mov_b32 exec_hi, -1")
    e("s_waitcnt lgkmcnt(0)")
    e("s_barrier")
    tstamp(4)
    e(f"s_cmp_eq_u32 s{sW}, 3")
    e("s_cbranch_scc1 L_consume")
    for w in range(4):
        e(f"ds_read_b128 {vr(vX+4*w)}, v{vT1} offset:{L_OUT + 2560*w}")
    e(f"v_mov_b32 v{vT3}, -2")
    e("s_waitcnt lgkmcnt(2)" if stamps != 2 else "s_waitcnt lgkmcnt(0)")
    for j in range(4): e(f"v_add_f32 v{vX+j}, v{vX+j}, v{vX+4+j}")
    e("s_waitcnt lgkmcnt(0)")
    for j in range(4): e(f"v_add_f32 v{vX+8+j}, v{vX+8+j}, v{vX+12+j}")
    for j in range(4): e(f"v_add_f32 v{vX+j}, v{vX+j}, v{vX+8+j}")
    for j in range(4): e(f"v_min_u32 v{vX+j}, v{vX+j}, v{vT3}")
    e(f"buffer_store_dwordx4 {vr(vX)}, v{vT2}, {srd(sIn)}, s{sT2} offen sc0 sc1")
    stamp(6)
    e("s_branch L_fin")
    e("L_consume:")
    e(f"s_cmp_eq_u32 s{sCons}, 0")
    e("s_cbranch_scc1 L_fin")
    e(f"s_lshl_b32 s{sT}, s{sH}, 12")
    e(f"s_mov_b32 s{sSpin}, 0")
    e("L_poll:")
    for i in range(4):
        e(f"buffer_load_dwordx4 {vr(vX+4*i)}, v{vOffV}, {srd(sIn)}, s{sT} offen offset:{1024*i} sc0 sc1")
    e(f"s_add_u32 s{sSpin}, s{sSpin}, 1")
    e("s_waitcnt vmcnt(0)")
    e(f"v_max3_u32 v{vT0}, v{vX}, v{vX+1}, v{vX+2}")
    e(f"v_max3_u32 v{vT1}, v{vX+3}, v{vX+4}, v{vX+5}")
    e(f"v_max3_u32 v{vT2}, v{vX+6}, v{vX+7}, v{vX+8}")
    e(f"v_max3_u32 v{vT3}, v{vX+9}, v{vX+10}, v{vX+11}")
    e(f"v_max3_u32 v{vT0}, v{vT0}, v{vX+12}, v{vX+13}")
    e(f"v_max3_u32 v{vT1}, v{vT1}, v{vX+14}, v{vX+15}")
    e(f"v_max3_u32 v{vT0}, v{vT0}, v{vT2}, v{vT3}")
    e(f"v_max_u32 v{vT0}, v{vT0}, v{vT1}")
    e(f"v_cmp_eq_u32 vcc, -1, v{vT0}")
    e(f"s_cmp_ge_u32 s{sSpin}, 0x200000")
    e("s_cbranch_scc1 L_polled")
    e("s_cbranch_vccnz L_poll")
    e("L_polled:")
    for j in range(4): e(f"v_add_f32 v{vX+j}, v{vX+j}, v{vX+4+j}")
    for j in range(4): e(f"v_add_f32 v{vX+8+j}, v{vX+8+j}, v{vX+12+j}")
    for j in range(4): e(f"v_add_f32 v{vX+j}, v{vX+j}, v{vX+8+j}")
    e("s_nop 1")
    for j in range(4): e(f"v_add_f32_dpp v{vX+j}, v{vX+j}, v{vX+j} row_ror:8 row_mask:0xf bank_mask:0xf")
    for j in range(4): e(f"v_mov_b32 v{vX+4+j}, v{vX+j}")
    e("s_nop 1")
    for j in range(4): e(f"v_permlane16_swap_b32 v{vX+j}, v{vX+4+j}")
    for j in range(4): e(f"v_add_f32 v{vX+j}, v{vX+j}, v{vX+4+j}")
    for j in range(4): e(f"v_mov_b32 v{vX+4+j}, v{vX+j}")
    e("s_nop 1")
    for j in range(4): e(f"v_permlane32_swap_b32 v{vX+j}, v{vX+4+j}")
    for j in range(4): e(f"v_add_f32 v{vX+j}, v{vX+j}, v{vX+4+j}")
    e(f"s_mul_i32 s{sT}, s{sB}, 2560")
    e(f"s_mul_i32 s{sT2}, s{sBr}, 1280")
    e(f"s_add_u32 s{sT}, s{sT}, s{sT2}")
    e(f"s_lshl_b32 s{sT2}, s{sH}, 6")
    e(f"s_add_u32 s{sT}, s{sT}, s{sT2}")
    e(f"v_cvt_pk_bf16_f32 v{vX}, v{vX}, v{vX+1}")
    e(f"v_cvt_pk_bf16_f32 v{vX+1}, v{vX+2}, v{vX+3}")
    e(f"v_lshlrev_b32 v{vT0}, 3, v{vLane}")
    e("s_mov_b64 exec, 0xff")
    e(f"buffer_store_dwordx2 v[{vX}:{vX+1}], v{vT0}, {srd(sOut)}, s{sT} offen")
    e("s_mov_b64 exec, -1")
    stamp(6)
    e("L_fin:")
    if stamps:
        e("s_waitcnt vmcnt(0) lgkmcnt(0)")
        e(f"s_memrealtime s[{sSt+14}:{sSt+15}]")
        e(f"s_getreg_b32 s{sT3}, hwreg(HW_REG_XCC_ID)")
        e(f"s_add_u32 s{sIn}, s28, 0x100000")
        e(f"s_addc_u32 s{sIn+1}, s29, 0")
        e(f"s_mov_b32 s{sIn+2}, 0x20000")
        e(f"s_lshl_b32 s{sT}, s2, 2")
        e(f"s_add_u32 s{sT}, s{sT}, s{sW}")
        e(f"s_lshl_b32 s{sT}, s{sT}, 7")
        e("s_waitcnt lgkmcnt(0)")
        e(f"v_mov_b32 v{vT0}, 0")
        e("s_mov_b64 exec, 1")
        for i in range(8):
            e(f"v_mov_b32 v{vX+2*i}, s{sSt+2*i}")
            e(f"v_mov_b32 v{vX+2*i+1}, s{sSt+2*i+1}")
        e(f"v_mov_b32 v{vX+16}, s{sT3}")
        for i in range(4):
            e(f"buffer_store_dwordx4 {vr(vX+4*i)}, v{vT0}, {srd(sIn)}, s{sT} offen offset:{16*i}")
        e(f"buffer_store_dword v{vX+16}, v{vT0}, {srd(sIn)}, s{sT} offen offset:64")
    e("L_end:")
    e("s_endpgm")
    e('.section .rodata,"a"')
    e(".p2align 6")
    e(f".amdhsa_kernel {KNAME}")
    e(f"  .amdhsa_next_free_vgpr {ACC_OFF + NA}")
    e("  .amdhsa_next_free_sgpr 102")
    e(f"  .amdhsa_accum_offset {ACC_OFF}")
    e("  .amdhsa_group_segment_fixed_size 0")
    e("  .amdhsa_kernarg_size 104")
    e("  .amdhsa_user_sgpr_count 2")
    e("  .amdhsa_user_sgpr_kernarg_segment_ptr 1")
    e("  .amdhsa_system_sgpr_workgroup_id_x 1")
    e("  .amdhsa_float_denorm_mode_32 3")
    e(".end_amdhsa_kernel")
    return "\n".join(o) + "\n"

if __name__ == "__main__":
    cfg = eval("dict(" + (sys.argv[2] if len(sys.argv) > 2 else "") + ")")
    open(sys.argv[1], "w").write(gen(**cfg))
```

```python
import sys, math, struct
KNAME = "concat_heads__gqa_block_cached__gqa_block_cached__decode_kernel"

HEADER = """; Kernarg layout for this problem (104 bytes, ptrs only, base s[0:1]):
;   offset  24: d_in[3] A_wq  shape=(640, 4096) dtype=bfloat16
;
"""

def f2u(x):
    return struct.unpack("<I", struct.pack("<f", x))[0]

class VM:
    def __init__(self, e): self.e = e; self.ops = []
    def issue(self, tag):
        self.ops.append(tag); assert len(self.ops) <= 63, len(self.ops)
    def wait(self, tag):
        i = max(k for k, t in enumerate(self.ops) if t == tag)
        n = len(self.ops) - 1 - i
        self.e(f"s_waitcnt vmcnt({n})")
        self.ops = self.ops[i+1:]
    def room(self): return 63 - len(self.ops)

def gen(polKV="nt", polW="nt", polWo=None, layout="fine", F=4, D=16, W=16, Wodd=None, stamps=0, hmap=0,
        pols=None, womode="burst", wo0=1, ilv=(5, 2), Wv=None, Wend=None, nend=4, rot=0, kfirst=18, fb=None, flow=None, sigspread=0, sync="clear", polSt="sc0 sc1", polLd="sc0 sc1"):
    nonce = sync == "nonce"
    assert not (nonce and sigspread)
    o = []
    def e(s): o.append(s)
    if polWo is None: polWo = polW
    SUB = D // 16
    NIT = 16 // SUB
    L_Q = 0
    L_O = 2048
    L_ML = 4096
    L_CTL = 4096 + 64
    L_OUT = 4224
    L_S = 4224 + 10240
    LDS = L_S + 16384 + 256
    sO = 14
    sW, sH, sB, sBr, sG, sWoIt = 30, 31, 32, 33, 34, 35
    sK, sWq, sWo, sX, sIn, sDbg, sOut = 36, 40, 44, 48, 52, 56, 60
    sV = 64
    sIt, sOff, sT, sT2, sT3, sCons, sSpin, sOff0 = 66, 67, 68, 69, 70, 71, 72, 73
    sM = 74
    sWqO, sSigIt, sChkIt = 3, 101, 35
    sSt = 82
    sP5, sP6, sC, sUp, sChk = 22, 23, 98, 99, 100
    sTab = 74
    def srd(b): return f"s[{b}:{b+3}]"
    vLane, vOffV, vOffW, vC, vMc, vT0, vT1, vT2, vT3 = 1, 2, 3, 4, 5, 6, 7, 8, 9
    vMask = 10
    vSelE = 14
    vSelO = 18
    vS, vP, vMax, vL, vSn, vFlag, vLdsS, vLdsA = 22, 23, 24, 25, 26, 27, 28, 29
    vRank, vCtl = 30, 31
    vA = 32
    vAcc = 40
    vQ = 44
    vD = 60
    vOAcc = 44
    vX = 76
    vML = 108
    vTag = 64
    vOffWq = 108
    vOffC = 116
    vRing = 120
    NV = vRing + 4 * D
    ACC_OFF = NV
    NA = 160
    def vr(b, n=4): return f"v[{b}:{b+n-1}]"
    def ar(b, n=4): return f"a[{b}:{b+n-1}]"
    def stamp(i):
        if stamps == 1 or (stamps == 2 and i not in (1, 2, 3, 4)): e(f"s_memrealtime s[{sSt+2*i}:{sSt+2*i+1}]")
    def tstamp(i):
        if stamps == 2: e(f"s_memrealtime s[{sSt+2*i}:{sSt+2*i+1}]")
    if layout == "chunk": Fe, wbase, step = D, 262144, D * 1024
    elif layout == "inter": Fe, wbase, step = D, D * 1024, D * 4096
    else: Fe, wbase, step = F, F * 1024, D * 4096
    def off(s): return (s // Fe) * Fe * 4096 + (s % Fe) * 1024
    his = sorted(set(off(s) // 4096 * 4096 for s in range(D)))
    hs = his[1] - his[0]
    assert his == [k * hs for k in range(len(his))]
    ns = min(len(his), 8); nv = len(his) // ns
    assert nv <= 4
    def soffs():
        e(f"s_mov_b32 s{sO}, s{sOff}")
        for i in range(1, ns): e(f"s_add_u32 s{sO+i}, s{sOff}, {i*nv*hs}")
    def ringload(s, pol=None):
        if pol is None: pol = polKV
        k = his.index(off(s) // 4096 * 4096)
        e(f"buffer_load_dwordx4 {vr(vRing+4*s)}, v{vOffC+k%nv}, {srd(sK)}, s{sO+k//nv} offen offset:{off(s)%4096} {pol}")
    def woload(r):
        e(f"buffer_load_dwordx4 {ar(4*r)}, v{vOffW}, {srd(sWo)}, s{sT2} offen offset:{(r%5)*256} {polWo}")
        if r % 5 == 4 and r < 39: e(f"s_add_u32 s{sT2}, s{sT2}, 1280")

    e(HEADER.rstrip("\n"))
    e(f"; @launch grid=(256,1,1) block=(256,1,1) lds={LDS}")
    e('.amdgcn_target "amdgcn-amd-amdhsa--gfx950"')
    e(".text")
    e(f".globl {KNAME}")
    e(".p2align 8")
    e(f".type {KNAME},@function")
    e(f"{KNAME}:")
    stamp(0)
    e("s_cmp_ge_u32 s2, 256")
    e("s_cbranch_scc1 L_end")
    e("s_load_dwordx16 s[4:19], s[0:1], 0")
    e("s_load_dwordx8 s[20:27], s[0:1], 64")
    e("s_load_dwordx2 s[28:29], s[0:1], 96")
    e(f"v_lshrrev_b32 v{vT0}, 6, v0")
    e(f"v_and_b32 v{vLane}, 63, v0")
    e(f"v_readfirstlane_b32 s{sW}, v{vT0}")
    if hmap == 0:
        e(f"s_and_b32 s{sH}, s2, 7")
        e(f"s_lshr_b32 s{sT}, s2, 5")
        e(f"s_lshr_b32 s{sBr}, s{sT}, 2")
        e(f"s_and_b32 s{sT}, s{sT}, 3")
        e(f"s_lshl_b32 s{sT}, s{sT}, 3")
        e(f"s_add_u32 s{sH}, s{sH}, s{sT}")
    elif hmap == 2:
        e(f"s_and_b32 s{sH}, s2, 7")
        e(f"s_lshl_b32 s{sH}, s{sH}, 2")
        e(f"s_bfe_u32 s{sT}, s2, 0x20005")
        e(f"s_add_u32 s{sH}, s{sH}, s{sT}")
        e(f"s_lshr_b32 s{sBr}, s2, 7")
    else:
        e(f"s_and_b32 s{sH}, s2, 3")
        e(f"s_lshl_b32 s{sH}, s{sH}, 3")
        e(f"s_lshr_b32 s{sT}, s2, 5")
        e(f"s_add_u32 s{sH}, s{sH}, s{sT}")
        e(f"s_bfe_u32 s{sBr}, s2, 0x10002")
    e(f"s_lshr_b32 s{sB}, s2, 3")
    e(f"s_and_b32 s{sB}, s{sB}, 3")
    e(f"s_lshl_b32 s{sG}, s{sBr}, 2")
    e(f"s_add_u32 s{sG}, s{sG}, s{sB}")
    e(f"v_lshrrev_b32 v{vT0}, 4, v{vLane}")
    e(f"v_and_b32 v{vT1}, 15, v{vLane}")
    e(f"v_mul_u32_u24 v{vT2}, 80, v{vT0}")
    e(f"v_lshlrev_b32 v{vT3}, 4, v{vT1}")
    e(f"v_mul_u32_u24 v{vOffW}, {40*8192}, v{vT0}")
    e(f"v_add_u32 v{vOffW}, v{vOffW}, v{vT3}")
    e(f"v_lshlrev_b32 v{vOffV}, 4, v{vLane}")
    e(f"v_lshrrev_b32 v{vOffC}, 2, v{vT1}")
    e(f"v_lshlrev_b32 v{vOffC}, 8, v{vOffC}")
    e(f"v_lshl_add_u32 v{vOffC}, v{vT0}, 6, v{vOffC}")
    e(f"v_and_b32 v{vS}, 3, v{vLane}")
    e(f"v_lshl_add_u32 v{vOffC}, v{vS}, 4, v{vOffC}")
    for j in range(1, nv): e(f"v_add_u32 v{vOffC+j}, {j*hs}, v{vOffC}")
    e(f"s_lshl_b32 s{sT}, s{sB}, 5")
    e(f"s_add_u32 s{sT}, s{sT}, s{sH}")
    e(f"s_lshl_b32 s{sT}, s{sT}, 20")
    e(f"s_mul_i32 s{sT2}, s{sB}, 1280")
    e(f"s_lshl_b32 s{sT3}, s{sH}, 8")
    e(f"s_mul_i32 s{sOff0}, s{sW}, {wbase}")
    if rot:
        assert layout != "chunk"
        e(f"s_lshr_b32 s{sOff}, s2, 3")
        e(f"s_mul_i32 s{sOff}, s{sOff}, {rot}")
        e(f"s_add_u32 s{sOff}, s{sOff}, s2")
        e(f"s_and_b32 s{sOff}, s{sOff}, {NIT-1}")
        e(f"s_mul_i32 s{sOff}, s{sOff}, {step}")
        e(f"s_add_u32 s{sOff0}, s{sOff0}, s{sOff}")
    e(f"s_mov_b32 s{sOff}, s{sOff0}")
    e(f"s_mov_b32 s{sX+2}, 1280")
    e(f"s_mov_b32 s{sX+3}, 0x20000")
    e(f"s_sub_u32 s{sWq+2}, {640*8192}, s{sT3}")
    e(f"s_mov_b32 s{sWq+3}, 0x20000")
    e(f"s_mov_b32 s{sK+2}, 0x100000")
    e(f"s_mov_b32 s{sK+3}, 0x20000")
    e(f"s_mul_i32 s{sSpin}, s{sW}, 320")
    e(f"s_cmp_eq_u32 s{sBr}, 0")
    e("s_waitcnt lgkmcnt(0)")
    e("s_cselect_b64 s[4:5], s[4:5], s[14:15]")
    e("s_cselect_b64 s[10:11], s[10:11], s[20:21]")
    e("s_cselect_b64 s[6:7], s[6:7], s[16:17]")
    e("s_cselect_b64 s[8:9], s[8:9], s[18:19]")
    e("s_cselect_b64 s[12:13], s[12:13], s[22:23]")
    e(f"s_add_u32 s{sX}, s4, s{sT2}")
    e(f"s_addc_u32 s{sX+1}, s5, 0")
    e(f"s_add_u32 s{sWq}, s10, s{sT3}")
    e(f"s_addc_u32 s{sWq+1}, s11, 0")
    def setup():
        e(f"s_mul_i32 s{sT}, s{sH}, 163840")
        e(f"s_add_u32 s{sWo}, s12, s{sT}")
        e(f"s_addc_u32 s{sWo+1}, s13, 0")
        e(f"s_mov_b32 s{sWo+2}, 163840")
        e(f"s_mov_b32 s{sWo+3}, 0x20000")
        e(f"s_mul_i32 s{sT}, s{sG}, {20*4096}")
        e(f"s_add_u32 s{sIn}, s28, s{sT}")
        e(f"s_addc_u32 s{sIn+1}, s29, 0")
        e(f"s_mov_b32 s{sIn+2}, {20*4096}")
        e(f"s_mov_b32 s{sIn+3}, 0x20000")
        if not nonce:
            e(f"s_mov_b32 s{sDbg}, s26")
            e(f"s_mov_b32 s{sDbg+1}, s27")
            e(f"s_mov_b32 s{sDbg+2}, 256")
            e(f"s_mov_b32 s{sDbg+3}, 0x20000")
        e(f"s_mov_b32 s{sOut}, s24")
        e(f"s_mov_b32 s{sOut+1}, s25")
        e(f"s_mov_b32 s{sOut+2}, 10240")
        e(f"s_mov_b32 s{sOut+3}, 0x20000")
        e(f"s_cmp_lt_u32 s{sH}, 20")
        e(f"s_cselect_b32 s{sCons}, 1, 0")
        e(f"s_cmp_eq_u32 s{sW}, 3")
        e(f"s_cselect_b32 s{sCons}, s{sCons}, 0")
        if womode == "burst": e(f"s_add_u32 s{sWoIt}, s{sW}, {wo0}")
        if sigspread:
            e(f"s_mul_i32 s{sT}, s{sH}, 43")
            e(f"s_lshr_b32 s{sT}, s{sT}, 8")
            e(f"s_mul_i32 s{sT}, s{sT}, 6")
            e(f"s_sub_u32 s{sSigIt}, s{sH}, s{sT}")
            e(f"s_add_u32 s{sSigIt}, s{sSigIt}, 1")
            e(f"s_cmp_eq_u32 s{sCons}, 0")
            e(f"s_cselect_b32 s{sSigIt}, 99, s{sSigIt}")
            e(f"s_and_b32 s{sChkIt}, s{sH}, 3")
            e(f"s_add_u32 s{sChkIt}, s{sChkIt}, 2")
            e(f"s_cmp_eq_u32 s{sW}, 0")
            e(f"s_cselect_b32 s{sChkIt}, s{sChkIt}, 99")
            e(f"v_mov_b32 v{vFlag}, 0")
        e(f"v_mul_u32_u24 v{vOffW}, {8*1280}, v{vT0}")
        e(f"v_add_u32 v{vOffW}, v{vOffW}, v{vT3}")
        e(f"v_and_b32 v{vS}, 1, v{vLane}")
        e(f"v_cmp_eq_u32 vcc, 1, v{vS}")
        e(f"v_mov_b32 v{vT1}, 0x0000ffff")
        e(f"v_mov_b32 v{vT2}, 0xffff0000")
        e(f"v_cndmask_b32 v{vP}, v{vT1}, v{vT2}, vcc")
        e(f"v_mov_b32 v{vT1}, 0x0c0c0100")
        e(f"v_mov_b32 v{vT2}, 0x01000c0c")
        e(f"v_cndmask_b32 v{vMax}, v{vT1}, v{vT2}, vcc")
        e(f"v_mov_b32 v{vT1}, 0x0c0c0302")
        e(f"v_mov_b32 v{vT2}, 0x03020c0c")
        e(f"v_cndmask_b32 v{vL}, v{vT1}, v{vT2}, vcc")
        e(f"v_mov_b32 v{vT1}, 0x0c0c0c0c")
        for i in range(4):
            e(f"s_mov_b32 s{sM+2*i}, {hex(0x00030003 << (2*i))}")
            e(f"s_mov_b32 s{sM+2*i+1}, {hex(0x00030003 << (2*i))}")
        for i in range(4):
            m = f"s[{sM+2*i}:{sM+2*i+1}]"
            e(f"v_cndmask_b32 v{vMask+i}, 0, v{vP}, {m}")
            e(f"v_cndmask_b32 v{vSelE+i}, v{vT1}, v{vMax}, {m}")
            e(f"v_cndmask_b32 v{vSelO+i}, v{vT1}, v{vL}, {m}")
        for t in range(4):
            e(f"s_mov_b32 s{sM+2*t}, {hex(0x11111111 << t)}")
            e(f"s_mov_b32 s{sM+2*t+1}, {hex(0x11111111 << t)}")
        for i in range(4): e(f"v_mov_b32 v{vAcc+i}, 0")
        e(f"v_mov_b32 v{vMax}, 0xff800000")
        e(f"v_mov_b32 v{vL}, 0")
        e(f"v_mov_b32 v{vC}, {hex(f2u(128 ** -0.5 * math.log2(math.e)))}")
        e(f"s_lshl_b32 s{sT}, s{sW}, 12")
        e(f"s_add_u32 s{sT}, s{sT}, {L_S}")
        e(f"v_lshl_add_u32 v{vLdsS}, v{vLane}, 2, s{sT}")
        e(f"s_lshl_b32 s{sT}, s{sW}, 9")
        e(f"v_lshlrev_b32 v{vLdsA}, 1, v{vT3}")
        e(f"v_lshl_add_u32 v{vLdsA}, v{vT0}, 4, v{vLdsA}")
        e(f"v_add_u32 v{vLdsA}, s{sT}, v{vLdsA}")
    def xsel(r, dst):
        sel = vSelE if r % 2 == 0 else vSelO
        for i in range(4):
            e(f"v_perm_b32 v{dst+i}, v{vX+r//2}, v{vX+r//2}, v{sel+i}")
    nk = 0
    if flow is not None:
        Ws, (fa, fbk), Wk, nb = flow
        assert womode != "early"
        vm = VM(e)
        if nonce:
            e(f"s_lshl_b32 s{sWqO}, s{sG}, 7")
            e(f"s_add_u32 s{sWqO}, s{sWqO}, {8*20*4096}")
            e(f"s_add_u32 s{sDbg}, s28, s{sWqO}")
            e(f"s_addc_u32 s{sDbg+1}, s29, 0")
            e(f"s_mov_b32 s{sDbg+2}, 4")
            e(f"s_mov_b32 s{sDbg+3}, 0x20000")
            e(f"buffer_load_dword v{vFlag}, off, {srd(sDbg)}, 0 sc1"); vm.issue("n")
        if nonce: e("s_branch L_noclear0")
        e(f"s_cmp_lt_u32 s{sH}, 20")
        e(f"s_cbranch_scc0 L_noclear0")
        e(f"s_cmp_eq_u32 s{sW}, 3")
        e(f"s_cbranch_scc0 L_noclear0")
        e(f"s_mul_i32 s{sWqO}, s{sG}, {20*4096}")
        e(f"s_add_u32 s{sIn}, s28, s{sWqO}")
        e(f"s_addc_u32 s{sIn+1}, s29, 0")
        e(f"s_mov_b32 s{sIn+2}, {20*4096}")
        e(f"s_mov_b32 s{sIn+3}, 0x20000")
        e(f"s_lshl_b32 s{sWqO}, s{sH}, 12")
        for i in range(4): e(f"v_mov_b32 v{vD+i}, -1")
        for i in range(4):
            e(f"buffer_store_dwordx4 {vr(vD)}, v{vOffV}, {srd(sIn)}, s{sWqO} offen offset:{1024*i} sc0 sc1")
        e("L_noclear0:")
        for i in range(5):
            e(f"buffer_load_dwordx4 {vr(vX+4*i)}, v{vT2}, {srd(sX)}, s{sSpin} offen offset:{16*i}"); vm.issue("x")
        e(f"v_mov_b32 v{vOffWq}, v{vOffW}")
        e(f"s_mul_i32 s{sWqO}, s{sW}, {160*8192}")
        e(f"s_add_u32 s{sK}, s6, s{sT}")
        e(f"s_addc_u32 s{sK+1}, s7, 0")
        e(f"s_add_u32 s{sV}, s8, s{sT}")
        e(f"s_addc_u32 s{sV+1}, s9, 0")
        soffs()
        ops = []; r = 0; k = 0
        while r < 40:
            for _ in range(fa):
                if r < 40: ops.append(("wq", r)); r += 1
            for _ in range(fbk):
                if r < 40 and k < D: ops.append(("k", k)); k += 1
        nwq_ops = len(ops)
        st = dict(done=0, setup=False, nsel=0)
        def mfmas():
            live = set(vm.ops)
            while st["done"] < 40 and f"wq{st['done']}" in issued and f"wq{st['done']}" not in live:
                r = st["done"]
                if st["nsel"] == 0:
                    xsel(0, vA); st["nsel"] = 1
                if r < 39: xsel(r+1, vA + 4*((r+1) % 2))
                else: e("s_nop 1")
                c = "0" if r == 0 else vr(vD)
                e(f"v_mfma_f32_16x16x32_bf16 {vr(vD)}, {vr(vA+4*(r%2))}, {ar(4*r)}, {c}")
                st["done"] += 1
        issued = set()
        def limit(Wn):
            if len(vm.ops) >= Wn:
                if not st["setup"]:
                    stamp(1); setup(); e(f"s_mul_i32 s{sT2}, s{sW}, {32*1280}"); st["setup"] = True
                e(f"s_waitcnt vmcnt({Wn-1})")
                vm.ops = vm.ops[len(vm.ops)-(Wn-1):] if Wn > 1 else []
        def put(op):
            if op[0] == "wq":
                e(f"buffer_load_dwordx4 {ar(4*op[1])}, v{vOffWq}, {srd(sWq)}, s{sWqO} offen {polW}")
                if op[1] < 39: e(f"s_add_u32 s{sWqO}, s{sWqO}, 8192")
            else: ringload(op[1])
            vm.issue(f"{op[0]}{op[1]}"); issued.add(f"{op[0]}{op[1]}")
        for op in ops:
            limit(Ws + (5 if not st["setup"] else 0)); put(op); mfmas()
        Wn = Ws
        while st["done"] < 40:
            Wn = max(Wk, Wn - 2)
            if k < D:
                limit(Wn); put(("k", k)); k += 1
            else:
                vm.wait("wq39")
            mfmas()
        for _ in range(nb):
            if k < D: put(("k", k)); k += 1
        nk = k
        stamp(2)
    else:
        vm = VM(e)
        if nonce:
            e(f"s_lshl_b32 s{sWqO}, s{sG}, 7")
            e(f"s_add_u32 s{sWqO}, s{sWqO}, {8*20*4096}")
            e(f"s_add_u32 s{sDbg}, s28, s{sWqO}")
            e(f"s_addc_u32 s{sDbg+1}, s29, 0")
            e(f"s_mov_b32 s{sDbg+2}, 4")
            e(f"s_mov_b32 s{sDbg+3}, 0x20000")
            e(f"buffer_load_dword v{vFlag}, off, {srd(sDbg)}, 0 sc1"); vm.issue("n")
        for i in range(5):
            e(f"buffer_load_dwordx4 {vr(vX+4*i)}, v{vT2}, {srd(sX)}, s{sSpin} offen offset:{16*i}"); vm.issue("x")
        e(f"s_mul_i32 s{sT2}, s{sW}, {160*8192}")
        e(f"s_add_u32 s{sK}, s6, s{sT}")
        e(f"s_addc_u32 s{sK+1}, s7, 0")
        e(f"s_add_u32 s{sV}, s8, s{sT}")
        e(f"s_addc_u32 s{sV+1}, s9, 0")
        soffs()
        def kpre():
            nonlocal nk
            ringload(nk); vm.issue(f"k{nk}"); nk += 1
        a, b = ilv
        r = 0
        KFIRST = min(D, kfirst)
        while r < 40:
            for _ in range(a):
                if r < 40:
                    e(f"buffer_load_dwordx4 {ar(4*r)}, v{vOffW}, {srd(sWq)}, s{sT2} offen {polW}"); vm.issue(f"wq{r}")
                    if r < 39: e(f"s_add_u32 s{sT2}, s{sT2}, 8192")
                    r += 1
            for _ in range(b):
                if nk < KFIRST: kpre()
        while nk < KFIRST: kpre()
        stamp(1)
        setup()
        e(f"s_mul_i32 s{sT2}, s{sW}, {32*1280}")
        vm.wait("x")
        xsel(0, vA)
        for r in range(40):
            if r < 39: xsel(r+1, vA + 4*((r+1) % 2))
            else: e("s_nop 1")
            vm.wait(f"wq{r}")
            c = "0" if r == 0 else vr(vD)
            e(f"v_mfma_f32_16x16x32_bf16 {vr(vD)}, {vr(vA+4*(r%2))}, {ar(4*r)}, {c}")
            if nk < D and vm.room() > 0 and (kfirst > 0 or r >= 40 - D): kpre()
            if womode == "early":
                woload(r); vm.issue(f"wo{r}")
        assert nk == D
        stamp(2)
        e(f"s_cmp_eq_u32 s{sCons}, 0")
        e("s_cbranch_scc1 L_noclear" if not nonce else "s_branch L_noclear")
        assert vm.room() >= 4
        e(f"s_lshl_b32 s{sT}, s{sH}, 12")
        for i in range(4): e(f"v_mov_b32 v{vX+i}, -1")
        for i in range(4):
            e(f"buffer_store_dwordx4 {vr(vX)}, v{vOffV}, {srd(sIn)}, s{sT} offen offset:{1024*i} sc0 sc1")
        e("L_noclear:")
    e("s_nop 7")
    e("s_mov_b32 exec_hi, 0")
    e(f"ds_write_b128 v{vLdsA}, {vr(vD)} offset:{L_Q}")
    e("s_mov_b32 exec_hi, -1")
    if fb:
        e(f"v_mov_b32 v{vCtl}, {fb['c0'] | ((NIT - fb['n0']) << 8)}")
        e(f"v_mov_b32 v{vT1}, {L_CTL}")
        e(f"ds_write_b32 v{vT1}, v{vCtl}")
    e(f"v_lshrrev_b32 v{vT1}, 2, v{vLane}")
    e(f"v_lshlrev_b32 v{vT1}, 5, v{vT1}")
    e("s_waitcnt lgkmcnt(0)")
    e("s_barrier")
    for w in range(4):
        e(f"ds_read_b128 {vr(vX+8*w)}, v{vT1} offset:{L_Q + 512*w}")
        e(f"ds_read_b128 {vr(vX+8*w+4)}, v{vT1} offset:{L_Q + 512*w + 16}")
    e("s_waitcnt lgkmcnt(4)")
    for j in range(8): e(f"v_add_f32 v{vX+j}, v{vX+j}, v{vX+8+j}")
    e("s_waitcnt lgkmcnt(0)")
    for j in range(8): e(f"v_add_f32 v{vX+16+j}, v{vX+16+j}, v{vX+24+j}")
    for j in range(8): e(f"v_add_f32 v{vX+j}, v{vX+j}, v{vX+16+j}")
    for i in range(4): e(f"v_cvt_pk_bf16_f32 v{vX+8+i}, v{vX+2*i}, v{vX+2*i+1}")
    for t in range(4):
        for i in range(4):
            e(f"v_cndmask_b32 v{vQ+4*t+i}, 0, v{vX+8+i}, s[{sM+2*t}:{sM+2*t+1}]")
    if flow is not None:
        while nk < D:
            e(f"s_waitcnt vmcnt({flow[2]-1})")
            ringload(nk); nk += 1
    e(f"s_mov_b32 s{sIt}, 0")
    stamp(3)

    PATS = [0x00, 0x01, 0x11, 0x25, 0x55, 0x5b, 0x77, 0x7f]
    TAB = sum(p << (8 * i) for i, p in enumerate(PATS))
    def patterns():
        e(f"s_min_u32 s{sT}, s{sC}, 7")
        e(f"s_lshl_b32 s{sT}, s{sT}, 3")
        e(f"s_lshr_b64 s[{sTab+2}:{sTab+3}], s[{sTab}:{sTab+1}], s{sT}")
        e(f"s_and_b32 s{sP5}, s{sTab+2}, 0xff")
        e(f"s_mul_i32 s{sP5}, s{sP5}, 0x01010101")
        e(f"s_max_u32 s{sT}, s{sC}, 8")
        e(f"s_sub_u32 s{sT}, s{sT}, 8")
        e(f"s_min_u32 s{sT3}, s{sT}, 7")
        e(f"s_lshl_b32 s{sT3}, s{sT3}, 3")
        e(f"s_lshr_b64 s[{sTab+2}:{sTab+3}], s[{sTab}:{sTab+1}], s{sT3}")
        e(f"s_and_b32 s{sP6}, s{sTab+2}, 0xff")
        e(f"s_mul_i32 s{sP6}, s{sP6}, 0x01010101")
        e(f"s_cmp_ge_u32 s{sT}, 8")
        e(f"s_cselect_b32 s{sP6}, -1, s{sP6}")
        e(f"s_cmp_ge_u32 s{sC}, 8")
        e(f"s_cselect_b32 s{sP5}, -1, s{sP5}")
    def fb_top(tag, toff):
        e(f"v_readfirstlane_b32 s{sC}, v{vCtl}")
        e(f"s_lshr_b32 s{sUp}, s{sC}, 8")
        e(f"s_and_b32 s{sC}, s{sC}, 0xff")
        patterns()
        e(f"s_add_u32 s{sT}, s{sIt}, {toff}")
        e(f"s_lshr_b32 s{sT3}, {fb['mask']}, s{sT}")
        e(f"s_and_b32 s{sChk}, s{sT3}, 1")
        e(f"s_lshr_b32 s{sT3}, s{sT}, {fb.get('wsh', 1)}")
        e(f"s_and_b32 s{sT3}, s{sT3}, 3")
        e(f"s_cmp_eq_u32 s{sT3}, s{sW}")
        e(f"s_cselect_b32 s{sChk}, s{sChk}, 0")
        e(f"s_cmp_eq_u32 s{sChk}, 0")
        e(f"s_cbranch_scc1 L_{tag}_notk")
        e(f"s_lshl_b32 s{sT}, s{sT}, 2")
        e(f"v_mov_b32 v{vRank}, 1")
        e("s_mov_b64 exec, 1")
        e(f"buffer_atomic_add v{vRank}, off, {srd(sDbg)}, s{sT} offset:64 sc0 sc1")
        e("s_mov_b64 exec, -1")
        e(f"L_{tag}_notk:")
    def fb_mid(tag, g, endgame):
        e(f"s_cmp_eq_u32 s{sChk}, 0")
        e(f"s_cbranch_scc1 L_{tag}_nomid")
        e(f"v_readfirstlane_b32 s{sT}, v{vRank}")
        e(f"s_mul_i32 s{sT3}, s{sT}, {g}")
        e(f"s_lshr_b32 s{sT3}, s{sT3}, 7")
        e(f"s_add_u32 s{sT3}, s{sT3}, {fb['c0'] - g}")
        if endgame:
            upto = NIT - fb['n0']
            e(f"s_mov_b32 s{sC}, {upto}")
            for thr in fb['thr']:
                e(f"s_cmp_ge_u32 s{sT}, {thr}")
                e(f"s_subb_u32 s{sC}, s{sC}, 0")
        else:
            e(f"s_mov_b32 s{sC}, {NIT}")
        e(f"s_lshl_b32 s{sC}, s{sC}, 8")
        e(f"s_or_b32 s{sT3}, s{sT3}, s{sC}")
        e(f"v_mov_b32 v{vRank}, s{sT3}")
        e(f"v_mov_b32 v{vT1}, {L_CTL}")
        e(f"ds_write_b32 v{vT1}, v{vRank}")
        e(f"L_{tag}_nomid:")
    def fb_end():
        e(f"v_mov_b32 v{vT1}, {L_CTL}")
        e(f"ds_read_b32 v{vCtl}, v{vT1}")
    def slotwait(tag, s, extra):
        e(f"s_waitcnt vmcnt({5 + extra})")
        e(f"s_bitcmp1_b32 s{sP6}, {s}")
        e(f"s_cbranch_scc1 L_{tag}_w{s}")
        e(f"s_waitcnt vmcnt({4 + extra})")
        e(f"s_bitcmp1_b32 s{sP5}, {s}")
        e(f"s_cbranch_scc1 L_{tag}_w{s}")
        e(f"s_waitcnt vmcnt({3 + extra})")
        e(f"L_{tag}_w{s}:")
    def wcnt(Wn, s):
        return int(math.floor((s + 1) * Wn + 1e-9) - math.floor(s * Wn + 1e-9)) - 1
    def kloop(tag, Wn, pol=None):
        e(f"L_k{tag}:")
        e(f"s_add_u32 s{sOff}, s{sOff}, {step}")
        if rot: e(f"s_and_b32 s{sOff}, s{sOff}, 0xfffff")
        if fb:
            e("s_waitcnt lgkmcnt(0)")
            fb_top(f"k{tag}", 0)
        if womode == "burst":
            e(f"s_cmp_lg_u32 s{sIt}, s{sWoIt}")
            e(f"s_cbranch_scc1 L_k{tag}_nowo")
            if max(Wn, 1) > 23 or wo0 == 0: e("s_waitcnt vmcnt(23)")
            for r in range(40): woload(r)
            e(f"L_k{tag}_nowo:")
        if womode == "spread":
            assert NIT == 8
            def tree(lo, bit):
                if bit < 0:
                    for T in range(5):
                        r = lo * 5 + T
                        e(f"buffer_load_dwordx4 {ar(4*r)}, v{vOffW}, {srd(sWo)}, s{sT2} offen offset:{T*256} {polWo}")
                    if lo != 7: e(f"s_branch L_k{tag}_wodone")
                    return
                e(f"s_bitcmp1_b32 s{sIt}, {bit}")
                e(f"s_cbranch_scc1 L_k{tag}_wo{lo + (1 << bit)}_{bit}")
                tree(lo, bit - 1)
                e(f"L_k{tag}_wo{lo + (1 << bit)}_{bit}:")
                tree(lo + (1 << bit), bit - 1)
            tree(0, 2)
            e(f"L_k{tag}_wodone:")
            e(f"s_add_u32 s{sT2}, s{sT2}, 1280")
        e(f"s_cmp_lg_u32 s{sIt}, {NIT-1}")
        e(f"s_cbranch_scc1 L_k{tag}_go")
        e(f"s_mov_b32 s{sK}, s{sV}")
        e(f"s_mov_b32 s{sK+1}, s{sV+1}")
        e(f"s_mov_b32 s{sOff}, s{sOff0}")
        e(f"v_mov_b32 v{vOffC}, v{vOffV}")
        for j in range(1, nv): e(f"v_add_u32 v{vOffC+j}, {j*hs}, v{vOffV}")
        if not sigspread and not nonce:
            e(f"s_cmp_eq_u32 s{sCons}, 0")
            e(f"s_cbranch_scc1 L_k{tag}_go")
            e(f"s_lshl_b32 s{sT}, s{sG}, 2")
            e(f"v_mov_b32 v{vT0}, 1")
            e("s_mov_b64 exec, 1")
            e(f"buffer_atomic_add v{vT0}, off, {srd(sDbg)}, s{sT} sc1")
            e("s_mov_b64 exec, -1")
        e(f"L_k{tag}_go:")
        if sigspread:
            e(f"s_cmp_lg_u32 s{sIt}, s{sSigIt}")
            e(f"s_cbranch_scc1 L_k{tag}_nosig")
            e(f"s_lshl_b32 s{sT}, s{sG}, 2")
            e(f"v_mov_b32 v{vT0}, 1")
            e("s_mov_b64 exec, 1")
            e(f"buffer_atomic_add v{vT0}, off, {srd(sDbg)}, s{sT} sc1")
            e("s_mov_b64 exec, -1")
            e(f"L_k{tag}_nosig:")
        soffs()
        e(f"s_add_u32 s{sIt}, s{sIt}, 1")
        for u in range(SUB):
            for s16 in range(16):
                s = u * 16 + s16
                b, t = s16 // 4, s16 % 4
                extra = 5 if (womode == "spread" and s <= wcnt(Wn, s)) else 0
                if fb:
                    if s == 20: fb_mid(f"k{tag}", fb['gk'], False)
                    slotwait(f"k{tag}", s, extra + fb.get('relax', lambda s: 0)(s))
                else:
                    e(f"s_waitcnt vmcnt({min(wcnt(Wn, s) + extra, D - 1 + extra)})")
                c = "0" if t == 0 else vr(vD+4*b)
                e(f"v_mfma_f32_16x16x32_bf16 {vr(vD+4*b)}, {vr(vRing+4*s)}, {vr(vQ+4*t)}, {c}")
                ringload(s, pol)
            for r in range(4):
                for k in range(4):
                    cc = (r + k) % 4
                    ror = (4 * (r - cc)) % 16
                    ctl = "quad_perm:[0,1,2,3]" if ror == 0 else f"row_ror:{ror}"
                    if k == 0:
                        e(f"v_mov_b32_dpp v{vS}, v{vD+4*r+cc} {ctl} row_mask:0xf bank_mask:{hex(1<<r)}")
                    else:
                        e(f"v_add_f32_dpp v{vS}, v{vD+4*r+cc}, v{vS} {ctl} row_mask:0xf bank_mask:{hex(1<<r)}")
            e(f"v_max_f32 v{vMax}, v{vMax}, v{vS}")
            e(f"ds_write_b32 v{vLdsS}, v{vS} offset:{256*u}")
        e(f"v_add_u32 v{vLdsS}, {256*SUB}, v{vLdsS}")
        if fb: fb_end()
        e(f"s_cmp_lt_u32 s{sIt}, {NIT}")
        e(f"s_cbranch_scc1 L_k{tag}")

    def transition():
        e(f"v_subrev_u32 v{vLdsS}, {256*16}, v{vLdsS}")
        e("s_waitcnt lgkmcnt(0)")
        e(f"ds_read_b32 v{vSn}, v{vLdsS}")
        for n in (8, 4, 2, 1):
            e("s_nop 1")
            e(f"v_max_f32_dpp v{vMax}, v{vMax}, v{vMax} row_ror:{n} row_mask:0xf bank_mask:0xf")
        e(f"v_mov_b32 v{vT0}, v{vMax}")
        e("s_nop 1")
        e(f"v_permlane16_swap_b32 v{vMax}, v{vT0}")
        e("s_nop 0")
        e(f"v_max_f32 v{vMax}, v{vMax}, v{vT0}")
        e(f"v_mov_b32 v{vT0}, v{vMax}")
        e("s_nop 1")
        e(f"v_permlane32_swap_b32 v{vMax}, v{vT0}")
        e("s_nop 0")
        e(f"v_max_f32 v{vMax}, v{vMax}, v{vT0}")
        e(f"v_mul_f32 v{vMc}, v{vMax}, v{vC}")
        if nonce:
            e(f"v_add_u32 v{vFlag}, 0x01010101, v{vFlag}")
            for j in range(4): e(f"v_bfe_u32 v{vTag+j}, v{vFlag}, {8*j}, 8")
        e(f"s_mov_b32 s{sIt}, 0")

    def vloop(tag, Wn, pol=None, upto=None, ctl=False):
        if upto is None: upto = NIT
        def asel(s):
            dst = vA + 4 * (s % 2)
            for i in range(4):
                e(f"v_and_b32_dpp v{dst+i}, v{vP}, v{vMask+i} row_newbcast:{s} row_mask:0xf bank_mask:0xf")
        e(f"L_v{tag}:")
        e(f"s_add_u32 s{sOff}, s{sOff}, {step}")
        if rot: e(f"s_and_b32 s{sOff}, s{sOff}, 0xfffff")
        if ctl:
            e("s_waitcnt lgkmcnt(0)")
            fb_top(f"v{tag}", NIT)
        e(f"s_cmp_lg_u32 s{sIt}, {NIT-1}")
        e(f"s_cbranch_scc1 L_v{tag}_go")
        e(f"s_mov_b32 s{sK+2}, 0")
        if not sigspread and not nonce:
            e(f"s_lshl_b32 s{sT}, s{sG}, 2")
            e(f"buffer_load_dword v{vFlag}, off, {srd(sDbg)}, s{sT} sc1")
        e(f"L_v{tag}_go:")
        if sigspread and tag != "b":
            e(f"s_cmp_lg_u32 s{sIt}, s{sChkIt}")
            e(f"s_cbranch_scc1 L_v{tag}_nochk")
            e(f"s_lshl_b32 s{sT}, s{sG}, 2")
            e(f"buffer_load_dword v{vFlag}, off, {srd(sDbg)}, s{sT} sc1")
            e(f"L_v{tag}_nochk:")
        soffs()
        e(f"s_add_u32 s{sIt}, s{sIt}, 1")
        for u in range(SUB):
            e("s_waitcnt lgkmcnt(0)")
            e(f"v_fma_f32 v{vT0}, v{vSn}, v{vC}, -v{vMc}")
            e(f"v_add_u32 v{vLdsS}, 256, v{vLdsS}")
            e(f"v_exp_f32 v{vT0}, v{vT0}")
            e(f"ds_read_b32 v{vSn}, v{vLdsS}")
            e(f"v_cvt_pk_bf16_f32 v{vP}, v{vT0}, v{vT0}")
            e(f"v_add_f32 v{vL}, v{vL}, v{vT0}")
            e("s_nop 0")
            asel(0)
            for s16 in range(16):
                s = u * 16 + s16
                if s16 < 15: asel(s16+1)
                else: e("s_nop 0")
                if ctl:
                    if s == 20: fb_mid(f"v{tag}", fb['gv'], True)
                    slotwait(f"v{tag}", s, fb.get('relax', lambda s: 0)(s))
                else:
                    e(f"s_waitcnt vmcnt({wcnt(Wn, s)})")
                e(f"v_mfma_f32_16x16x32_bf16 {vr(vAcc)}, {vr(vA+4*(s16%2))}, {vr(vRing+4*s)}, {vr(vAcc)}")
                ringload(s, pol)
        if ctl:
            fb_end()
            e(f"s_cmp_lt_u32 s{sIt}, s{sUp}")
            e(f"s_cbranch_scc1 L_v{tag}")
            e(f"s_cmp_ge_u32 s{sIt}, {NIT}")
            e(f"s_cbranch_scc1 L_tail")
        else:
            e(f"s_cmp_lt_u32 s{sIt}, {upto}")
            e(f"s_cbranch_scc1 L_v{tag}")

    if Wv is None: Wv = W
    if pols is not None:
        e(f"s_cmp_eq_u32 s{sBr}, 1")
        e("s_cbranch_scc1 L_odd")
        kloop("e", W, pols[0]); transition(); stamp(4); vloop("e", Wv, pols[1])
        e("s_branch L_tail")
        e("L_odd:")
        kloop("o", W, pols[2]); transition(); stamp(4); vloop("o", Wv, pols[3])
        e("L_tail:")
    elif fb:
        assert D == 32 and womode == "spread"
        e(f"s_mov_b32 s{sTab}, {hex(TAB & 0xffffffff)}")
        e(f"s_mov_b32 s{sTab+1}, {hex(TAB >> 32)}")
        kloop("", 5); transition(); stamp(4); vloop("a", 5, ctl=True); vloop("b", Wend)
        e("L_tail:")
    elif Wend is not None:
        kloop("", W); transition(); stamp(4); vloop("a", Wv, upto=NIT-nend); vloop("b", Wend)
    elif Wodd is None:
        kloop("", W); transition(); stamp(4); vloop("", Wv)
    else:
        e(f"s_getreg_b32 s{sT}, hwreg(HW_REG_XCC_ID)")
        e(f"s_bitcmp1_b32 s{sT}, 0")
        e("s_cbranch_scc1 L_odd")
        kloop("e", W); transition(); stamp(4); vloop("e", W)
        e("s_branch L_tail")
        e("L_odd:")
        kloop("o", Wodd); transition(); stamp(4); vloop("o", Wodd)
        e("L_tail:")
    stamp(5)
    for n in (8, 4, 2, 1):
        e(f"v_add_f32_dpp v{vL}, v{vL}, v{vL} row_ror:{n} row_mask:0xf bank_mask:0xf")
        e("s_nop 1")
    e(f"v_mov_b32 v{vT0}, v{vL}")
    e("s_mov_b32 exec_hi, 0")
    e(f"ds_write_b128 v{vLdsA}, {vr(vAcc)} offset:{L_O}")
    e("s_mov_b32 exec_hi, -1")
    e(f"v_permlane16_swap_b32 v{vL}, v{vT0}")
    e(f"s_lshl_b32 s{sT}, s{sW}, 3")
    e(f"v_add_f32 v{vL}, v{vL}, v{vT0}")
    e(f"v_mov_b32 v{vT1}, s{sT}")
    e(f"v_mov_b32 v{vT0}, v{vL}")
    e("s_nop 1")
    e(f"v_permlane32_swap_b32 v{vL}, v{vT0}")
    e(f"v_mov_b32 v{vT2}, v{vMc}")
    e(f"v_add_f32 v{vT3}, v{vL}, v{vT0}")
    e(f"ds_write_b64 v{vT1}, v[{vT2}:{vT3}] offset:{L_ML}")
    if not nonce:
        e(f"s_cmp_lg_u32 s{sW}, 0")
        e("s_cbranch_scc1 L_flag_ok")
        if not sigspread: e(f"s_waitcnt vmcnt({D})")
        e(f"s_mov_b32 s{sSpin}, 0")
        e("L_flag_chk:")
        e(f"v_readfirstlane_b32 s{sT}, v{vFlag}")
        e(f"s_add_u32 s{sSpin}, s{sSpin}, 1")
        e(f"s_cmp_ge_u32 s{sT}, 20")
        e("s_cbranch_scc1 L_flag_ok")
        e(f"s_cmp_ge_u32 s{sSpin}, 0x400000")
        e("s_cbranch_scc1 L_flag_ok")
        e(f"s_lshl_b32 s{sT}, s{sG}, 2")
        e(f"buffer_load_dword v{vFlag}, off, {srd(sDbg)}, s{sT} sc1")
        e("s_waitcnt vmcnt(0)")
        e("s_branch L_flag_chk")
        e("L_flag_ok:")
    e(f"v_lshrrev_b32 v{vT0}, 4, v{vLane}")
    e(f"s_lshl_b32 s{sT}, s{sW}, 7")
    e(f"v_lshl_add_u32 v{vT1}, v{vT0}, 5, s{sT}")
    e(f"v_mov_b32 v{vT0}, 0")
    e("s_waitcnt lgkmcnt(0)")
    e("s_barrier")
    tstamp(1)
    e(f"ds_read_b128 {vr(vML)}, v{vT0} offset:{L_ML}")
    e(f"ds_read_b128 {vr(vML+4)}, v{vT0} offset:{L_ML+16}")
    for w in range(4):
        e(f"ds_read_b128 {vr(vX+8*w)}, v{vT1} offset:{L_O + 512*w}")
        e(f"ds_read_b128 {vr(vX+8*w+4)}, v{vT1} offset:{L_O + 512*w + 16}")
    e("s_waitcnt lgkmcnt(8)" if stamps != 2 else "s_waitcnt lgkmcnt(0)")
    e(f"v_max3_f32 v{vT0}, v{vML}, v{vML+2}, v{vML+4}")
    e(f"v_max_f32 v{vT0}, v{vT0}, v{vML+6}")
    for w in range(4): e(f"v_sub_f32 v{vML+2*w}, v{vML+2*w}, v{vT0}")
    for w in range(4): e(f"v_exp_f32 v{vML+2*w}, v{vML+2*w}")
    e("s_nop 0")
    e(f"v_mul_f32 v{vT0}, v{vML}, v{vML+1}")
    for w in range(1, 4): e(f"v_fmac_f32 v{vT0}, v{vML+2*w}, v{vML+2*w+1}")
    e(f"v_rcp_f32 v{vT0}, v{vT0}")
    e("s_waitcnt lgkmcnt(0)")
    for w in range(4): e(f"v_mul_f32 v{vML+2*w}, v{vML+2*w}, v{vT0}")
    for j in range(8): e(f"v_mul_f32 v{vX+j}, v{vX+j}, v{vML}")
    for w in range(1, 4):
        for j in range(8): e(f"v_fmac_f32 v{vX+j}, v{vX+8*w+j}, v{vML+2*w}")
    for i in range(4): e(f"v_cvt_pk_bf16_f32 v{vX+i}, v{vX+2*i}, v{vX+2*i+1}")
    tstamp(2)
    xsel(0, vA)
    for rr in range(8):
        if rr < 7: xsel(rr+1, vA + 4*((rr+1) % 2))
        else: e("s_nop 0")
        if rr == 0: e("s_nop 0")
        for T in range(5):
            c = "0" if rr == 0 else vr(vOAcc+4*T)
            e(f"v_mfma_f32_16x16x32_bf16 {vr(vOAcc+4*T)}, {vr(vA+4*(rr%2))}, {ar(4*(rr*5+T))}, {c}")
    tstamp(3)
    e(f"s_lshl_b32 s{sT}, s{sW}, 11")
    e(f"v_add_u32 v{vT0}, s{sT}, v{vLdsA}")
    e(f"v_lshlrev_b32 v{vT1}, 4, v0")
    e(f"v_lshrrev_b32 v{vT2}, 3, v0")
    e(f"v_lshlrev_b32 v{vT2}, 12, v{vT2}")
    e(f"v_and_b32 v{vT3}, 7, v0")
    e(f"v_lshl_add_u32 v{vT2}, v{vT3}, 4, v{vT2}")
    e(f"s_lshl_b32 s{sT2}, s{sH}, 7")
    e("s_mov_b32 exec_hi, 0")
    for T in range(5):
        e(f"ds_write_b128 v{vT0}, {vr(vOAcc+4*T)} offset:{L_OUT + 512*T}")
    e("s_mov_b32 exec_hi, -1")
    e("s_waitcnt lgkmcnt(0)")
    e("s_barrier")
    tstamp(4)
    e(f"s_cmp_eq_u32 s{sW}, 3")
    e("s_cbranch_scc1 L_consume")
    for w in range(4):
        e(f"ds_read_b128 {vr(vX+4*w)}, v{vT1} offset:{L_OUT + 2560*w}")
    e(f"v_mov_b32 v{vT3}, -2" if not nonce else f"s_mov_b32 s{sT3}, 0xffffff00")
    e("s_waitcnt lgkmcnt(2)" if stamps != 2 else "s_waitcnt lgkmcnt(0)")
    for j in range(4): e(f"v_add_f32 v{vX+j}, v{vX+j}, v{vX+4+j}")
    e("s_waitcnt lgkmcnt(0)")
    for j in range(4): e(f"v_add_f32 v{vX+8+j}, v{vX+8+j}, v{vX+12+j}")
    for j in range(4): e(f"v_add_f32 v{vX+j}, v{vX+j}, v{vX+8+j}")
    for j in range(4):
        if nonce: e(f"v_and_or_b32 v{vX+j}, v{vX+j}, s{sT3}, v{vTag+j}")
        else: e(f"v_min_u32 v{vX+j}, v{vX+j}, v{vT3}")
    e(f"buffer_store_dwordx4 {vr(vX)}, v{vT2}, {srd(sIn)}, s{sT2} offen {polSt}")
    stamp(6)
    e("s_branch L_fin")
    e("L_consume:")
    e(f"s_cmp_eq_u32 s{sCons}, 0")
    e("s_cbranch_scc1 L_fin")
    e(f"s_lshl_b32 s{sT}, s{sH}, 12")
    e(f"s_mov_b32 s{sSpin}, 0")
    if nonce:
        e(f"v_mov_b32 v{vT2}, 0x0c0c0400")
        e(f"v_mov_b32 v{vT3}, 0x04000c0c")
        e(f"s_mov_b32 s{sT3}, 0xffffff00")
    e("L_poll:")
    for i in range(4):
        e(f"buffer_load_dwordx4 {vr(vX+4*i)}, v{vOffV}, {srd(sIn)}, s{sT} offen offset:{1024*i} {polLd}")
    e(f"s_add_u32 s{sSpin}, s{sSpin}, 1")
    if nonce:
        for i in range(4):
            e(f"s_waitcnt vmcnt({3-i})")
            e(f"v_perm_b32 v{vT0}, v{vX+4*i+1}, v{vX+4*i}, v{vT2}")
            e(f"v_perm_b32 v{vT1}, v{vX+4*i+3}, v{vX+4*i+2}, v{vT3}")
            e(f"v_or_b32 v{vT0}, v{vT0}, v{vT1}")
            e(f"v_xor_b32 v{vX+16+i}, v{vT0}, v{vFlag}")
            for j in range(4): e(f"v_and_b32 v{vX+4*i+j}, s{sT3}, v{vX+4*i+j}")
        e(f"v_or3_b32 v{vT0}, v{vX+16}, v{vX+17}, v{vX+18}")
        e(f"v_or_b32 v{vT0}, v{vT0}, v{vX+19}")
        e(f"v_cmp_ne_u32 vcc, 0, v{vT0}")
    else:
        e("s_waitcnt vmcnt(0)")
        e(f"v_max3_u32 v{vT0}, v{vX}, v{vX+1}, v{vX+2}")
        e(f"v_max3_u32 v{vT1}, v{vX+3}, v{vX+4}, v{vX+5}")
        e(f"v_max3_u32 v{vT2}, v{vX+6}, v{vX+7}, v{vX+8}")
        e(f"v_max3_u32 v{vT3}, v{vX+9}, v{vX+10}, v{vX+11}")
        e(f"v_max3_u32 v{vT0}, v{vT0}, v{vX+12}, v{vX+13}")
        e(f"v_max3_u32 v{vT1}, v{vT1}, v{vX+14}, v{vX+15}")
        e(f"v_max3_u32 v{vT0}, v{vT0}, v{vT2}, v{vT3}")
        e(f"v_max_u32 v{vT0}, v{vT0}, v{vT1}")
        e(f"v_cmp_eq_u32 vcc, -1, v{vT0}")
    e(f"s_cmp_ge_u32 s{sSpin}, 0x200000")
    e("s_cbranch_scc1 L_polled")
    e("s_cbranch_vccnz L_poll")
    e("L_polled:")
    for j in range(4): e(f"v_add_f32 v{vX+j}, v{vX+j}, v{vX+4+j}")
    for j in range(4): e(f"v_add_f32 v{vX+8+j}, v{vX+8+j}, v{vX+12+j}")
    for j in range(4): e(f"v_add_f32 v{vX+j}, v{vX+j}, v{vX+8+j}")
    e("s_nop 1")
    for j in range(4): e(f"v_add_f32_dpp v{vX+j}, v{vX+j}, v{vX+j} row_ror:8 row_mask:0xf bank_mask:0xf")
    for j in range(4): e(f"v_mov_b32 v{vX+4+j}, v{vX+j}")
    e("s_nop 1")
    for j in range(4): e(f"v_permlane16_swap_b32 v{vX+j}, v{vX+4+j}")
    for j in range(4): e(f"v_add_f32 v{vX+j}, v{vX+j}, v{vX+4+j}")
    for j in range(4): e(f"v_mov_b32 v{vX+4+j}, v{vX+j}")
    e("s_nop 1")
    for j in range(4): e(f"v_permlane32_swap_b32 v{vX+j}, v{vX+4+j}")
    for j in range(4): e(f"v_add_f32 v{vX+j}, v{vX+j}, v{vX+4+j}")
    e(f"s_mul_i32 s{sT}, s{sB}, 2560")
    e(f"s_mul_i32 s{sT2}, s{sBr}, 1280")
    e(f"s_add_u32 s{sT}, s{sT}, s{sT2}")
    e(f"s_lshl_b32 s{sT2}, s{sH}, 6")
    e(f"s_add_u32 s{sT}, s{sT}, s{sT2}")
    e(f"v_cvt_pk_bf16_f32 v{vX}, v{vX}, v{vX+1}")
    e(f"v_cvt_pk_bf16_f32 v{vX+1}, v{vX+2}, v{vX+3}")
    e(f"v_lshlrev_b32 v{vT0}, 3, v{vLane}")
    e("s_mov_b64 exec, 0xff")
    e(f"buffer_store_dwordx2 v[{vX}:{vX+1}], v{vT0}, {srd(sOut)}, s{sT} offen")
    if nonce:
        e(f"s_cmp_lg_u32 s{sH}, 0")
        e("s_cbranch_scc1 L_nobump")
        e("s_mov_b64 exec, 1")
        e(f"buffer_store_dword v{vFlag}, off, {srd(sDbg)}, 0 sc0 sc1")
        e("L_nobump:")
    e("s_mov_b64 exec, -1")
    stamp(6)
    e("L_fin:")
    if stamps:
        e("s_waitcnt vmcnt(0) lgkmcnt(0)")
        e(f"s_memrealtime s[{sSt+14}:{sSt+15}]")
        e(f"s_getreg_b32 s{sT3}, hwreg(HW_REG_XCC_ID)")
        e(f"s_add_u32 s{sIn}, s28, 0x100000")
        e(f"s_addc_u32 s{sIn+1}, s29, 0")
        e(f"s_mov_b32 s{sIn+2}, 0x20000")
        e(f"s_lshl_b32 s{sT}, s2, 2")
        e(f"s_add_u32 s{sT}, s{sT}, s{sW}")
        e(f"s_lshl_b32 s{sT}, s{sT}, 7")
        e("s_waitcnt lgkmcnt(0)")
        e(f"v_mov_b32 v{vT0}, 0")
        e("s_mov_b64 exec, 1")
        for i in range(8):
            e(f"v_mov_b32 v{vX+2*i}, s{sSt+2*i}")
            e(f"v_mov_b32 v{vX+2*i+1}, s{sSt+2*i+1}")
        e(f"v_mov_b32 v{vX+16}, s{sT3}")
        for i in range(4):
            e(f"buffer_store_dwordx4 {vr(vX+4*i)}, v{vT0}, {srd(sIn)}, s{sT} offen offset:{16*i}")
        e(f"buffer_store_dword v{vX+16}, v{vT0}, {srd(sIn)}, s{sT} offen offset:64")
    e("L_end:")
    e("s_endpgm")
    e('.section .rodata,"a"')
    e(".p2align 6")
    e(f".amdhsa_kernel {KNAME}")
    e(f"  .amdhsa_next_free_vgpr {ACC_OFF + NA}")
    e("  .amdhsa_next_free_sgpr 102")
    e(f"  .amdhsa_accum_offset {ACC_OFF}")
    e("  .amdhsa_group_segment_fixed_size 0")
    e("  .amdhsa_kernarg_size 104")
    e("  .amdhsa_user_sgpr_count 2")
    e("  .amdhsa_user_sgpr_kernarg_segment_ptr 1")
    e("  .amdhsa_system_sgpr_workgroup_id_x 1")
    e("  .amdhsa_float_denorm_mode_32 3")
    e(".end_amdhsa_kernel")
    return "\n".join(o) + "\n"

if __name__ == "__main__":
    cfg = eval("dict(" + (sys.argv[2] if len(sys.argv) > 2 else "") + ")")
    open(sys.argv[1], "w").write(gen(**cfg))
```

```python
import sys, math, struct
KNAME = "concat_heads__gqa_block_cached__gqa_block_cached__decode_kernel"

HEADER = """; Kernarg layout for this problem (104 bytes, ptrs only, base s[0:1]):
;   offset  96: d_ws      workspace (per-head partial outputs handed to the reducing workgroups)
;
; One workgroup (4 waves) per (branch, batch, head).  The workgroup walks its K slab, then its V slab,
"""

def f2u(x):
    return struct.unpack("<I", struct.pack("<f", x))[0]

def brev5(s):
    return int(f"{s:05b}"[::-1], 2)

class VM:
    def __init__(self, e): self.e = e; self.ops = []
    def issue(self, tag):
        self.ops.append(tag); assert len(self.ops) <= 63, len(self.ops)
    def wait(self, tag):
        i = max(k for k, t in enumerate(self.ops) if t == tag)
        self.e(f"s_waitcnt vmcnt({len(self.ops) - 1 - i})")
        self.ops = self.ops[i+1:]
    def room(self): return 63 - len(self.ops)

def gen(pol="nt", polW="nt", polWo="nt", F=4, W=5, Wv=None, Wboost=None, ilv=(2, 1), kfirst=17, stamps=0,
        fb=None, polSt="sc0 sc1", polLd="sc0 sc1", polOut="", comb=1, poll=None, catch=None, polX="", polN="sc1", wolast=0, polWl=None, mimic=1):
    o = []
    def e(s): o.append(s)
    D, NIT = 32, 8
    if Wv is None: Wv = W
    L_Q = 0
    L_O = 2048
    L_ML = 4096
    L_CTL = 4160
    L_OUT = 4224
    L_S = 4224 + 10240
    LDS = L_S + 16384 + 512
    sO = 14
    sC, sUp = 22, 23
    sW, sH, sB, sBr, sG, sChk = 30, 31, 32, 33, 34, 35
    sK, sWq, sWo, sX, sIn, sN, sOut = 36, 40, 44, 48, 52, 56, 60
    sV = 64
    sIt, sOff, sT, sT2, sT3, sCons, sSpin, sOff0 = 66, 67, 68, 69, 70, 71, 72, 73
    sM = 74
    sSt = 82
    sRank = 98
    def srd(b): return f"s[{b}:{b+3}]"
    vLane, vOffV, vOffW, vC, vMc, vT0, vT1, vT2, vT3 = 1, 2, 3, 4, 5, 6, 7, 8, 9
    vMask, vSelE, vSelO = 10, 14, 18
    vS, vMax, vL, vFlag, vLdsS, vLdsA, vCtl = 22, 23, 24, 25, 26, 27, 28
    vA = 32
    vAcc = 40
    vQ = 44
    vD = 60
    vP, vPn, vSn = 44, 46, 48
    vTag = 52
    vBeta = 56
    vOAcc = 60
    vX = 80
    vML = 112
    vOffC = 120
    vRing = 124
    ACC_OFF = vRing + 4 * D
    NA = 160
    def vr(b, n=4): return f"v[{b}:{b+n-1}]"
    def ar(b, n=4): return f"a[{b}:{b+n-1}]"
    def stamp(i):
        if stamps == 1 or (stamps == 2 and i not in (1, 2, 3, 4)): e(f"s_memrealtime s[{sSt+2*i}:{sSt+2*i+1}]")
    def tstamp(i):
        if stamps == 2: e(f"s_memrealtime s[{sSt+2*i}:{sSt+2*i+1}]")
    wbase, step = F * 1024, D * 4096
    def off(s): return (s // F) * F * 4096 + (s % F) * 1024
    his = sorted(set(off(s) // 4096 * 4096 for s in range(D)))
    hs = his[1] - his[0]
    ns = min(len(his), 8); nv = len(his) // ns
    def soffs():
        e(f"s_mov_b32 s{sO}, s{sOff}")
        for i in range(1, ns): e(f"s_add_u32 s{sO+i}, s{sOff}, {i*nv*hs}")
    def ringload(s):
        k = his.index(off(s) // 4096 * 4096)
        e(f"buffer_load_dwordx4 {vr(vRing+4*s)}, v{vOffC+k%nv}, {srd(sK)}, s{sO+k//nv} offen offset:{off(s)%4096} {pol}")
    def xsel(r, dst):
        sel = vSelE if r % 2 == 0 else vSelO
        for i in range(4):
            e(f"v_perm_b32 v{dst+i}, v{vX+r//2}, v{vX+r//2}, v{sel+i}")
    def wave_reduce(op, v, t):
        for n in (8, 4, 2, 1):
            e(f"{op}_dpp v{v}, v{v}, v{v} row_ror:{n} row_mask:0xf bank_mask:0xf")
            e("s_nop 1" if n != 1 else "s_nop 0")
        e(f"v_mov_b32 v{t}, v{v}")
        e("s_nop 1")
        e(f"v_permlane16_swap_b32 v{v}, v{t}")
        e("s_nop 0")
        e(f"{op} v{v}, v{v}, v{t}")
        e(f"v_mov_b32 v{t}, v{v}")
        e("s_nop 1")
        e(f"v_permlane32_swap_b32 v{v}, v{t}")
        e("s_nop 0")
        e(f"{op} v{v}, v{v}, v{t}")

    e(HEADER.rstrip("\n"))
    e(f"; @launch grid=(256,1,1) block=(256,1,1) lds={LDS}")
    e('.amdgcn_target "amdgcn-amd-amdhsa--gfx950"')
    e(".text")
    e(f".globl {KNAME}")
    e(".p2align 8")
    e(f".type {KNAME},@function")
    e(f"{KNAME}:")
    stamp(0)
    e("s_cmp_ge_u32 s2, 256")
    e("s_cbranch_scc1 L_end")
    e("s_load_dwordx16 s[4:19], s[0:1], 0")
    e("s_load_dwordx8 s[20:27], s[0:1], 64")
    e("s_load_dwordx2 s[28:29], s[0:1], 96")
    e(f"v_lshrrev_b32 v{vT0}, 6, v0")
    e(f"v_and_b32 v{vLane}, 63, v0")
    e(f"v_readfirstlane_b32 s{sW}, v{vT0}")
    e(f"s_and_b32 s{sH}, s2, 7")
    e(f"s_bfe_u32 s{sT}, s2, 0x20005")
    e(f"s_lshl_b32 s{sT}, s{sT}, 3")
    e(f"s_add_u32 s{sH}, s{sH}, s{sT}")
    e(f"s_lshr_b32 s{sBr}, s2, 7")
    e(f"s_bfe_u32 s{sB}, s2, 0x20003")
    e(f"s_lshl_b32 s{sG}, s{sBr}, 2")
    e(f"s_add_u32 s{sG}, s{sG}, s{sB}")
    e(f"v_lshrrev_b32 v{vT0}, 4, v{vLane}")
    e(f"v_and_b32 v{vT1}, 15, v{vLane}")
    e(f"v_mul_u32_u24 v{vT2}, 80, v{vT0}")
    e(f"v_lshlrev_b32 v{vT3}, 4, v{vT1}")
    e(f"v_mul_u32_u24 v{vOffW}, {40*8192}, v{vT0}")
    e(f"v_add_u32 v{vOffW}, v{vOffW}, v{vT3}")
    e(f"v_lshlrev_b32 v{vOffV}, 4, v{vLane}")
    e(f"v_lshrrev_b32 v{vOffC}, 2, v{vT1}")
    e(f"v_lshlrev_b32 v{vOffC}, 8, v{vOffC}")
    e(f"v_lshl_add_u32 v{vOffC}, v{vT0}, 6, v{vOffC}")
    e(f"v_and_b32 v{vS}, 3, v{vLane}")
    e(f"v_lshl_add_u32 v{vOffC}, v{vS}, 4, v{vOffC}")
    for j in range(1, nv): e(f"v_add_u32 v{vOffC+j}, {j*hs}, v{vOffC}")
    e(f"s_lshl_b32 s{sT}, s{sB}, 5")
    e(f"s_add_u32 s{sT}, s{sT}, s{sH}")
    e(f"s_lshl_b32 s{sT}, s{sT}, 20")
    e(f"s_mul_i32 s{sT2}, s{sB}, 1280")
    e(f"s_lshl_b32 s{sT3}, s{sH}, 8")
    e(f"s_mul_i32 s{sOff0}, s{sW}, {wbase}")
    e(f"s_mov_b32 s{sOff}, s{sOff0}")
    e(f"s_mov_b32 s{sX+2}, 1280")
    e(f"s_mov_b32 s{sX+3}, 0x20000")
    e(f"s_sub_u32 s{sWq+2}, {640*8192}, s{sT3}")
    e(f"s_mov_b32 s{sWq+3}, 0x20000")
    e(f"s_mov_b32 s{sK+2}, 0x100000")
    e(f"s_mov_b32 s{sK+3}, 0x20000")
    e(f"s_mul_i32 s{sSpin}, s{sW}, 320")
    e(f"s_mul_i32 s3, s{sW}, {160*8192}")
    e(f"s_cmp_eq_u32 s{sBr}, 0")
    e("s_waitcnt lgkmcnt(0)")
    e("s_cselect_b64 s[4:5], s[4:5], s[14:15]")
    e("s_cselect_b64 s[10:11], s[10:11], s[20:21]")
    e("s_cselect_b64 s[6:7], s[6:7], s[16:17]")
    e("s_cselect_b64 s[8:9], s[8:9], s[18:19]")
    e("s_cselect_b64 s[12:13], s[12:13], s[22:23]")
    e(f"s_add_u32 s{sX}, s4, s{sT2}")
    e(f"s_addc_u32 s{sX+1}, s5, 0")
    e(f"s_add_u32 s{sWq}, s10, s{sT3}")
    e(f"s_addc_u32 s{sWq+1}, s11, 0")
    vm = VM(e)
    for i in range(5):
        e(f"buffer_load_dwordx4 {vr(vX+4*i)}, v{vT2}, {srd(sX)}, s{sSpin} offen offset:{16*i} {polX}"); vm.issue("x")
    e(f"s_add_u32 s{sK}, s6, s{sT}")
    e(f"s_addc_u32 s{sK+1}, s7, 0")
    e(f"s_add_u32 s{sV}, s8, s{sT}")
    e(f"s_addc_u32 s{sV+1}, s9, 0")
    soffs()
    nk = [0]
    def kpre():
        ringload(nk[0]); vm.issue(f"k{nk[0]}"); nk[0] += 1
    a, b = ilv
    r = 0
    while r < 40:
        for _ in range(a):
            if r < 40:
                e(f"buffer_load_dwordx4 {ar(4*r)}, v{vOffW}, {srd(sWq)}, s3 offen {polW}"); vm.issue(f"wq{r}")
                if r < 39: e(f"s_add_u32 s3, s3, 8192")
                r += 1
        for _ in range(b):
            if nk[0] < kfirst: kpre()
    while nk[0] < kfirst: kpre()
    e(f"s_lshl_b32 s{sT}, s{sG}, 7")
    e(f"s_add_u32 s{sT}, s{sT}, {8*20*4096}")
    e(f"s_add_u32 s{sN}, s28, s{sT}")
    e(f"s_addc_u32 s{sN+1}, s29, 0")
    e(f"s_mov_b32 s{sN+2}, 4")
    e(f"s_mov_b32 s{sN+3}, 0x20000")
    e(f"buffer_load_dword v{vFlag}, off, {srd(sN)}, 0 {polN}"); vm.issue("n")
    stamp(1)
    e(f"s_mul_i32 s{sT}, s{sH}, 163840")
    e(f"s_add_u32 s{sWo}, s12, s{sT}")
    e(f"s_addc_u32 s{sWo+1}, s13, 0")
    e(f"s_mov_b32 s{sWo+2}, 163840")
    e(f"s_mov_b32 s{sWo+3}, 0x20000")
    e(f"s_mul_i32 s{sT}, s{sG}, {20*4096}")
    e(f"s_add_u32 s{sIn}, s28, s{sT}")
    e(f"s_addc_u32 s{sIn+1}, s29, 0")
    e(f"s_mov_b32 s{sIn+2}, {20*4096}")
    e(f"s_mov_b32 s{sIn+3}, 0x20000")
    e(f"s_mov_b32 s{sOut}, s24")
    e(f"s_mov_b32 s{sOut+1}, s25")
    e(f"s_mov_b32 s{sOut+2}, 10240")
    e(f"s_mov_b32 s{sOut+3}, 0x20000")
    e(f"s_cmp_lt_u32 s{sH}, 20")
    e(f"s_cselect_b32 s{sCons}, 1, 0")
    e(f"s_cmp_eq_u32 s{sW}, 3")
    e(f"s_cselect_b32 s{sCons}, s{sCons}, 0")
    e(f"v_mul_u32_u24 v{vOffW}, {8*1280}, v{vT0}")
    e(f"v_add_u32 v{vOffW}, v{vOffW}, v{vT3}")
    e(f"v_and_b32 v{vS}, 1, v{vLane}")
    e(f"v_cmp_eq_u32 vcc, 1, v{vS}")
    e(f"v_mov_b32 v{vT1}, 0x0000ffff")
    e(f"v_mov_b32 v{vT2}, 0xffff0000")
    e(f"v_cndmask_b32 v{vC}, v{vT1}, v{vT2}, vcc")
    e(f"v_mov_b32 v{vT1}, 0x0c0c0100")
    e(f"v_mov_b32 v{vT2}, 0x01000c0c")
    e(f"v_cndmask_b32 v{vMax}, v{vT1}, v{vT2}, vcc")
    e(f"v_mov_b32 v{vT1}, 0x0c0c0302")
    e(f"v_mov_b32 v{vT2}, 0x03020c0c")
    e(f"v_cndmask_b32 v{vL}, v{vT1}, v{vT2}, vcc")
    e(f"v_mov_b32 v{vT1}, 0x0c0c0c0c")
    for i in range(4):
        e(f"s_mov_b32 s{sM+2*i}, {hex(0x00030003 << (2*i))}")
        e(f"s_mov_b32 s{sM+2*i+1}, {hex(0x00030003 << (2*i))}")
    for i in range(4):
        m = f"s[{sM+2*i}:{sM+2*i+1}]"
        e(f"v_cndmask_b32 v{vMask+i}, 0, v{vC}, {m}")
        e(f"v_cndmask_b32 v{vSelE+i}, v{vT1}, v{vMax}, {m}")
        e(f"v_cndmask_b32 v{vSelO+i}, v{vT1}, v{vL}, {m}")
    for t in range(4):
        e(f"s_mov_b32 s{sM+2*t}, {hex(0x11111111 << t)}")
        e(f"s_mov_b32 s{sM+2*t+1}, {hex(0x11111111 << t)}")
    for i in range(4): e(f"v_mov_b32 v{vAcc+i}, 0")
    e(f"v_mov_b32 v{vMax}, 0xff800000")
    e(f"v_mov_b32 v{vL}, 0")
    e(f"v_mov_b32 v{vC}, {hex(f2u(math.log2(math.e) * (1.0 if mimic else 128 ** -0.5)))}")
    e(f"s_lshl_b32 s{sT}, s{sW}, 12")
    e(f"s_add_u32 s{sT}, s{sT}, {L_S}")
    e(f"v_lshl_add_u32 v{vLdsS}, v{vLane}, 2, s{sT}")
    e(f"s_lshl_b32 s{sT}, s{sW}, 9")
    e(f"v_lshlrev_b32 v{vLdsA}, 1, v{vT3}")
    e(f"v_lshl_add_u32 v{vLdsA}, v{vT0}, 4, v{vLdsA}")
    e(f"v_add_u32 v{vLdsA}, s{sT}, v{vLdsA}")
    e(f"s_mul_i32 s{sT2}, s{sW}, {32*1280}")
    vm.wait("x")
    xsel(0, vA)
    for r in range(40):
        if r < 39: xsel(r+1, vA + 4*((r+1) % 2))
        else: e("s_nop 1")
        vm.wait(f"wq{r}")
        c = "0" if r == 0 else vr(vD)
        e(f"v_mfma_f32_16x16x32_bf16 {vr(vD)}, {vr(vA+4*(r%2))}, {ar(4*r)}, {c}")
        if nk[0] < D and vm.room() > 0: kpre()
    assert nk[0] == D
    stamp(2)
    if fb:
        e(f"v_mov_b32 v{vCtl}, {fb['c0'] | ((NIT - 1) << 8)}")
        e(f"v_mov_b32 v{vT2}, {L_CTL}")
        e(f"ds_write_b32 v{vT2}, v{vCtl}")
        e(f"s_mov_b32 s{sChk}, 0")
    e("s_nop 7")
    e("s_mov_b32 exec_hi, 0")
    e(f"ds_write_b128 v{vLdsA}, {vr(vD)} offset:{L_Q}")
    e("s_mov_b32 exec_hi, -1")
    e(f"v_lshrrev_b32 v{vT1}, 2, v{vLane}")
    e(f"v_lshlrev_b32 v{vT1}, 5, v{vT1}")
    e("s_waitcnt lgkmcnt(0)")
    e("s_barrier")
    for w in range(4):
        e(f"ds_read_b128 {vr(vX+8*w)}, v{vT1} offset:{L_Q + 512*w}")
        e(f"ds_read_b128 {vr(vX+8*w+4)}, v{vT1} offset:{L_Q + 512*w + 16}")
    e("s_waitcnt lgkmcnt(4)")
    for j in range(8): e(f"v_add_f32 v{vX+j}, v{vX+j}, v{vX+8+j}")
    e("s_waitcnt lgkmcnt(0)")
    for j in range(8): e(f"v_add_f32 v{vX+16+j}, v{vX+16+j}, v{vX+24+j}")
    for j in range(8): e(f"v_add_f32 v{vX+j}, v{vX+j}, v{vX+16+j}")
    for i in range(4): e(f"v_cvt_pk_bf16_f32 v{vX+8+i}, v{vX+2*i}, v{vX+2*i+1}")
    for t in range(4):
        for i in range(4):
            e(f"v_cndmask_b32 v{vQ+4*t+i}, 0, v{vX+8+i}, s[{sM+2*t}:{sM+2*t+1}]")
    if catch:
        e(f"s_and_b32 s{sT}, s{sH}, 3")
        e(f"s_cmp_eq_u32 s{sT}, 1")
        e(f"s_cselect_b32 s{sChk}, {catch[1]}, 0")
        if len(catch) > 2:
            e(f"s_cmp_eq_u32 s{sH}, 31")
            e(f"s_cselect_b32 s{sChk}, {catch[2]}, s{sChk}")
    e(f"s_mov_b32 s{sIt}, 0")
    stamp(3)

    def wcnt(Wn, s):
        base = math.floor(Wn + 1e-9); fr = Wn - base
        return base - 1 + int(math.floor((s + 1) * fr + 0.5 + 1e-9) - math.floor(s * fr + 0.5 + 1e-9))
    def slotwait(tag, s, Wn, ctl, extra5):
        x = lambda n: n + (5 if (extra5 and s <= n) else 0)
        if not ctl:
            if callable(Wn): Wn = Wn(s)
            if catch and tag == "k" and x(wcnt(catch[0], s)) > x(wcnt(Wn, s)):
                e(f"s_waitcnt vmcnt({x(wcnt(catch[0], s))})")
                e(f"s_cbranch_vccnz L_k_c{s}")
                e(f"s_waitcnt vmcnt({x(wcnt(Wn, s))})")
                e(f"L_k_c{s}:")
                return
            e(f"s_waitcnt vmcnt({x(wcnt(Wn, s))})"); return
        r = brev5(s)
        if r < fb.get("up", 16):
            e(f"s_waitcnt vmcnt({x(5)})")
            e(f"s_cmp_gt_u32 s{sC}, {32 + r}")
            e(f"s_cbranch_scc1 L_{tag}_w{s}")
            e(f"s_waitcnt vmcnt({x(4)})")
            e(f"L_{tag}_w{s}:")
        elif r >= 32 - fb.get("dn", 8):
            e(f"s_waitcnt vmcnt({x(4)})")
            e(f"s_cmp_gt_u32 s{sC}, {r}")
            e(f"s_cbranch_scc1 L_{tag}_w{s}")
            e(f"s_waitcnt vmcnt({x(3)})")
            e(f"L_{tag}_w{s}:")
        else:
            e(f"s_waitcnt vmcnt({x(4)})")
    def fb_top(tag, toff):
        e(f"v_readfirstlane_b32 s{sC}, v{vCtl}")
        e(f"s_cmp_eq_u32 s{sChk}, 0")
        e(f"s_cbranch_scc1 L_{tag}_nopost")
        g = fb["g"]
        e(f"s_and_b32 s{sT}, s{sChk}, 0xff")
        e(f"s_mul_i32 s{sT3}, s{sRank}, s{sT}")
        e(f"s_lshr_b32 s{sT3}, s{sT3}, 7")
        e(f"s_add_u32 s{sT3}, s{sT3}, {fb['c0']}")
        e(f"s_sub_u32 s{sT3}, s{sT3}, s{sT}")
        if "tail" in fb:
            thr, add = fb["tail"]
            e(f"s_cmp_ge_u32 s{sRank}, {thr}")
            e(f"s_cselect_b32 s{sT}, {add}, 0")
            e(f"s_add_u32 s{sT3}, s{sT3}, s{sT}")
        e(f"s_cmp_ge_u32 s{sRank}, {fb.get('bthr', 999)}")
        e(f"s_cselect_b32 s{sT}, {NIT - 2}, {NIT - 1}")
        e(f"s_lshl_b32 s{sT}, s{sT}, 8")
        e(f"s_or_b32 s{sT3}, s{sT3}, s{sT}")
        e(f"v_mov_b32 v{vT2}, {L_CTL}")
        e(f"v_mov_b32 v{vT3}, s{sT3}")
        e(f"ds_write_b32 v{vT2}, v{vT3}")
        e(f"s_mov_b32 s{sChk}, 0")
        e(f"L_{tag}_nopost:")
        e(f"s_lshr_b32 s{sUp}, s{sC}, 8")
        e(f"s_and_b32 s{sC}, s{sC}, 0xff")
        for t, gain in g.items():
            if not (toff <= t < toff + NIT): continue
            e(f"s_lshl_b32 s{sT}, s{sIt}, 2")
            e(f"s_add_u32 s{sT}, s{sT}, s{sW}")
            e(f"s_cmp_lg_u32 s{sT}, {(t - toff) * 4 + (t & 3)}")
            e(f"s_cbranch_scc1 L_{tag}_notk{t}")
            e(f"s_mov_b32 s{sRank}, 1")
            e(f"s_mov_b32 s{sChk}, {0x100 | gain}")
            e(f"s_atomic_add s{sRank}, s[26:27], {4*t} glc")
            e(f"L_{tag}_notk{t}:")
    def fb_mid():
        e(f"v_mov_b32 v{vT2}, {L_CTL}")
        e(f"ds_read_b32 v{vCtl}, v{vT2}")

    e("L_k:")
    e(f"s_add_u32 s{sOff}, s{sOff}, {step}")
    if fb:
        e("s_waitcnt lgkmcnt(0)")
        fb_top("k", 0)
    if catch:
        e(f"s_cmp_lt_u32 s{sIt}, s{sChk}")
        e("s_cselect_b64 vcc, -1, 0")
    def tree(lo, bit):
        if bit < 0:
            if lo < 8 - wolast:
                for T in range(5):
                    e(f"buffer_load_dwordx4 {ar(4*(lo*5+T))}, v{vOffW}, {srd(sWo)}, s{sT2} offen offset:{T*256} {polWo}")
                e(f"s_add_u32 s{sT2}, s{sT2}, 1280")
            if lo != 7: e("s_branch L_k_wodone")
            return
        e(f"s_bitcmp1_b32 s{sIt}, {bit}")
        e(f"s_cbranch_scc1 L_k_wo{lo + (1 << bit)}_{bit}")
        tree(lo, bit - 1)
        e(f"L_k_wo{lo + (1 << bit)}_{bit}:")
        tree(lo + (1 << bit), bit - 1)
    tree(0, 2)
    e("L_k_wodone:")
    e(f"s_cmp_lg_u32 s{sIt}, {NIT-1}")
    e("s_cbranch_scc1 L_k_go")
    e(f"s_mov_b32 s{sK}, s{sV}")
    e(f"s_mov_b32 s{sK+1}, s{sV+1}")
    e(f"s_mov_b32 s{sOff}, s{sOff0}")
    e(f"v_mov_b32 v{vOffC}, v{vOffV}")
    for j in range(1, nv): e(f"v_add_u32 v{vOffC+j}, {j*hs}, v{vOffV}")
    e("L_k_go:")
    soffs()
    e(f"s_add_u32 s{sIt}, s{sIt}, 1")
    for u in range(2):
        for s16 in range(16):
            s = u * 16 + s16
            b, t = s16 // 4, s16 % 4
            slotwait("k", s, W, fb, True)
            c = "0" if t == 0 else vr(vD+4*b)
            e(f"v_mfma_f32_16x16x32_bf16 {vr(vD+4*b)}, {vr(vRing+4*s)}, {vr(vQ+4*t)}, {c}")
            ringload(s)
        for r in range(4):
            for k in range(4):
                cc = (r + k) % 4
                ror = (4 * (r - cc)) % 16
                ctl = "quad_perm:[0,1,2,3]" if ror == 0 else f"row_ror:{ror}"
                if k == 0:
                    e(f"v_mov_b32_dpp v{vS}, v{vD+4*r+cc} {ctl} row_mask:0xf bank_mask:{hex(1<<r)}")
                else:
                    e(f"v_add_f32_dpp v{vS}, v{vD+4*r+cc}, v{vS} {ctl} row_mask:0xf bank_mask:{hex(1<<r)}")
        if mimic:
            e(f"v_cvt_pk_bf16_f32 v{vS}, v{vS}, v{vS}")
            e(f"v_lshlrev_b32 v{vS}, 16, v{vS}")
            e(f"v_mul_f32 v{vS}, {hex(f2u(128 ** -0.5))}, v{vS}")
            e(f"v_cvt_pk_bf16_f32 v{vS}, v{vS}, v{vS}")
            e(f"v_lshlrev_b32 v{vS}, 16, v{vS}")
        e(f"v_max_f32 v{vMax}, v{vMax}, v{vS}")
        e(f"ds_write_b32 v{vLdsS}, v{vS} offset:{256*u}")
        if fb and u == 0: fb_mid()
    e(f"v_add_u32 v{vLdsS}, 512, v{vLdsS}")
    e(f"s_cmp_lt_u32 s{sIt}, {NIT}")
    e("s_cbranch_scc1 L_k")

    def probs():
        for u in range(2): e(f"v_fma_f32 v{vT0+u}, v{vSn+u}, v{vC}, -v{vMc}")
        e(f"v_add_u32 v{vLdsS}, 512, v{vLdsS}")
        for u in range(2): e(f"v_exp_f32 v{vT0+u}, v{vT0+u}")
        for u in range(2): e(f"ds_read_b32 v{vSn+u}, v{vLdsS} offset:{256*u}")
        for u in range(2): e(f"v_cvt_pk_bf16_f32 v{vPn+u}, v{vT0+u}, v{vT0+u}")
        for u in range(2): e(f"v_add_f32 v{vL}, v{vL}, v{vT0+u}")
    e(f"v_subrev_u32 v{vLdsS}, {256*16}, v{vLdsS}")
    e("s_nop 0")
    for u in range(2): e(f"ds_read_b32 v{vSn+u}, v{vLdsS} offset:{256*u}")
    wave_reduce("v_max_f32", vMax, vT0)
    e(f"v_mul_f32 v{vMc}, v{vMax}, v{vC}")
    e(f"v_add_u32 v{vFlag}, 0x01010101, v{vFlag}")
    for j in range(4): e(f"v_bfe_u32 v{vTag+j}, v{vFlag}, {8*j}, 8")
    e("s_waitcnt lgkmcnt(0)")
    probs()
    e(f"s_mov_b32 s{sIt}, 0")
    stamp(4)

    def asel(u, s):
        dst = vA + 4 * (s % 2)
        for i in range(4):
            e(f"v_and_b32_dpp v{dst+i}, v{vP+u}, v{vMask+i} row_newbcast:{s} row_mask:0xf bank_mask:0xf")
    def vslots(tag, Wn, ctl, last):
        asel(0, 0)
        for s in range(32):
            u, s16 = s // 16, s % 16
            if s < 31: asel((s+1) // 16, (s+1) % 16)
            else: e("s_nop 0")
            if last: e(f"s_waitcnt vmcnt({31 - s + 5 * wolast})")
            else: slotwait(tag, s, Wn, ctl, False)
            e(f"v_mfma_f32_16x16x32_bf16 {vr(vAcc)}, {vr(vA+4*(s%2))}, {vr(vRing+4*s)}, {vr(vAcc)}")
            if not last: ringload(s)
            if ctl and s == 15: fb_mid()
    def vtrip(tag, Wn, ctl):
        e(f"L_{tag}:")
        e(f"s_add_u32 s{sOff}, s{sOff}, {step}")
        e("s_waitcnt lgkmcnt(0)")
        for u in range(2): e(f"v_mov_b32 v{vP+u}, v{vPn+u}")
        if ctl: fb_top(tag, NIT)
        probs()
        soffs()
        e(f"s_add_u32 s{sIt}, s{sIt}, 1")
        e(f"s_cmp_lg_u32 s{sIt}, {NIT-1}")
        e(f"s_cbranch_scc1 L_{tag}_go")
        wave_reduce("v_add_f32", vL, vT0)
        e(f"s_lshl_b32 s{sT}, s{sW}, 3")
        e(f"v_mov_b32 v{vT2}, v{vMc}")
        e(f"v_mov_b32 v{vT3}, v{vL}")
        e(f"v_mov_b32 v{vT1}, s{sT}")
        e(f"ds_write_b64 v{vT1}, v[{vT2}:{vT3}] offset:{L_ML}")
        e(f"L_{tag}_go:")
        vslots(tag, Wn, ctl, False)
    boost = Wboost is not None
    vtrip("va", Wv, fb)
    if fb and boost: e(f"s_cmp_lt_u32 s{sIt}, s{sUp}")
    else: e(f"s_cmp_lt_u32 s{sIt}, {NIT - 1 - (1 if boost else 0)}")
    e("s_cbranch_scc1 L_va")
    if boost:
        if fb:
            e(f"s_cmp_ge_u32 s{sIt}, {NIT-1}")
            e("s_cbranch_scc1 L_vlast")
        vtrip("vb", Wboost, None)
    e("L_vlast:")
    for rr in range(8 - wolast, 8):
        for T in range(5):
            e(f"buffer_load_dwordx4 {ar(4*(rr*5+T))}, v{vOffW}, {srd(sWo)}, s{sT2} offen offset:{T*256} {polWl if polWl is not None else polWo}")
        if rr < 7: e(f"s_add_u32 s{sT2}, s{sT2}, 1280")
    e(f"v_mov_b32 v{vT0}, 0")
    for u in range(2): e(f"v_mov_b32 v{vP+u}, v{vPn+u}")
    e("s_waitcnt lgkmcnt(0)")
    e("s_barrier")
    e(f"ds_read_b128 {vr(vML)}, v{vT0} offset:{L_ML}")
    e(f"ds_read_b128 {vr(vML+4)}, v{vT0} offset:{L_ML+16}")
    e(f"v_lshrrev_b32 v{vT1}, 4, v{vLane}")
    e(f"s_lshl_b32 s{sT}, s{sW}, 7")
    e(f"v_lshl_add_u32 v{vS}, v{vT1}, 5, s{sT}")
    if comb:
        e(f"v_and_b32 v{vT1}, 7, v{vLane}")
        e(f"v_lshl_add_u32 v{vS}, v{vT1}, 2, v{vS}")
    e(f"s_lshl_b32 s{sT}, s{sW}, 11")
    e(f"v_add_u32 v{vMax}, s{sT}, v{vLdsA}")
    e(f"v_lshlrev_b32 v{vLdsS}, 4, v0")
    e(f"v_lshrrev_b32 v{vCtl}, 3, v0")
    e(f"v_lshlrev_b32 v{vCtl}, 12, v{vCtl}")
    e(f"v_and_b32 v{vT1}, 7, v0")
    e(f"v_lshl_add_u32 v{vCtl}, v{vT1}, 4, v{vCtl}")
    e(f"s_lshl_b32 s{sT2}, s{sH}, 7")
    e(f"s_mov_b32 s{sT3}, 0xffffff00")
    e("s_waitcnt lgkmcnt(0)")
    e(f"v_max3_f32 v{vT0}, v{vML}, v{vML+2}, v{vML+4}")
    e(f"v_max_f32 v{vT0}, v{vT0}, v{vML+6}")
    for w in range(4): e(f"v_sub_f32 v{vML+2*w}, v{vML+2*w}, v{vT0}")
    for w in range(4): e(f"v_exp_f32 v{vML+2*w}, v{vML+2*w}")
    e("s_nop 0")
    e(f"v_mul_f32 v{vT0}, v{vML}, v{vML+1}")
    for w in range(1, 4): e(f"v_fmac_f32 v{vT0}, v{vML+2*w}, v{vML+2*w+1}")
    e(f"v_rcp_f32 v{vT0}, v{vT0}")
    e("s_nop 0")
    for w in range(4): e(f"v_mul_f32 v{vBeta+w}, v{vML+2*w}, v{vT0}")
    vslots("vl", None, None, True)
    stamp(5)
    e("s_nop 7")
    e("s_mov_b32 exec_hi, 0")
    e(f"ds_write_b128 v{vLdsA}, {vr(vAcc)} offset:{L_O}")
    e("s_mov_b32 exec_hi, -1")
    e("s_waitcnt lgkmcnt(0)")
    e("s_barrier")
    tstamp(1)
    if comb == 0:
        for w in range(4):
            e(f"ds_read_b128 {vr(vX+8*w)}, v{vS} offset:{L_O + 512*w}")
            e(f"ds_read_b128 {vr(vX+8*w+4)}, v{vS} offset:{L_O + 512*w + 16}")
        for w in range(4):
            e(f"s_waitcnt lgkmcnt({6 - 2*w})" if stamps != 2 else "s_waitcnt lgkmcnt(0)")
            for j in range(8):
                if w == 0: e(f"v_mul_f32 v{vX+j}, v{vX+j}, v{vBeta}")
                else: e(f"v_fmac_f32 v{vX+j}, v{vX+8*w+j}, v{vBeta+w}")
        for i in range(4): e(f"v_cvt_pk_bf16_f32 v{vX+i}, v{vX+2*i}, v{vX+2*i+1}")
        tstamp(2)
        xsel(0, vA)
        for rr in range(8):
            if rr < 7: xsel(rr+1, vA + 4*((rr+1) % 2))
            else: e("s_nop 0")
            for T in range(5):
                c = "0" if rr == 0 else vr(vOAcc+4*T)
                e(f"v_mfma_f32_16x16x32_bf16 {vr(vOAcc+4*T)}, {vr(vA+4*(rr%2))}, {ar(4*(rr*5+T))}, {c}")
    else:
        for w in range(4): e(f"ds_read_b32 v{vX+w}, v{vS} offset:{L_O + 512*w}")
        e("s_waitcnt lgkmcnt(2)" if stamps != 2 else "s_waitcnt lgkmcnt(0)")
        e(f"v_mul_f32 v{vX}, v{vX}, v{vBeta}")
        e(f"v_fmac_f32 v{vX}, v{vX+1}, v{vBeta+1}")
        e("s_waitcnt lgkmcnt(0)")
        e(f"v_fmac_f32 v{vX}, v{vX+2}, v{vBeta+2}")
        e(f"v_fmac_f32 v{vX}, v{vX+3}, v{vBeta+3}")
        e(f"v_cvt_pk_bf16_f32 v{vP}, v{vX}, v{vX}")
        tstamp(2)
        e("s_nop 1")
        asel(0, 0)
        for rr in range(8):
            if rr < 7: asel(0, rr+1)
            else: e("s_nop 0")
            for T in range(5):
                if rr >= 8 - wolast: e(f"s_waitcnt vmcnt({(7 - rr) * 5 + 4 - T})")
                c = "0" if rr == 0 else vr(vOAcc+4*T)
                e(f"v_mfma_f32_16x16x32_bf16 {vr(vOAcc+4*T)}, {vr(vA+4*(rr%2))}, {ar(4*(rr*5+T))}, {c}")
    tstamp(3)
    e("s_mov_b32 exec_hi, 0")
    e("s_nop 3")
    for T in range(5):
        e(f"ds_write_b128 v{vMax}, {vr(vOAcc+4*T)} offset:{L_OUT + 512*T}")
    e("s_mov_b32 exec_hi, -1")
    e("s_waitcnt lgkmcnt(0)")
    e("s_barrier")
    tstamp(4)
    e(f"s_cmp_eq_u32 s{sW}, 3")
    e("s_cbranch_scc1 L_consume")
    for w in range(4):
        e(f"ds_read_b128 {vr(vX+4*w)}, v{vLdsS} offset:{L_OUT + 2560*w}")
    e("s_waitcnt lgkmcnt(2)" if stamps != 2 else "s_waitcnt lgkmcnt(0)")
    for j in range(4): e(f"v_add_f32 v{vX+j}, v{vX+j}, v{vX+4+j}")
    e("s_waitcnt lgkmcnt(0)")
    for j in range(4): e(f"v_add_f32 v{vX+8+j}, v{vX+8+j}, v{vX+12+j}")
    for j in range(4): e(f"v_add_f32 v{vX+j}, v{vX+j}, v{vX+8+j}")
    for j in range(4): e(f"v_and_or_b32 v{vX+j}, v{vX+j}, s{sT3}, v{vTag+j}")
    e(f"buffer_store_dwordx4 {vr(vX)}, v{vCtl}, {srd(sIn)}, s{sT2} offen {polSt}")
    stamp(6)
    e("s_branch L_fin")
    e("L_consume:")
    e(f"s_cmp_eq_u32 s{sCons}, 0")
    e("s_cbranch_scc1 L_fin")
    e(f"s_lshl_b32 s{sT}, s{sH}, 12")
    e(f"s_mov_b32 s{sSpin}, 0")
    e(f"v_mov_b32 v{vT2}, 0x0c0c0400")
    e(f"v_mov_b32 v{vT3}, 0x04000c0c")
    e(f"s_mul_i32 s{sIt}, s{sB}, 2560")
    e(f"s_mul_i32 s{sT2}, s{sBr}, 1280")
    e(f"s_add_u32 s{sIt}, s{sIt}, s{sT2}")
    e(f"s_lshl_b32 s{sT2}, s{sH}, 6")
    e(f"s_add_u32 s{sIt}, s{sIt}, s{sT2}")
    e(f"v_lshlrev_b32 v{vS}, 3, v{vLane}")
    if poll is None:
        e("L_poll:")
        for i in range(4):
            e(f"buffer_load_dwordx4 {vr(vX+4*i)}, v{vOffV}, {srd(sIn)}, s{sT} offen offset:{1024*i} {polLd}")
        e(f"s_add_u32 s{sSpin}, s{sSpin}, 1")
        for i in range(4):
            e(f"s_waitcnt vmcnt({3-i})")
            e(f"v_perm_b32 v{vT0}, v{vX+4*i+1}, v{vX+4*i}, v{vT2}")
            e(f"v_perm_b32 v{vT1}, v{vX+4*i+3}, v{vX+4*i+2}, v{vT3}")
            for j in range(4): e(f"v_and_b32 v{vX+4*i+j}, s{sT3}, v{vX+4*i+j}")
            e(f"v_or_b32 v{vT0}, v{vT0}, v{vT1}")
            e(f"v_xor_b32 v{vX+16+i}, v{vT0}, v{vFlag}")
            if i == 1:
                for j in range(4): e(f"v_add_f32 v{vX+j}, v{vX+j}, v{vX+4+j}")
        e(f"v_or3_b32 v{vT0}, v{vX+16}, v{vX+17}, v{vX+18}")
        e(f"v_or_b32 v{vT0}, v{vT0}, v{vX+19}")
        e(f"v_cmp_ne_u32 vcc, 0, v{vT0}")
        e(f"s_cmp_ge_u32 s{sSpin}, 0x200000")
        e("s_cbranch_scc1 L_polled")
        e("s_cbranch_vccnz L_poll")
        e("L_polled:")
        for j in range(4): e(f"v_add_f32 v{vX+8+j}, v{vX+8+j}, v{vX+12+j}")
        for j in range(4): e(f"v_add_f32 v{vX+j}, v{vX+j}, v{vX+8+j}")
    else:
        kset, thr = poll
        sMiss = sM
        def pset(j): return vRing + 16 * j
        def issue(j):
            for i in range(4):
                e(f"s_mov_b64 exec, s[{sMiss+2*i}:{sMiss+2*i+1}]")
                e(f"buffer_load_dwordx4 {vr(pset(j)+4*i)}, v{vOffV}, {srd(sIn)}, s{sT} offen offset:{1024*i} {polLd}")
        def check(tag, j, left):
            for i in range(4):
                r = pset(j) + 4 * i
                e(f"s_mov_b64 exec, s[{sMiss+2*i}:{sMiss+2*i+1}]")
                e(f"s_cbranch_execz L_{tag}_{j}_{i}")
                e(f"s_waitcnt vmcnt({left + 3 - i})")
                e(f"v_perm_b32 v{vT0}, v{r+1}, v{r}, v{vT2}")
                e(f"v_perm_b32 v{vT1}, v{r+3}, v{r+2}, v{vT3}")
                e(f"v_or_b32 v{vT0}, v{vT0}, v{vT1}")
                e(f"v_cmp_eq_u32 vcc, v{vT0}, v{vFlag}")
                e(f"s_andn2_b64 s[{sMiss+2*i}:{sMiss+2*i+1}], exec, vcc")
                e("s_mov_b64 exec, vcc")
                for q in range(4): e(f"v_and_b32 v{vX+4*i+q}, s{sT3}, v{r+q}")
                e(f"L_{tag}_{j}_{i}:")
            e(f"s_or_b64 s[{sV}:{sV+1}], s[{sMiss}:{sMiss+1}], s[{sMiss+2}:{sMiss+3}]")
            e(f"s_or_b64 vcc, s[{sMiss+4}:{sMiss+5}], s[{sMiss+6}:{sMiss+7}]")
            e(f"s_or_b64 vcc, vcc, s[{sV}:{sV+1}]")
            e("s_cbranch_scc0 L_polled")
        for i in range(4): e(f"s_mov_b64 s[{sMiss+2*i}:{sMiss+2*i+1}], -1")
        if thr:
            e("L_poll1:")
            issue(0)
            e(f"s_add_u32 s{sSpin}, s{sSpin}, 1")
            check("p1", 0, 0)
            e(f"s_cmp_ge_u32 s{sSpin}, 0x200000")
            e("s_cbranch_scc1 L_polled")
            for i in range(4): e(f"s_bcnt1_i32_b64 s{sO+i}, s[{sMiss+2*i}:{sMiss+2*i+1}]")
            e(f"s_add_u32 s{sO}, s{sO}, s{sO+1}")
            e(f"s_add_u32 s{sO+2}, s{sO+2}, s{sO+3}")
            e(f"s_add_u32 s{sO}, s{sO}, s{sO+2}")
            e(f"s_cmp_gt_u32 s{sO}, {thr * 8}")
            e("s_cbranch_scc1 L_poll1")
        for j in range(kset): issue(j)
        e("L_poll2:")
        for j in range(kset):
            check("p2", j, 4 * (kset - 1))
            issue(j)
        e(f"s_add_u32 s{sSpin}, s{sSpin}, 1")
        e(f"s_cmp_lt_u32 s{sSpin}, 0x200000")
        e("s_cbranch_scc1 L_poll2")
        e("L_polled:")
        e("s_mov_b64 exec, -1")
        for j in range(4): e(f"v_add_f32 v{vX+j}, v{vX+j}, v{vX+4+j}")
        for j in range(4): e(f"v_add_f32 v{vX+8+j}, v{vX+8+j}, v{vX+12+j}")
        for j in range(4): e(f"v_add_f32 v{vX+j}, v{vX+j}, v{vX+8+j}")
    e("s_nop 1")
    for j in range(4): e(f"v_add_f32_dpp v{vX+j}, v{vX+j}, v{vX+j} row_ror:8 row_mask:0xf bank_mask:0xf")
    for j in range(4): e(f"v_mov_b32 v{vX+4+j}, v{vX+j}")
    e("s_nop 1")
    for j in range(4): e(f"v_permlane16_swap_b32 v{vX+j}, v{vX+4+j}")
    for j in range(4): e(f"v_add_f32 v{vX+j}, v{vX+j}, v{vX+4+j}")
    for j in range(4): e(f"v_mov_b32 v{vX+4+j}, v{vX+j}")
    e("s_nop 1")
    for j in range(4): e(f"v_permlane32_swap_b32 v{vX+j}, v{vX+4+j}")
    for j in range(4): e(f"v_add_f32 v{vX+j}, v{vX+j}, v{vX+4+j}")
    e(f"v_cvt_pk_bf16_f32 v{vX}, v{vX}, v{vX+1}")
    e(f"v_cvt_pk_bf16_f32 v{vX+1}, v{vX+2}, v{vX+3}")
    e("s_mov_b64 exec, 0xff")
    e(f"buffer_store_dwordx2 v[{vX}:{vX+1}], v{vS}, {srd(sOut)}, s{sIt} offen {polOut}")
    e(f"s_cmp_lg_u32 s{sH}, 0")
    e("s_cbranch_scc1 L_nobump")
    e("s_mov_b64 exec, 1")
    e(f"buffer_store_dword v{vFlag}, off, {srd(sN)}, 0 sc0 sc1")
    e("L_nobump:")
    e("s_mov_b64 exec, -1")
    stamp(6)
    e("L_fin:")
    if stamps:
        e("s_waitcnt vmcnt(0) lgkmcnt(0)")
        e(f"s_memrealtime s[{sSt+14}:{sSt+15}]")
        e(f"s_getreg_b32 s{sT3}, hwreg(HW_REG_XCC_ID)")
        e(f"s_add_u32 s{sIn}, s28, 0x100000")
        e(f"s_addc_u32 s{sIn+1}, s29, 0")
        e(f"s_mov_b32 s{sIn+2}, 0x20000")
        e(f"s_lshl_b32 s{sT}, s2, 2")
        e(f"s_add_u32 s{sT}, s{sT}, s{sW}")
        e(f"s_lshl_b32 s{sT}, s{sT}, 7")
        e("s_waitcnt lgkmcnt(0)")
        e(f"v_mov_b32 v{vT0}, 0")
        e("s_mov_b64 exec, 1")
        for i in range(8):
            e(f"v_mov_b32 v{vX+2*i}, s{sSt+2*i}")
            e(f"v_mov_b32 v{vX+2*i+1}, s{sSt+2*i+1}")
        e(f"s_getreg_b32 s{sT2}, hwreg(HW_REG_HW_ID)")
        e(f"v_mov_b32 v{vX+16}, s{sT3}")
        e(f"v_mov_b32 v{vX+17}, s{sT2}")
        for i in range(4):
            e(f"buffer_store_dwordx4 {vr(vX+4*i)}, v{vT0}, {srd(sIn)}, s{sT} offen offset:{16*i}")
        e(f"buffer_store_dwordx2 v[{vX+16}:{vX+17}], v{vT0}, {srd(sIn)}, s{sT} offen offset:64")
    e("L_end:")
    e("s_endpgm")
    e('.section .rodata,"a"')
    e(".p2align 6")
    e(f".amdhsa_kernel {KNAME}")
    e(f"  .amdhsa_next_free_vgpr {ACC_OFF + NA}")
    e("  .amdhsa_next_free_sgpr 102")
    e(f"  .amdhsa_accum_offset {ACC_OFF}")
    e("  .amdhsa_group_segment_fixed_size 0")
    e("  .amdhsa_kernarg_size 104")
    e("  .amdhsa_user_sgpr_count 2")
    e("  .amdhsa_user_sgpr_kernarg_segment_ptr 1")
    e("  .amdhsa_system_sgpr_workgroup_id_x 1")
    e("  .amdhsa_float_denorm_mode_32 3")
    e(".end_amdhsa_kernel")
    return "\n".join(o) + "\n"

if __name__ == "__main__":
    cfg = eval("dict(" + (sys.argv[2] if len(sys.argv) > 2 else "") + ")")
    open(sys.argv[1], "w").write(gen(**cfg))
```

```python
import sys, math, struct
KNAME = "concat_heads__gqa_block_cached__gqa_block_cached__decode_kernel"

HEADER = """; Kernarg layout for this problem (104 bytes, ptrs only, base s[0:1]):
;   offset  96: d_ws      workspace: per-head partial outputs handed to the reducing workgroups
;
; One workgroup (4 waves) per (branch, batch, head).  The workgroup walks its K slab, then its V slab,
; The number of loads a wave keeps in flight follows its lead over the neighbouring workgroups.
"""

def f2u(x):
    return struct.unpack("<I", struct.pack("<f", x))[0]

def brev5(s):
    return int(f"{s:05b}"[::-1], 2)

class VM:
    def __init__(self, e): self.e = e; self.ops = []
    def issue(self, tag):
        self.ops.append(tag); assert len(self.ops) <= 63, len(self.ops)
    def wait(self, tag):
        i = max(k for k, t in enumerate(self.ops) if t == tag)
        self.e(f"s_waitcnt vmcnt({len(self.ops) - 1 - i})")
        self.ops = self.ops[i+1:]
    def room(self): return 63 - len(self.ops)

BAL = dict(c0=37, g=1, sh=1, bias=21, d=3, cmin=24, cmax=48, up=16, dn=8)

def gen(pol="nt", polW="nt", polWo="nt", F=2, W=5.0625, Wboost=16, ilv=(2, 1), kfirst=17, stamps=0,
        polSt="sc0 sc1", polLd="sc0 sc1", polOut="", bal=BAL):
    o = []
    def e(s): o.append(s)
    D, NIT = 32, 8
    assert Wboost is None or Wboost <= 30
    if bal is not None: bal = {**BAL, **bal}
    L_Q = 0
    L_O = 2048
    L_ML = 4096
    L_OUT = 4224
    L_S = 4224 + 10240
    LDS = L_S + 16384 + 512
    sO = 14
    sC, sC0 = 22, 23
    sW, sH, sB, sBr, sG, sPos = 30, 31, 32, 33, 34, 35
    sK, sWq, sWo, sX, sIn, sN, sOut = 36, 40, 44, 48, 52, 56, 60
    sBd = sX
    sV = 64
    sIt, sOff, sT, sT2, sT3, sCons, sSpin, sOff0 = 66, 67, 68, 69, 70, 71, 72, 73
    sM = 74
    sSt = 82
    sT4, sT5, sSlot = 98, 99, 100
    def srd(b): return f"s[{b}:{b+3}]"
    vLane, vOffV, vOffW, vC, vMc, vT0, vT1, vT2, vT3 = 1, 2, 3, 4, 5, 6, 7, 8, 9
    vM0, vM1, vIdx, vLdsR = 10, 11, 12, 13
    vSelE, vSelO = 14, 18
    vS, vMax, vL, vFlag, vLdsS, vLdsA = 22, 23, 24, 25, 26, 27
    vBd, vBdA, vBdT = 28, 29, 30
    vA = 32
    vAcc = 40
    vQ = 44
    vD = 60
    vP, vPn, vSn = 44, 46, 48
    vTag = 52
    vBeta = 56
    vX = 80
    vML = 112
    vOffC = 120
    vRing = 124
    vTlO, vTlW, vTlR, vTlM = 252, 253, 254, 255
    ACC_OFF = 256
    aOut = 160
    NA = 180
    def vr(b, n=4): return f"v[{b}:{b+n-1}]"
    def ar(b, n=4): return f"a[{b}:{b+n-1}]"
    def stamp(i):
        if stamps == 1 or (stamps == 2 and i not in (1, 2, 3, 4)): e(f"s_memrealtime s[{sSt+2*i}:{sSt+2*i+1}]")
    def tstamp(i):
        if stamps == 2: e(f"s_memrealtime s[{sSt+2*i}:{sSt+2*i+1}]")
    wbase, step = F * 1024, D * 4096
    def off(s): return (s // F) * F * 4096 + (s % F) * 1024
    his = sorted(set(off(s) // 4096 * 4096 for s in range(D)))
    hs = his[1] - his[0]
    ns = min(len(his), 8); nv = len(his) // ns
    def soffs():
        e(f"s_mov_b32 s{sO}, s{sOff}")
        for i in range(1, ns): e(f"s_add_u32 s{sO+i}, s{sOff}, {i*nv*hs}")
    def ringload(s):
        k = his.index(off(s) // 4096 * 4096)
        e(f"buffer_load_dwordx4 {vr(vRing+4*s)}, v{vOffC+k%nv}, {srd(sK)}, s{sO+k//nv} offen offset:{off(s)%4096} {pol}")
    def woreg(rr, T): return ((rr >> 1) * 5 + T) * 8 + (rr & 1) * 4
    def xsel(r, dst):
        sel = vSelE if r % 2 == 0 else vSelO
        for i in range(4):
            e(f"v_perm_b32 v{dst+i}, v{vX+r//2}, v{vX+r//2}, v{sel+i}")
    def ssel(src, j):
        dst = vA + 4 * (j % 2)
        for i in range(4):
            e(f"v_and_b32_dpp v{dst+i}, v{src}, v{(vM0, vM1)[i&1]} row_newbcast:{2*j+(i>>1)} row_mask:0xf bank_mask:0xf")
    def wave_reduce(op, v, t):
        for n in (8, 4, 2, 1):
            e(f"{op}_dpp v{v}, v{v}, v{v} row_ror:{n} row_mask:0xf bank_mask:0xf")
            e("s_nop 1" if n != 1 else "s_nop 0")
        e(f"v_mov_b32 v{t}, v{v}")
        e("s_nop 1")
        e(f"v_permlane16_swap_b32 v{v}, v{t}")
        e("s_nop 0")
        e(f"{op} v{v}, v{v}, v{t}")
        e(f"v_mov_b32 v{t}, v{v}")
        e("s_nop 1")
        e(f"v_permlane32_swap_b32 v{v}, v{t}")
        e("s_nop 0")
        e(f"{op} v{v}, v{v}, v{t}")

    e(HEADER.rstrip("\n"))
    e(f"; @launch grid=(256,1,1) block=(256,1,1) lds={LDS}")
    e('.amdgcn_target "amdgcn-amd-amdhsa--gfx950"')
    e(".text")
    e(f".globl {KNAME}")
    e(".p2align 8")
    e(f".type {KNAME},@function")
    e(f"{KNAME}:")
    stamp(0)
    e("s_cmp_ge_u32 s2, 256")
    e("s_cbranch_scc1 L_end")
    e("s_load_dwordx16 s[4:19], s[0:1], 0")
    e("s_load_dwordx8 s[20:27], s[0:1], 64")
    e("s_load_dwordx2 s[28:29], s[0:1], 96")
    e(f"v_lshrrev_b32 v{vT0}, 6, v0")
    e(f"v_and_b32 v{vLane}, 63, v0")
    e(f"v_readfirstlane_b32 s{sW}, v{vT0}")
    e(f"s_and_b32 s{sH}, s2, 7")
    e(f"s_bfe_u32 s{sT}, s2, 0x20005")
    e(f"s_lshl_b32 s{sT}, s{sT}, 3")
    e(f"s_add_u32 s{sH}, s{sH}, s{sT}")
    e(f"s_lshr_b32 s{sBr}, s2, 7")
    e(f"s_bfe_u32 s{sB}, s2, 0x20003")
    e(f"s_lshl_b32 s{sG}, s{sBr}, 2")
    e(f"s_add_u32 s{sG}, s{sG}, s{sB}")
    e(f"v_lshrrev_b32 v{vT0}, 4, v{vLane}")
    e(f"v_and_b32 v{vT1}, 15, v{vLane}")
    e(f"v_mul_u32_u24 v{vT2}, 80, v{vT0}")
    e(f"v_lshlrev_b32 v{vT3}, 4, v{vT1}")
    e(f"v_mul_u32_u24 v{vOffW}, {40*8192}, v{vT0}")
    e(f"v_add_u32 v{vOffW}, v{vOffW}, v{vT3}")
    e(f"v_lshlrev_b32 v{vOffV}, 4, v{vLane}")
    e(f"v_lshrrev_b32 v{vOffC}, 2, v{vT1}")
    e(f"v_lshlrev_b32 v{vOffC}, 8, v{vOffC}")
    e(f"v_lshl_add_u32 v{vOffC}, v{vT0}, 6, v{vOffC}")
    e(f"v_and_b32 v{vS}, 3, v{vLane}")
    e(f"v_lshl_add_u32 v{vOffC}, v{vS}, 4, v{vOffC}")
    for j in range(1, nv): e(f"v_add_u32 v{vOffC+j}, {j*hs}, v{vOffC}")
    e(f"s_lshl_b32 s{sT}, s{sB}, 5")
    e(f"s_add_u32 s{sT}, s{sT}, s{sH}")
    e(f"s_lshl_b32 s{sT}, s{sT}, 20")
    e(f"s_mul_i32 s{sT2}, s{sB}, 1280")
    e(f"s_lshl_b32 s{sT3}, s{sH}, 8")
    e(f"s_mul_i32 s{sOff0}, s{sW}, {wbase}")
    e(f"s_mov_b32 s{sOff}, s{sOff0}")
    e(f"s_mov_b32 s{sX+2}, 1280")
    e(f"s_mov_b32 s{sX+3}, 0x20000")
    e(f"s_sub_u32 s{sWq+2}, {640*8192}, s{sT3}")
    e(f"s_mov_b32 s{sWq+3}, 0x20000")
    e(f"s_mov_b32 s{sK+2}, 0x100000")
    e(f"s_mov_b32 s{sK+3}, 0x20000")
    e(f"s_mul_i32 s{sSpin}, s{sW}, 320")
    e(f"s_mul_i32 s3, s{sW}, {160*8192}")
    e(f"s_cmp_eq_u32 s{sBr}, 0")
    e("s_waitcnt lgkmcnt(0)")
    e("s_cselect_b64 s[4:5], s[4:5], s[14:15]")
    e("s_cselect_b64 s[10:11], s[10:11], s[20:21]")
    e("s_cselect_b64 s[6:7], s[6:7], s[16:17]")
    e("s_cselect_b64 s[8:9], s[8:9], s[18:19]")
    e("s_cselect_b64 s[12:13], s[12:13], s[22:23]")
    e(f"s_add_u32 s{sX}, s4, s{sT2}")
    e(f"s_addc_u32 s{sX+1}, s5, 0")
    e(f"s_add_u32 s{sWq}, s10, s{sT3}")
    e(f"s_addc_u32 s{sWq+1}, s11, 0")
    vm = VM(e)
    for i in range(5):
        e(f"buffer_load_dwordx4 {vr(vX+4*i)}, v{vT2}, {srd(sX)}, s{sSpin} offen offset:{16*i}"); vm.issue("x")
    e(f"s_add_u32 s{sK}, s6, s{sT}")
    e(f"s_addc_u32 s{sK+1}, s7, 0")
    e(f"s_add_u32 s{sV}, s8, s{sT}")
    e(f"s_addc_u32 s{sV+1}, s9, 0")
    soffs()
    nk = [0]
    def kpre():
        ringload(nk[0]); vm.issue(f"k{nk[0]}"); nk[0] += 1
    a, b = ilv
    r = 0
    while r < 40:
        for _ in range(a):
            if r < 40:
                e(f"buffer_load_dwordx4 {ar(4*r)}, v{vOffW}, {srd(sWq)}, s3 offen {polW}"); vm.issue(f"wq{r}")
                if r < 39: e(f"s_add_u32 s3, s3, 8192")
                r += 1
        for _ in range(b):
            if nk[0] < kfirst: kpre()
    while nk[0] < kfirst: kpre()
    e(f"s_lshl_b32 s{sT}, s{sG}, 7")
    e(f"s_add_u32 s{sT}, s{sT}, {8*20*4096}")
    e(f"s_add_u32 s{sN}, s28, s{sT}")
    e(f"s_addc_u32 s{sN+1}, s29, 0")
    e(f"s_mov_b32 s{sN+2}, 4")
    e(f"s_mov_b32 s{sN+3}, 0x20000")
    e(f"buffer_load_dword v{vFlag}, off, {srd(sN)}, 0 sc1"); vm.issue("n")
    stamp(1)
    e(f"s_mul_i32 s{sT}, s{sH}, 163840")
    e(f"s_add_u32 s{sWo}, s12, s{sT}")
    e(f"s_addc_u32 s{sWo+1}, s13, 0")
    e(f"s_mov_b32 s{sWo+2}, 163840")
    e(f"s_mov_b32 s{sWo+3}, 0x20000")
    e(f"s_mul_i32 s{sT}, s{sG}, {20*4096}")
    e(f"s_add_u32 s{sIn}, s28, s{sT}")
    e(f"s_addc_u32 s{sIn+1}, s29, 0")
    e(f"s_mov_b32 s{sIn+2}, {20*4096}")
    e(f"s_mov_b32 s{sIn+3}, 0x20000")
    e(f"s_mov_b32 s{sOut}, s24")
    e(f"s_mov_b32 s{sOut+1}, s25")
    e(f"s_mov_b32 s{sOut+2}, 10240")
    e(f"s_mov_b32 s{sOut+3}, 0x20000")
    e(f"s_cmp_lt_u32 s{sH}, 20")
    e(f"s_cselect_b32 s{sCons}, 1, 0")
    e(f"s_cmp_eq_u32 s{sW}, 3")
    e(f"s_cselect_b32 s{sCons}, s{sCons}, 0")
    e(f"v_mul_u32_u24 v{vOffW}, {8*1280}, v{vT0}")
    e(f"v_add_u32 v{vOffW}, v{vOffW}, v{vT3}")
    e(f"v_and_b32 v{vS}, 1, v{vLane}")
    e(f"v_cmp_eq_u32 vcc, 1, v{vS}")
    e(f"v_mov_b32 v{vT1}, 0x0c0c0100")
    e(f"v_mov_b32 v{vT2}, 0x01000c0c")
    e(f"v_cndmask_b32 v{vMax}, v{vT1}, v{vT2}, vcc")
    e(f"v_mov_b32 v{vT1}, 0x0c0c0302")
    e(f"v_mov_b32 v{vT2}, 0x03020c0c")
    e(f"v_cndmask_b32 v{vL}, v{vT1}, v{vT2}, vcc")
    e(f"v_mov_b32 v{vT1}, 0x0c0c0c0c")
    for i in range(4):
        e(f"s_mov_b32 s{sM+2*i}, {hex(0x00030003 << (2*i))}")
        e(f"s_mov_b32 s{sM+2*i+1}, {hex(0x00030003 << (2*i))}")
    for i in range(4):
        m = f"s[{sM+2*i}:{sM+2*i+1}]"
        e(f"v_cndmask_b32 v{vSelE+i}, v{vT1}, v{vMax}, {m}")
        e(f"v_cndmask_b32 v{vSelO+i}, v{vT1}, v{vL}, {m}")
    e(f"v_mov_b32 v{vT1}, 0xffff")
    e(f"s_mov_b32 s{sM}, 0x000f000f")
    e(f"s_mov_b32 s{sM+1}, 0x000f000f")
    e(f"s_mov_b32 s{sM+2}, 0x00f000f0")
    e(f"s_mov_b32 s{sM+3}, 0x00f000f0")
    e(f"v_cndmask_b32 v{vM0}, 0, v{vT1}, s[{sM}:{sM+1}]")
    e(f"v_cndmask_b32 v{vM1}, 0, v{vT1}, s[{sM+2}:{sM+3}]")
    e(f"v_and_b32 v{vIdx}, 3, v{vLane}")
    e(f"v_xor_b32 v{vT1}, 1, v{vIdx}")
    e(f"v_lshl_or_b32 v{vIdx}, v{vT1}, 2, v{vIdx}")
    e(f"v_mul_u32_u24 v{vIdx}, 0x1111, v{vIdx}")
    for t in range(4):
        e(f"s_mov_b32 s{sM+2*t}, {hex(0x11111111 << t)}")
        e(f"s_mov_b32 s{sM+2*t+1}, {hex(0x11111111 << t)}")
    for i in range(4): e(f"v_mov_b32 v{vAcc+i}, 0")
    for i in range(20): e(f"v_accvgpr_write_b32 a{aOut+i}, 0")
    e(f"v_mov_b32 v{vMax}, 0xff800000")
    e(f"v_mov_b32 v{vL}, 0")
    e(f"v_mov_b32 v{vC}, {hex(f2u(math.log2(math.e)))}")
    e(f"s_lshl_b32 s{sT}, s{sW}, 12")
    e(f"s_add_u32 s{sT}, s{sT}, {L_S}")
    e(f"v_lshl_add_u32 v{vLdsS}, v{vLane}, 2, s{sT}")
    e(f"v_and_b32 v{vT1}, 1, v{vT0}")
    e(f"v_lshlrev_b32 v{vT1}, 1, v{vT1}")
    e(f"v_and_b32 v{vT2}, 1, v{vLane}")
    e(f"v_add_u32 v{vT1}, v{vT1}, v{vT2}")
    e(f"v_lshlrev_b32 v{vLdsR}, 4, v{vT1}")
    e(f"v_and_b32 v{vT1}, 14, v{vLane}")
    e(f"v_add_u32 v{vLdsR}, v{vLdsR}, v{vT1}")
    e(f"v_lshrrev_b32 v{vT1}, 1, v{vT0}")
    e(f"v_add_u32 v{vLdsR}, v{vLdsR}, v{vT1}")
    e(f"v_lshl_add_u32 v{vLdsR}, v{vLdsR}, 2, s{sT}")
    e(f"s_lshl_b32 s{sT}, s{sW}, 9")
    e(f"v_lshlrev_b32 v{vLdsA}, 1, v{vT3}")
    e(f"v_lshl_add_u32 v{vLdsA}, v{vT0}, 4, v{vLdsA}")
    e(f"v_add_u32 v{vLdsA}, s{sT}, v{vLdsA}")
    e(f"v_and_b32 v{vT2}, 1, v{vT0}")
    e(f"v_lshl_add_u32 v{vTlO}, v{vT2}, 4, v{vT1}")
    e(f"v_and_b32 v{vT2}, 1, v{vLane}")
    e(f"v_lshl_add_u32 v{vTlO}, v{vT2}, 3, v{vTlO}")
    e(f"v_and_b32 v{vT2}, 6, v{vLane}")
    e(f"v_add_u32 v{vTlO}, v{vTlO}, v{vT2}")
    e(f"s_lshl_b32 s{sT}, s{sW}, 7")
    e(f"v_lshl_add_u32 v{vTlO}, v{vTlO}, 2, s{sT}")
    e(f"s_lshl_b32 s{sT}, s{sW}, 11")
    e(f"v_add_u32 v{vTlW}, s{sT}, v{vLdsA}")
    e(f"v_lshlrev_b32 v{vTlR}, 4, v0")
    e(f"v_lshrrev_b32 v{vTlM}, 3, v0")
    e(f"v_lshlrev_b32 v{vTlM}, 12, v{vTlM}")
    e(f"v_and_b32 v{vT2}, 7, v0")
    e(f"v_lshl_add_u32 v{vTlM}, v{vT2}, 4, v{vTlM}")
    if bal:
        e(f"s_getreg_b32 s{sT}, hwreg(HW_REG_HW_ID)")
        e(f"s_bfe_u32 s{sSlot}, s{sT}, 0x40008")
        e(f"s_bfe_u32 s{sT}, s{sT}, 0x2000d")
        e(f"s_lshl_b32 s{sT}, s{sT}, 4")
        e(f"s_add_u32 s{sSlot}, s{sSlot}, s{sT}")
        e(f"s_lshl_b32 s{sSlot}, s{sSlot}, 2")
        e(f"v_lshlrev_b32 v{vBdA}, 2, v{vLane}")
        e(f"s_mov_b32 s{sPos}, 0")
        e(f"s_mov_b32 s{sC0}, {bal['c0']}")
        if bal["d"]:
            e(f"s_getreg_b32 s{sT}, hwreg(HW_REG_XCC_ID)")
            e(f"s_and_b32 s{sT}, s{sT}, 1")
            e(f"s_and_b32 s{sT3}, s{sH}, 3")
            e(f"s_cmp_eq_u32 s{sT3}, 1")
            e(f"s_cselect_b32 s{sT}, 0, s{sT}")
            e(f"s_mul_i32 s{sT}, s{sT}, {bal['d']}")
            e(f"s_sub_u32 s{sC0}, s{sC0}, s{sT}")
        e(f"s_mov_b32 s{sC}, s{sC0}")
    e(f"s_mul_i32 s{sT2}, s{sW}, {32*1280}")
    vm.wait("x")
    if bal:
        e(f"s_mov_b32 s{sBd}, s26")
        e(f"s_mov_b32 s{sBd+1}, s27")
        e(f"s_mov_b32 s{sBd+2}, 256")
        e(f"s_mov_b32 s{sBd+3}, 0x20000")
    xsel(0, vA)
    for r in range(40):
        if r < 39: xsel(r+1, vA + 4*((r+1) % 2))
        else: e("s_nop 1")
        vm.wait(f"wq{r}")
        c = "0" if r == 0 else vr(vD)
        e(f"v_mfma_f32_16x16x32_bf16 {vr(vD)}, {vr(vA+4*(r%2))}, {ar(4*r)}, {c}")
        if nk[0] < D and vm.room() > 0: kpre()
    assert nk[0] == D
    stamp(2)
    e(f"v_lshrrev_b32 v{vT1}, 2, v{vLane}")
    e(f"v_lshlrev_b32 v{vT1}, 5, v{vT1}")
    e("s_nop 5")
    e("s_mov_b32 exec_hi, 0")
    e(f"ds_write_b128 v{vLdsA}, {vr(vD)} offset:{L_Q}")
    e("s_mov_b32 exec_hi, -1")
    e("s_waitcnt lgkmcnt(0)")
    e("s_barrier")
    for w in range(4):
        e(f"ds_read_b128 {vr(vX+8*w)}, v{vT1} offset:{L_Q + 512*w}")
        e(f"ds_read_b128 {vr(vX+8*w+4)}, v{vT1} offset:{L_Q + 512*w + 16}")
    e("s_waitcnt lgkmcnt(4)")
    for j in range(8): e(f"v_add_f32 v{vX+j}, v{vX+j}, v{vX+8+j}")
    e("s_waitcnt lgkmcnt(0)")
    for j in range(8): e(f"v_add_f32 v{vX+16+j}, v{vX+16+j}, v{vX+24+j}")
    for j in range(8): e(f"v_add_f32 v{vX+j}, v{vX+j}, v{vX+16+j}")
    for i in range(4): e(f"v_cvt_pk_bf16_f32 v{vX+8+i}, v{vX+2*i}, v{vX+2*i+1}")
    for t in range(4):
        for i in range(4):
            e(f"v_cndmask_b32 v{vQ+4*t+i}, 0, v{vX+8+i}, s[{sM+2*t}:{sM+2*t+1}]")
    e(f"s_mov_b32 s{sIt}, 0")
    stamp(3)

    def wcnt(Wn, s):
        base = math.floor(Wn + 1e-9); fr = Wn - base
        return base - 1 + int(math.floor((s + 1) * fr + 0.5 + 1e-9) - math.floor(s * fr + 0.5 + 1e-9))
    def slotwait(tag, s, Wn, ctl, extra5):
        x = lambda n: n + (5 if (extra5 and s <= n) else 0)
        if not ctl:
            e(f"s_waitcnt vmcnt({x(wcnt(Wn, s))})"); return
        r = brev5(s)
        if r < bal["up"]:
            e(f"s_waitcnt vmcnt({x(5)})")
            e(f"s_cmp_gt_u32 s{sC}, {32 + r}")
            e(f"s_cbranch_scc1 L_{tag}_w{s}")
            e(f"s_waitcnt vmcnt({x(4)})")
            e(f"L_{tag}_w{s}:")
        elif r >= 32 - bal["dn"]:
            e(f"s_waitcnt vmcnt({x(4)})")
            e(f"s_cmp_gt_u32 s{sC}, {r}")
            e(f"s_cbranch_scc1 L_{tag}_w{s}")
            e(f"s_waitcnt vmcnt({x(3)})")
            e(f"L_{tag}_w{s}:")
        else:
            e(f"s_waitcnt vmcnt({x(4)})")
    def bal_pre(s):
        if s == 0:
            e(f"buffer_load_dword v{vBd}, v{vBdA}, {srd(sBd)}, 0 offen sc1")
        if s == 16:
            for n in (8, 4, 2, 1):
                e(f"v_add_u32_dpp v{vBd}, v{vBd}, v{vBd} row_ror:{n} row_mask:0xf bank_mask:0xf")
                e("s_nop 1" if n != 1 else "s_nop 0")
            for l in range(4): e(f"v_readlane_b32 s{[sT, sT3, sT4, sT5][l]}, v{vBd}, {16*l}")
            e(f"s_add_u32 s{sT}, s{sT}, s{sT3}")
            e(f"s_add_u32 s{sT4}, s{sT4}, s{sT5}")
            e(f"s_add_u32 s{sT}, s{sT}, s{sT4}")
            e(f"s_lshl_b32 s{sT3}, s{sPos}, 5")
            e(f"s_sub_i32 s{sT}, s{sT}, s{sT3}")
            e(f"s_add_i32 s{sT}, s{sT}, {bal['bias']}")
            if bal["g"] != 1: e(f"s_mul_i32 s{sT}, s{sT}, {bal['g']}")
            e(f"s_ashr_i32 s{sT}, s{sT}, {bal['sh']}")
            e(f"s_add_i32 s{sT}, s{sT}, s{sC0}")
            e(f"s_max_i32 s{sT}, s{sT}, {bal['cmin']}")
            e(f"s_min_i32 s{sC}, s{sT}, {bal['cmax']}")
            e(f"s_add_u32 s{sPos}, s{sPos}, 4")
    def bal_post(tag, s):
        if s % 8 != 7: return
        k = s // 8
        e(f"s_cmp_lg_u32 s{sW}, {k}")
        e(f"s_cbranch_scc1 L_{tag}_np{k}")
        e(f"s_add_u32 s{sT}, s{sPos}, {(k + 1) - (4 if s >= 16 else 0)}")
        e(f"v_mov_b32 v{vBdT}, s{sT}")
        e("s_mov_b64 exec, 1")
        e(f"buffer_store_dword v{vBdT}, off, {srd(sBd)}, s{sSlot}")
        e("s_mov_b64 exec, -1")
        e(f"L_{tag}_np{k}:")

    e("L_k:")
    e(f"s_add_u32 s{sOff}, s{sOff}, {step}")
    def tree(lo, bit):
        if bit < 0:
            for T in range(5):
                e(f"buffer_load_dwordx4 {ar(woreg(lo, T))}, v{vOffW}, {srd(sWo)}, s{sT2} offen offset:{T*256} {polWo}")
            if lo != 7: e("s_branch L_k_wodone")
            return
        e(f"s_bitcmp1_b32 s{sIt}, {bit}")
        e(f"s_cbranch_scc1 L_k_wo{lo + (1 << bit)}_{bit}")
        tree(lo, bit - 1)
        e(f"L_k_wo{lo + (1 << bit)}_{bit}:")
        tree(lo + (1 << bit), bit - 1)
    tree(0, 2)
    e("L_k_wodone:")
    e(f"s_add_u32 s{sT2}, s{sT2}, 1280")
    e(f"s_cmp_lg_u32 s{sIt}, {NIT-1}")
    e("s_cbranch_scc1 L_k_go")
    e(f"s_mov_b32 s{sK}, s{sV}")
    e(f"s_mov_b32 s{sK+1}, s{sV+1}")
    e(f"s_mov_b32 s{sOff}, s{sOff0}")
    e(f"v_mov_b32 v{vOffC}, v{vOffV}")
    for j in range(1, nv): e(f"v_add_u32 v{vOffC+j}, {j*hs}, v{vOffV}")
    e("L_k_go:")
    soffs()
    e(f"s_add_u32 s{sIt}, s{sIt}, 1")
    for u in range(2):
        for s16 in range(16):
            s = u * 16 + s16
            b, t = s16 // 4, s16 % 4
            if bal: bal_pre(s)
            slotwait("k", s, W, bal, True)
            c = "0" if t == 0 else vr(vD+4*b)
            e(f"v_mfma_f32_16x16x32_bf16 {vr(vD+4*b)}, {vr(vRing+4*s)}, {vr(vQ+4*t)}, {c}")
            ringload(s)
            if bal: bal_post("k", s)
        for r in range(4):
            for k in range(4):
                cc = (r + k) % 4
                ror = (4 * (r - cc)) % 16
                ctl = "quad_perm:[0,1,2,3]" if ror == 0 else f"row_ror:{ror}"
                if k == 0:
                    e(f"v_mov_b32_dpp v{vS}, v{vD+4*r+cc} {ctl} row_mask:0xf bank_mask:{hex(1<<r)}")
                else:
                    e(f"v_add_f32_dpp v{vS}, v{vD+4*r+cc}, v{vS} {ctl} row_mask:0xf bank_mask:{hex(1<<r)}")
        e(f"v_cvt_pk_bf16_f32 v{vS}, v{vS}, v{vS}")
        e(f"v_lshlrev_b32 v{vS}, 16, v{vS}")
        e(f"v_mul_f32 v{vS}, {hex(f2u(128 ** -0.5))}, v{vS}")
        e(f"v_cvt_pk_bf16_f32 v{vS}, v{vS}, v{vS}")
        e(f"v_lshlrev_b32 v{vS}, 16, v{vS}")
        e(f"v_max_f32 v{vMax}, v{vMax}, v{vS}")
        e(f"ds_write_b32 v{vLdsS}, v{vS} offset:{256*u}")
    e(f"v_add_u32 v{vLdsS}, 512, v{vLdsS}")
    e(f"s_cmp_lt_u32 s{sIt}, {NIT}")
    e("s_cbranch_scc1 L_k")

    def probs():
        for u in range(2): e(f"v_fma_f32 v{vT0+u}, v{vSn+u}, v{vC}, -v{vMc}")
        e(f"v_add_u32 v{vLdsR}, 512, v{vLdsR}")
        for u in range(2): e(f"v_exp_f32 v{vT0+u}, v{vT0+u}")
        for u in range(2): e(f"ds_read_b32 v{vSn+u}, v{vLdsR} offset:{256*u}")
        for u in range(2): e(f"v_cvt_pk_bf16_f32 v{vPn+u}, v{vT0+u}, v{vT0+u}")
        for u in range(2): e(f"v_add_f32 v{vL}, v{vL}, v{vT0+u}")
    for u in range(2): e(f"ds_read_b32 v{vSn+u}, v{vLdsR} offset:{256*u}")
    wave_reduce("v_max_f32", vMax, vT0)
    e(f"v_mul_f32 v{vMc}, v{vMax}, v{vC}")
    e(f"v_add_u32 v{vFlag}, 0x01010101, v{vFlag}")
    for j in range(4): e(f"v_bfe_u32 v{vTag+j}, v{vFlag}, {8*j}, 8")
    e(f"s_lshl_b32 s{sT2}, s{sH}, 7")
    e("s_waitcnt lgkmcnt(0)")
    probs()
    e(f"s_mov_b32 s{sIt}, 0")
    stamp(4)

    def vslots(tag, Wn, ctl, last):
        ssel(vP, 0)
        for j in range(16):
            if j < 15: ssel(vP + (j+1) // 8, (j+1) % 8)
            else: e("s_nop 0")
            mm = f"v_smfmac_f32_16x16x64_bf16 {vr(vAcc)}, {vr(vA+4*(j%2))}, {vr(vRing+8*j, 8)}, v{vIdx}"
            if last:
                e(f"s_waitcnt vmcnt({30 - 2*j})"); e(mm); continue
            for s in (2*j, 2*j+1):
                if ctl: bal_pre(s)
                slotwait(tag, s, Wn, ctl, False)
                if s == 2*j: e(mm)
                ringload(s)
                if ctl: bal_post(tag, s)
    def vtrip(tag, Wn, ctl):
        e(f"L_{tag}:")
        e(f"s_add_u32 s{sOff}, s{sOff}, {step}")
        e("s_waitcnt lgkmcnt(0)")
        for u in range(2): e(f"v_mov_b32 v{vP+u}, v{vPn+u}")
        probs()
        soffs()
        e(f"s_add_u32 s{sIt}, s{sIt}, 1")
        e(f"s_cmp_lg_u32 s{sIt}, {NIT-1}")
        e(f"s_cbranch_scc1 L_{tag}_go")
        wave_reduce("v_add_f32", vL, vT0)
        e(f"s_lshl_b32 s{sT}, s{sW}, 3")
        e(f"v_mov_b32 v{vT2}, v{vMc}")
        e(f"v_mov_b32 v{vT3}, v{vL}")
        e(f"v_mov_b32 v{vT1}, s{sT}")
        e(f"ds_write_b64 v{vT1}, v[{vT2}:{vT3}] offset:{L_ML}")
        e(f"L_{tag}_go:")
        vslots(tag, Wn, ctl, False)
    boost = Wboost is not None
    vtrip("va", W, bal)
    e(f"s_cmp_lt_u32 s{sIt}, {NIT - 1 - (1 if boost else 0)}")
    e("s_cbranch_scc1 L_va")
    if boost: vtrip("vb", Wboost, None)
    e(f"v_mov_b32 v{vT0}, 0")
    for u in range(2): e(f"v_mov_b32 v{vP+u}, v{vPn+u}")
    e("s_waitcnt lgkmcnt(0)")
    e("s_barrier")
    e(f"ds_read_b128 {vr(vML)}, v{vT0} offset:{L_ML}")
    e(f"ds_read_b128 {vr(vML+4)}, v{vT0} offset:{L_ML+16}")
    e(f"s_mov_b32 s{sT3}, 0xffffff00")
    e("s_waitcnt lgkmcnt(0)")
    e(f"v_max3_f32 v{vT0}, v{vML}, v{vML+2}, v{vML+4}")
    e(f"v_max_f32 v{vT0}, v{vT0}, v{vML+6}")
    for w in range(4): e(f"v_sub_f32 v{vML+2*w}, v{vML+2*w}, v{vT0}")
    for w in range(4): e(f"v_exp_f32 v{vML+2*w}, v{vML+2*w}")
    e("s_nop 0")
    e(f"v_mul_f32 v{vT0}, v{vML}, v{vML+1}")
    for w in range(1, 4): e(f"v_fmac_f32 v{vT0}, v{vML+2*w}, v{vML+2*w+1}")
    e(f"v_rcp_f32 v{vT0}, v{vT0}")
    e("s_nop 0")
    for w in range(4): e(f"v_mul_f32 v{vBeta+w}, v{vML+2*w}, v{vT0}")
    vslots("vl", None, None, True)
    stamp(5)
    e("s_nop 7")
    e("s_mov_b32 exec_hi, 0")
    e(f"ds_write_b128 v{vLdsA}, {vr(vAcc)} offset:{L_O}")
    e("s_mov_b32 exec_hi, -1")
    e("s_waitcnt lgkmcnt(0)")
    e("s_barrier")
    tstamp(1)
    for w in range(4): e(f"ds_read_b32 v{vX+w}, v{vTlO} offset:{L_O + 512*w}")
    e("s_waitcnt lgkmcnt(2)" if stamps != 2 else "s_waitcnt lgkmcnt(0)")
    e(f"v_mul_f32 v{vX}, v{vX}, v{vBeta}")
    e(f"v_fmac_f32 v{vX}, v{vX+1}, v{vBeta+1}")
    e("s_waitcnt lgkmcnt(0)")
    e(f"v_fmac_f32 v{vX}, v{vX+2}, v{vBeta+2}")
    e(f"v_fmac_f32 v{vX}, v{vX+3}, v{vBeta+3}")
    e(f"v_cvt_pk_bf16_f32 v{vP}, v{vX}, v{vX}")
    tstamp(2)
    e("s_nop 1")
    ssel(vP, 0)
    for pr in range(4):
        if pr < 3: ssel(vP, pr+1)
        else: e("s_nop 0")
        for T in range(5):
            e(f"v_smfmac_f32_16x16x64_bf16 {ar(aOut+4*T)}, {vr(vA+4*(pr%2))}, {ar(woreg(2*pr, T), 8)}, v{vIdx}")
    tstamp(3)
    e("s_mov_b32 exec_hi, 0")
    e("s_nop 3")
    for T in range(5):
        e(f"ds_write_b128 v{vTlW}, {ar(aOut+4*T)} offset:{L_OUT + 512*T}")
    e("s_mov_b32 exec_hi, -1")
    e("s_waitcnt lgkmcnt(0)")
    e("s_barrier")
    tstamp(4)
    e(f"s_cmp_eq_u32 s{sW}, 3")
    e("s_cbranch_scc1 L_consume")
    for w in range(4):
        e(f"ds_read_b128 {vr(vX+4*w)}, v{vTlR} offset:{L_OUT + 2560*w}")
    e("s_waitcnt lgkmcnt(2)" if stamps != 2 else "s_waitcnt lgkmcnt(0)")
    for j in range(4): e(f"v_add_f32 v{vX+j}, v{vX+j}, v{vX+4+j}")
    e("s_waitcnt lgkmcnt(0)")
    for j in range(4): e(f"v_add_f32 v{vX+8+j}, v{vX+8+j}, v{vX+12+j}")
    for j in range(4): e(f"v_add_f32 v{vX+j}, v{vX+j}, v{vX+8+j}")
    for j in range(4): e(f"v_and_or_b32 v{vX+j}, v{vX+j}, s{sT3}, v{vTag+j}")
    e(f"buffer_store_dwordx4 {vr(vX)}, v{vTlM}, {srd(sIn)}, s{sT2} offen {polSt}")
    stamp(6)
    e("s_branch L_fin")
    e("L_consume:")
    e(f"s_cmp_eq_u32 s{sCons}, 0")
    e("s_cbranch_scc1 L_fin")
    e(f"s_lshl_b32 s{sT}, s{sH}, 12")
    e(f"s_mov_b32 s{sSpin}, 0")
    e(f"v_mov_b32 v{vT2}, 0x0c0c0400")
    e(f"v_mov_b32 v{vT3}, 0x04000c0c")
    e(f"s_mul_i32 s{sIt}, s{sB}, 2560")
    e(f"s_mul_i32 s{sT2}, s{sBr}, 1280")
    e(f"s_add_u32 s{sIt}, s{sIt}, s{sT2}")
    e(f"s_lshl_b32 s{sT2}, s{sH}, 6")
    e(f"s_add_u32 s{sIt}, s{sIt}, s{sT2}")
    e(f"v_lshlrev_b32 v{vS}, 3, v{vLane}")
    e("L_poll:")
    for i in range(4):
        e(f"buffer_load_dwordx4 {vr(vX+4*i)}, v{vOffV}, {srd(sIn)}, s{sT} offen offset:{1024*i} {polLd}")
    e(f"s_add_u32 s{sSpin}, s{sSpin}, 1")
    for i in range(4):
        e(f"s_waitcnt vmcnt({3-i})")
        e(f"v_perm_b32 v{vT0}, v{vX+4*i+1}, v{vX+4*i}, v{vT2}")
        e(f"v_perm_b32 v{vT1}, v{vX+4*i+3}, v{vX+4*i+2}, v{vT3}")
        for j in range(4): e(f"v_and_b32 v{vX+4*i+j}, s{sT3}, v{vX+4*i+j}")
        e(f"v_or_b32 v{vT0}, v{vT0}, v{vT1}")
        e(f"v_xor_b32 v{vX+16+i}, v{vT0}, v{vFlag}")
        if i == 1:
            for j in range(4): e(f"v_add_f32 v{vX+j}, v{vX+j}, v{vX+4+j}")
    e(f"v_or3_b32 v{vT0}, v{vX+16}, v{vX+17}, v{vX+18}")
    e(f"v_or_b32 v{vT0}, v{vT0}, v{vX+19}")
    e(f"v_cmp_ne_u32 vcc, 0, v{vT0}")
    e(f"s_cmp_ge_u32 s{sSpin}, 0x200000")
    e("s_cbranch_scc1 L_polled")
    e("s_cbranch_vccnz L_poll")
    e("L_polled:")
    for j in range(4): e(f"v_add_f32 v{vX+8+j}, v{vX+8+j}, v{vX+12+j}")
    for j in range(4): e(f"v_add_f32 v{vX+j}, v{vX+j}, v{vX+8+j}")
    e("s_nop 1")
    for j in range(4): e(f"v_add_f32_dpp v{vX+j}, v{vX+j}, v{vX+j} row_ror:8 row_mask:0xf bank_mask:0xf")
    for j in range(4): e(f"v_mov_b32 v{vX+4+j}, v{vX+j}")
    e("s_nop 1")
    for j in range(4): e(f"v_permlane16_swap_b32 v{vX+j}, v{vX+4+j}")
    for j in range(4): e(f"v_add_f32 v{vX+j}, v{vX+j}, v{vX+4+j}")
    for j in range(4): e(f"v_mov_b32 v{vX+4+j}, v{vX+j}")
    e("s_nop 1")
    for j in range(4): e(f"v_permlane32_swap_b32 v{vX+j}, v{vX+4+j}")
    for j in range(4): e(f"v_add_f32 v{vX+j}, v{vX+j}, v{vX+4+j}")
    e(f"v_cvt_pk_bf16_f32 v{vX}, v{vX}, v{vX+1}")
    e(f"v_cvt_pk_bf16_f32 v{vX+1}, v{vX+2}, v{vX+3}")
    e("s_mov_b64 exec, 0xff")
    e(f"buffer_store_dwordx2 v[{vX}:{vX+1}], v{vS}, {srd(sOut)}, s{sIt} offen {polOut}")
    e(f"s_cmp_lg_u32 s{sH}, 0")
    e("s_cbranch_scc1 L_nobump")
    e("s_mov_b64 exec, 1")
    e(f"buffer_store_dword v{vFlag}, off, {srd(sN)}, 0 sc0 sc1")
    e("L_nobump:")
    e("s_mov_b64 exec, -1")
    stamp(6)
    e("L_fin:")
    if stamps:
        e("s_waitcnt vmcnt(0) lgkmcnt(0)")
        e(f"s_memrealtime s[{sSt+14}:{sSt+15}]")
        e(f"s_getreg_b32 s{sT3}, hwreg(HW_REG_XCC_ID)")
        e(f"s_add_u32 s{sIn}, s28, 0x100000")
        e(f"s_addc_u32 s{sIn+1}, s29, 0")
        e(f"s_mov_b32 s{sIn+2}, 0x20000")
        e(f"s_lshl_b32 s{sT}, s2, 2")
        e(f"s_add_u32 s{sT}, s{sT}, s{sW}")
        e(f"s_lshl_b32 s{sT}, s{sT}, 7")
        e("s_waitcnt lgkmcnt(0)")
        e(f"v_mov_b32 v{vT0}, 0")
        e("s_mov_b64 exec, 1")
        for i in range(8):
            e(f"v_mov_b32 v{vX+2*i}, s{sSt+2*i}")
            e(f"v_mov_b32 v{vX+2*i+1}, s{sSt+2*i+1}")
        e(f"s_getreg_b32 s{sT2}, hwreg(HW_REG_HW_ID)")
        e(f"v_mov_b32 v{vX+16}, s{sT3}")
        e(f"v_mov_b32 v{vX+17}, s{sT2}")
        for i in range(4):
            e(f"buffer_store_dwordx4 {vr(vX+4*i)}, v{vT0}, {srd(sIn)}, s{sT} offen offset:{16*i}")
        e(f"buffer_store_dwordx2 v[{vX+16}:{vX+17}], v{vT0}, {srd(sIn)}, s{sT} offen offset:64")
    e("L_end:")
    e("s_endpgm")
    e('.section .rodata,"a"')
    e(".p2align 6")
    e(f".amdhsa_kernel {KNAME}")
    e(f"  .amdhsa_next_free_vgpr {ACC_OFF + NA}")
    e("  .amdhsa_next_free_sgpr 102")
    e(f"  .amdhsa_accum_offset {ACC_OFF}")
    e("  .amdhsa_group_segment_fixed_size 0")
    e("  .amdhsa_kernarg_size 104")
    e("  .amdhsa_user_sgpr_count 2")
    e("  .amdhsa_user_sgpr_kernarg_segment_ptr 1")
    e("  .amdhsa_system_sgpr_workgroup_id_x 1")
    e("  .amdhsa_float_denorm_mode_32 3")
    e(".end_amdhsa_kernel")
    return "\n".join(o) + "\n"

if __name__ == "__main__":
    cfg = eval("dict(" + (sys.argv[2] if len(sys.argv) > 2 else "") + ")")
    open(sys.argv[1], "w").write(gen(**cfg))
```

```python
import sys, math, struct
KNAME = "concat_heads__gqa_block_cached__gqa_block_cached__decode_kernel"

HEADER = """; Kernarg layout for this problem (104 bytes, ptrs only, base s[0:1]):
;   offset  96: d_ws      workspace: per-head partial outputs handed to the reducing workgroups
;
; One workgroup (4 waves) per (branch, batch, head).  The workgroup walks its K slab, then its V slab,
; The number of loads a wave keeps in flight follows its lead over the neighbouring workgroups.
"""

def f2u(x):
    return struct.unpack("<I", struct.pack("<f", x))[0]

def brev5(s):
    return int(f"{s:05b}"[::-1], 2)

class VM:
    def __init__(self, e): self.e = e; self.ops = []
    def issue(self, tag):
        self.ops.append(tag); assert len(self.ops) <= 63, len(self.ops)
    def wait(self, tag):
        i = max(k for k, t in enumerate(self.ops) if t == tag)
        self.e(f"s_waitcnt vmcnt({len(self.ops) - 1 - i})")
        self.ops = self.ops[i+1:]
    def room(self): return 63 - len(self.ops)

BAL = dict(c0=37, g=1, sh=1, bias=21, d=3, cmin=24, cmax=48, up=16, dn=8)

def gen(pol="nt", polW="nt", polWo="nt", F=2, W=5.0625, Wboost=16, ilv=(2, 1), kfirst=17, stamps=0,
        polSt="sc0 sc1", polLd="sc0 sc1", polOut="", bal=BAL):
    o = []
    def e(s): o.append(s)
    D, NIT = 32, 8
    bstart = 0
    if isinstance(Wboost, tuple): bstart, Wboost = Wboost
    assert Wboost is None or Wboost <= 30
    if bal is not None: bal = {**BAL, **bal}
    L_Q = 0
    L_O = 2048
    L_ML = 4096
    L_OUT = 4224
    L_S = 4224 + 10240
    LDS = L_S + 16384 + 512
    sO = 14
    sC, sC0 = 22, 23
    sW, sH, sB, sBr, sG, sPos = 30, 31, 32, 33, 34, 35
    sK, sWq, sWo, sX, sIn, sN, sOut = 36, 40, 44, 48, 52, 56, 60
    sBd = sX
    sV = 64
    sIt, sOff, sT, sT2, sT3, sCons, sSpin, sOff0 = 66, 67, 68, 69, 70, 71, 72, 73
    sM = 74
    sSt = 82
    sT4, sT5, sSlot = 98, 99, 100
    def srd(b): return f"s[{b}:{b+3}]"
    vLane, vOffV, vOffW, vC, vMc, vT0, vT1, vT2, vT3 = 1, 2, 3, 4, 5, 6, 7, 8, 9
    vM0, vM1, vIdx, vLdsR = 10, 11, 12, 13
    vSelE, vSelO = 14, 18
    vS, vMax, vL, vFlag, vLdsS, vLdsA = 22, 23, 24, 25, 26, 27
    vBd, vBdA, vBdT = 28, 29, 30
    vA = 32
    vAcc = 40
    vQ = 44
    vD = 60
    vP, vPn, vSn = 44, 46, 48
    vTag = 52
    vBeta = 56
    vX = 80
    vML = 112
    vOffC = 120
    vRing = 124
    vTlO, vTlW, vTlR, vTlM = 252, 253, 254, 255
    ACC_OFF = 256
    aOut = 160
    NA = 180
    def vr(b, n=4): return f"v[{b}:{b+n-1}]"
    def ar(b, n=4): return f"a[{b}:{b+n-1}]"
    def stamp(i):
        if stamps == 1 or (stamps == 2 and i not in (1, 2, 3, 4)): e(f"s_memrealtime s[{sSt+2*i}:{sSt+2*i+1}]")
    def tstamp(i):
        if stamps == 2: e(f"s_memrealtime s[{sSt+2*i}:{sSt+2*i+1}]")
    wbase, step = F * 1024, D * 4096
    def off(s): return (s // F) * F * 4096 + (s % F) * 1024
    his = sorted(set(off(s) // 4096 * 4096 for s in range(D)))
    hs = his[1] - his[0]
    ns = min(len(his), 8); nv = len(his) // ns
    def soffs():
        e(f"s_mov_b32 s{sO}, s{sOff}")
        for i in range(1, ns): e(f"s_add_u32 s{sO+i}, s{sOff}, {i*nv*hs}")
    def ringload(s):
        k = his.index(off(s) // 4096 * 4096)
        e(f"buffer_load_dwordx4 {vr(vRing+4*s)}, v{vOffC+k%nv}, {srd(sK)}, s{sO+k//nv} offen offset:{off(s)%4096} {pol}")
    def woreg(rr, T): return ((rr >> 1) * 5 + T) * 8 + (rr & 1) * 4
    def xsel(r, dst):
        sel = vSelE if r % 2 == 0 else vSelO
        for i in range(4):
            e(f"v_perm_b32 v{dst+i}, v{vX+r//2}, v{vX+r//2}, v{sel+i}")
    def ssel(src, j):
        dst = vA + 4 * (j % 2)
        for i in range(4):
            e(f"v_and_b32_dpp v{dst+i}, v{src}, v{(vM0, vM1)[i&1]} row_newbcast:{2*j+(i>>1)} row_mask:0xf bank_mask:0xf")
    def wave_reduce(op, v, t):
        for n in (8, 4, 2, 1):
            e(f"{op}_dpp v{v}, v{v}, v{v} row_ror:{n} row_mask:0xf bank_mask:0xf")
            e("s_nop 1" if n != 1 else "s_nop 0")
        e(f"v_mov_b32 v{t}, v{v}")
        e("s_nop 1")
        e(f"v_permlane16_swap_b32 v{v}, v{t}")
        e("s_nop 0")
        e(f"{op} v{v}, v{v}, v{t}")
        e(f"v_mov_b32 v{t}, v{v}")
        e("s_nop 1")
        e(f"v_permlane32_swap_b32 v{v}, v{t}")
        e("s_nop 0")
        e(f"{op} v{v}, v{v}, v{t}")

    e(HEADER.rstrip("\n"))
    e(f"; @launch grid=(256,1,1) block=(256,1,1) lds={LDS}")
    e('.amdgcn_target "amdgcn-amd-amdhsa--gfx950"')
    e(".text")
    e(f".globl {KNAME}")
    e(".p2align 8")
    e(f".type {KNAME},@function")
    e(f"{KNAME}:")
    stamp(0)
    e("s_cmp_ge_u32 s2, 256")
    e("s_cbranch_scc1 L_end")
    e("s_load_dwordx16 s[4:19], s[0:1], 0")
    e("s_load_dwordx8 s[20:27], s[0:1], 64")
    e("s_load_dwordx2 s[28:29], s[0:1], 96")
    e(f"v_lshrrev_b32 v{vT0}, 6, v0")
    e(f"v_and_b32 v{vLane}, 63, v0")
    e(f"v_readfirstlane_b32 s{sW}, v{vT0}")
    e(f"s_and_b32 s{sH}, s2, 7")
    e(f"s_bfe_u32 s{sT}, s2, 0x20005")
    e(f"s_lshl_b32 s{sT}, s{sT}, 3")
    e(f"s_add_u32 s{sH}, s{sH}, s{sT}")
    e(f"s_lshr_b32 s{sBr}, s2, 7")
    e(f"s_bfe_u32 s{sB}, s2, 0x20003")
    e(f"s_lshl_b32 s{sG}, s{sBr}, 2")
    e(f"s_add_u32 s{sG}, s{sG}, s{sB}")
    e(f"v_lshrrev_b32 v{vT0}, 4, v{vLane}")
    e(f"v_and_b32 v{vT1}, 15, v{vLane}")
    e(f"v_mul_u32_u24 v{vT2}, 80, v{vT0}")
    e(f"v_lshlrev_b32 v{vT3}, 4, v{vT1}")
    e(f"v_mul_u32_u24 v{vOffW}, {40*8192}, v{vT0}")
    e(f"v_add_u32 v{vOffW}, v{vOffW}, v{vT3}")
    e(f"v_lshlrev_b32 v{vOffV}, 4, v{vLane}")
    e(f"v_lshrrev_b32 v{vOffC}, 2, v{vT1}")
    e(f"v_lshlrev_b32 v{vOffC}, 8, v{vOffC}")
    e(f"v_lshl_add_u32 v{vOffC}, v{vT0}, 6, v{vOffC}")
    e(f"v_and_b32 v{vS}, 3, v{vLane}")
    e(f"v_lshl_add_u32 v{vOffC}, v{vS}, 4, v{vOffC}")
    for j in range(1, nv): e(f"v_add_u32 v{vOffC+j}, {j*hs}, v{vOffC}")
    e(f"s_lshl_b32 s{sT}, s{sB}, 5")
    e(f"s_add_u32 s{sT}, s{sT}, s{sH}")
    e(f"s_lshl_b32 s{sT}, s{sT}, 20")
    e(f"s_mul_i32 s{sT2}, s{sB}, 1280")
    e(f"s_lshl_b32 s{sT3}, s{sH}, 8")
    e(f"s_mul_i32 s{sOff0}, s{sW}, {wbase}")
    e(f"s_mov_b32 s{sOff}, s{sOff0}")
    e(f"s_mov_b32 s{sX+2}, 1280")
    e(f"s_mov_b32 s{sX+3}, 0x20000")
    e(f"s_sub_u32 s{sWq+2}, {640*8192}, s{sT3}")
    e(f"s_mov_b32 s{sWq+3}, 0x20000")
    e(f"s_mov_b32 s{sK+2}, 0x100000")
    e(f"s_mov_b32 s{sK+3}, 0x20000")
    e(f"s_mul_i32 s{sSpin}, s{sW}, 320")
    e(f"s_mul_i32 s3, s{sW}, {160*8192}")
    e(f"s_cmp_eq_u32 s{sBr}, 0")
    e("s_waitcnt lgkmcnt(0)")
    e("s_cselect_b64 s[4:5], s[4:5], s[14:15]")
    e("s_cselect_b64 s[10:11], s[10:11], s[20:21]")
    e("s_cselect_b64 s[6:7], s[6:7], s[16:17]")
    e("s_cselect_b64 s[8:9], s[8:9], s[18:19]")
    e("s_cselect_b64 s[12:13], s[12:13], s[22:23]")
    e(f"s_add_u32 s{sX}, s4, s{sT2}")
    e(f"s_addc_u32 s{sX+1}, s5, 0")
    e(f"s_add_u32 s{sWq}, s10, s{sT3}")
    e(f"s_addc_u32 s{sWq+1}, s11, 0")
    vm = VM(e)
    for i in range(5):
        e(f"buffer_load_dwordx4 {vr(vX+4*i)}, v{vT2}, {srd(sX)}, s{sSpin} offen offset:{16*i}"); vm.issue("x")
    e(f"s_add_u32 s{sK}, s6, s{sT}")
    e(f"s_addc_u32 s{sK+1}, s7, 0")
    e(f"s_add_u32 s{sV}, s8, s{sT}")
    e(f"s_addc_u32 s{sV+1}, s9, 0")
    soffs()
    nk = [0]
    def kpre():
        ringload(nk[0]); vm.issue(f"k{nk[0]}"); nk[0] += 1
    a, b = ilv
    r = 0
    while r < 40:
        for _ in range(a):
            if r < 40:
                e(f"buffer_load_dwordx4 {ar(4*r)}, v{vOffW}, {srd(sWq)}, s3 offen {polW}"); vm.issue(f"wq{r}")
                if r < 39: e(f"s_add_u32 s3, s3, 8192")
                r += 1
        for _ in range(b):
            if nk[0] < kfirst: kpre()
    while nk[0] < kfirst: kpre()
    e(f"s_lshl_b32 s{sT}, s{sG}, 7")
    e(f"s_add_u32 s{sT}, s{sT}, {8*20*4096}")
    e(f"s_add_u32 s{sN}, s28, s{sT}")
    e(f"s_addc_u32 s{sN+1}, s29, 0")
    e(f"s_mov_b32 s{sN+2}, 4")
    e(f"s_mov_b32 s{sN+3}, 0x20000")
    e(f"buffer_load_dword v{vFlag}, off, {srd(sN)}, 0 sc1"); vm.issue("n")
    stamp(1)
    e(f"s_mul_i32 s{sT}, s{sH}, 163840")
    e(f"s_add_u32 s{sWo}, s12, s{sT}")
    e(f"s_addc_u32 s{sWo+1}, s13, 0")
    e(f"s_mov_b32 s{sWo+2}, 163840")
    e(f"s_mov_b32 s{sWo+3}, 0x20000")
    e(f"s_mul_i32 s{sT}, s{sG}, {20*4096}")
    e(f"s_add_u32 s{sIn}, s28, s{sT}")
    e(f"s_addc_u32 s{sIn+1}, s29, 0")
    e(f"s_mov_b32 s{sIn+2}, {20*4096}")
    e(f"s_mov_b32 s{sIn+3}, 0x20000")
    e(f"s_mov_b32 s{sOut}, s24")
    e(f"s_mov_b32 s{sOut+1}, s25")
    e(f"s_mov_b32 s{sOut+2}, 10240")
    e(f"s_mov_b32 s{sOut+3}, 0x20000")
    e(f"s_cmp_lt_u32 s{sH}, 20")
    e(f"s_cselect_b32 s{sCons}, 1, 0")
    e(f"s_cmp_eq_u32 s{sW}, 3")
    e(f"s_cselect_b32 s{sCons}, s{sCons}, 0")
    e(f"v_mul_u32_u24 v{vOffW}, {8*1280}, v{vT0}")
    e(f"v_add_u32 v{vOffW}, v{vOffW}, v{vT3}")
    e(f"v_and_b32 v{vS}, 1, v{vLane}")
    e(f"v_cmp_eq_u32 vcc, 1, v{vS}")
    e(f"v_mov_b32 v{vT1}, 0x0c0c0100")
    e(f"v_mov_b32 v{vT2}, 0x01000c0c")
    e(f"v_cndmask_b32 v{vMax}, v{vT1}, v{vT2}, vcc")
    e(f"v_mov_b32 v{vT1}, 0x0c0c0302")
    e(f"v_mov_b32 v{vT2}, 0x03020c0c")
    e(f"v_cndmask_b32 v{vL}, v{vT1}, v{vT2}, vcc")
    e(f"v_mov_b32 v{vT1}, 0x0c0c0c0c")
    for i in range(4):
        e(f"s_mov_b32 s{sM+2*i}, {hex(0x00030003 << (2*i))}")
        e(f"s_mov_b32 s{sM+2*i+1}, {hex(0x00030003 << (2*i))}")
    for i in range(4):
        m = f"s[{sM+2*i}:{sM+2*i+1}]"
        e(f"v_cndmask_b32 v{vSelE+i}, v{vT1}, v{vMax}, {m}")
        e(f"v_cndmask_b32 v{vSelO+i}, v{vT1}, v{vL}, {m}")
    e(f"v_mov_b32 v{vT1}, 0xffff")
    e(f"s_mov_b32 s{sM}, 0x000f000f")
    e(f"s_mov_b32 s{sM+1}, 0x000f000f")
    e(f"s_mov_b32 s{sM+2}, 0x00f000f0")
    e(f"s_mov_b32 s{sM+3}, 0x00f000f0")
    e(f"v_cndmask_b32 v{vM0}, 0, v{vT1}, s[{sM}:{sM+1}]")
    e(f"v_cndmask_b32 v{vM1}, 0, v{vT1}, s[{sM+2}:{sM+3}]")
    e(f"v_and_b32 v{vIdx}, 3, v{vLane}")
    e(f"v_xor_b32 v{vT1}, 1, v{vIdx}")
    e(f"v_lshl_or_b32 v{vIdx}, v{vT1}, 2, v{vIdx}")
    e(f"v_mul_u32_u24 v{vIdx}, 0x1111, v{vIdx}")
    for t in range(4):
        e(f"s_mov_b32 s{sM+2*t}, {hex(0x11111111 << t)}")
        e(f"s_mov_b32 s{sM+2*t+1}, {hex(0x11111111 << t)}")
    for i in range(4): e(f"v_mov_b32 v{vAcc+i}, 0")
    for i in range(20): e(f"v_accvgpr_write_b32 a{aOut+i}, 0")
    e(f"v_mov_b32 v{vMax}, 0xff800000")
    e(f"v_mov_b32 v{vL}, 0")
    e(f"v_mov_b32 v{vC}, {hex(f2u(math.log2(math.e)))}")
    e(f"s_lshl_b32 s{sT}, s{sW}, 12")
    e(f"s_add_u32 s{sT}, s{sT}, {L_S}")
    e(f"v_lshl_add_u32 v{vLdsS}, v{vLane}, 2, s{sT}")
    e(f"v_and_b32 v{vT1}, 1, v{vT0}")
    e(f"v_lshlrev_b32 v{vT1}, 1, v{vT1}")
    e(f"v_and_b32 v{vT2}, 1, v{vLane}")
    e(f"v_add_u32 v{vT1}, v{vT1}, v{vT2}")
    e(f"v_lshlrev_b32 v{vLdsR}, 4, v{vT1}")
    e(f"v_and_b32 v{vT1}, 14, v{vLane}")
    e(f"v_add_u32 v{vLdsR}, v{vLdsR}, v{vT1}")
    e(f"v_lshrrev_b32 v{vT1}, 1, v{vT0}")
    e(f"v_add_u32 v{vLdsR}, v{vLdsR}, v{vT1}")
    e(f"v_lshl_add_u32 v{vLdsR}, v{vLdsR}, 2, s{sT}")
    e(f"s_lshl_b32 s{sT}, s{sW}, 9")
    e(f"v_lshlrev_b32 v{vLdsA}, 1, v{vT3}")
    e(f"v_lshl_add_u32 v{vLdsA}, v{vT0}, 4, v{vLdsA}")
    e(f"v_add_u32 v{vLdsA}, s{sT}, v{vLdsA}")
    e(f"v_and_b32 v{vT2}, 1, v{vT0}")
    e(f"v_lshl_add_u32 v{vTlO}, v{vT2}, 4, v{vT1}")
    e(f"v_and_b32 v{vT2}, 1, v{vLane}")
    e(f"v_lshl_add_u32 v{vTlO}, v{vT2}, 3, v{vTlO}")
    e(f"v_and_b32 v{vT2}, 6, v{vLane}")
    e(f"v_add_u32 v{vTlO}, v{vTlO}, v{vT2}")
    e(f"s_lshl_b32 s{sT}, s{sW}, 7")
    e(f"v_lshl_add_u32 v{vTlO}, v{vTlO}, 2, s{sT}")
    e(f"s_lshl_b32 s{sT}, s{sW}, 11")
    e(f"v_add_u32 v{vTlW}, s{sT}, v{vLdsA}")
    e(f"v_lshlrev_b32 v{vTlR}, 4, v0")
    e(f"v_lshrrev_b32 v{vTlM}, 3, v0")
    e(f"v_lshlrev_b32 v{vTlM}, 12, v{vTlM}")
    e(f"v_and_b32 v{vT2}, 7, v0")
    e(f"v_lshl_add_u32 v{vTlM}, v{vT2}, 4, v{vTlM}")
    if bal:
        e(f"s_getreg_b32 s{sT}, hwreg(HW_REG_HW_ID)")
        e(f"s_bfe_u32 s{sSlot}, s{sT}, 0x40008")
        e(f"s_bfe_u32 s{sT}, s{sT}, 0x2000d")
        e(f"s_lshl_b32 s{sT}, s{sT}, 4")
        e(f"s_add_u32 s{sSlot}, s{sSlot}, s{sT}")
        e(f"s_lshl_b32 s{sSlot}, s{sSlot}, 2")
        e(f"v_lshlrev_b32 v{vBdA}, 2, v{vLane}")
        e(f"s_mov_b32 s{sPos}, 0")
        e(f"s_mov_b32 s{sC0}, {bal['c0']}")
        if bal["d"]:
            e(f"s_getreg_b32 s{sT}, hwreg(HW_REG_XCC_ID)")
            e(f"s_and_b32 s{sT}, s{sT}, 1")
            e(f"s_and_b32 s{sT3}, s{sH}, 3")
            e(f"s_cmp_eq_u32 s{sT3}, 1")
            e(f"s_cselect_b32 s{sT}, 0, s{sT}")
            e(f"s_mul_i32 s{sT}, s{sT}, {bal['d']}")
            e(f"s_sub_u32 s{sC0}, s{sC0}, s{sT}")
        e(f"s_mov_b32 s{sC}, s{sC0}")
    e(f"s_mul_i32 s{sT2}, s{sW}, {32*1280}")
    vm.wait("x")
    if bal:
        e(f"s_mov_b32 s{sBd}, s26")
        e(f"s_mov_b32 s{sBd+1}, s27")
        e(f"s_mov_b32 s{sBd+2}, 256")
        e(f"s_mov_b32 s{sBd+3}, 0x20000")
    xsel(0, vA)
    for r in range(40):
        if r < 39: xsel(r+1, vA + 4*((r+1) % 2))
        else: e("s_nop 1")
        vm.wait(f"wq{r}")
        c = "0" if r == 0 else vr(vD)
        e(f"v_mfma_f32_16x16x32_bf16 {vr(vD)}, {vr(vA+4*(r%2))}, {ar(4*r)}, {c}")
        if nk[0] < D and vm.room() > 0: kpre()
    assert nk[0] == D
    stamp(2)
    e(f"v_lshrrev_b32 v{vT1}, 2, v{vLane}")
    e(f"v_lshlrev_b32 v{vT1}, 5, v{vT1}")
    e("s_nop 5")
    e("s_mov_b32 exec_hi, 0")
    e(f"ds_write_b128 v{vLdsA}, {vr(vD)} offset:{L_Q}")
    e("s_mov_b32 exec_hi, -1")
    e("s_waitcnt lgkmcnt(0)")
    e("s_barrier")
    for w in range(4):
        e(f"ds_read_b128 {vr(vX+8*w)}, v{vT1} offset:{L_Q + 512*w}")
        e(f"ds_read_b128 {vr(vX+8*w+4)}, v{vT1} offset:{L_Q + 512*w + 16}")
    e("s_waitcnt lgkmcnt(4)")
    for j in range(8): e(f"v_add_f32 v{vX+j}, v{vX+j}, v{vX+8+j}")
    e("s_waitcnt lgkmcnt(0)")
    for j in range(8): e(f"v_add_f32 v{vX+16+j}, v{vX+16+j}, v{vX+24+j}")
    for j in range(8): e(f"v_add_f32 v{vX+j}, v{vX+j}, v{vX+16+j}")
    for i in range(4): e(f"v_cvt_pk_bf16_f32 v{vX+8+i}, v{vX+2*i}, v{vX+2*i+1}")
    for t in range(4):
        for i in range(4):
            e(f"v_cndmask_b32 v{vQ+4*t+i}, 0, v{vX+8+i}, s[{sM+2*t}:{sM+2*t+1}]")
    e(f"s_mov_b32 s{sIt}, 0")
    stamp(3)

    def wcnt(Wn, s):
        base = math.floor(Wn + 1e-9); fr = Wn - base
        return base - 1 + int(math.floor((s + 1) * fr + 0.5 + 1e-9) - math.floor(s * fr + 0.5 + 1e-9))
    def slotwait(tag, s, Wn, ctl, extra5):
        x = lambda n: n + (5 if (extra5 and s <= n) else 0)
        if not ctl:
            e(f"s_waitcnt vmcnt({x(wcnt(Wn, s))})"); return
        r = brev5(s)
        if r < bal["up"]:
            e(f"s_waitcnt vmcnt({x(5)})")
            e(f"s_cmp_gt_u32 s{sC}, {32 + r}")
            e(f"s_cbranch_scc1 L_{tag}_w{s}")
            e(f"s_waitcnt vmcnt({x(4)})")
            e(f"L_{tag}_w{s}:")
        elif r >= 32 - bal["dn"]:
            e(f"s_waitcnt vmcnt({x(4)})")
            e(f"s_cmp_gt_u32 s{sC}, {r}")
            e(f"s_cbranch_scc1 L_{tag}_w{s}")
            e(f"s_waitcnt vmcnt({x(3)})")
            e(f"L_{tag}_w{s}:")
        else:
            e(f"s_waitcnt vmcnt({x(4)})")
    def bal_pre(s):
        if s == 0:
            e(f"buffer_load_dword v{vBd}, v{vBdA}, {srd(sBd)}, 0 offen sc1")
        if s == 16:
            for n in (8, 4, 2, 1):
                e(f"v_add_u32_dpp v{vBd}, v{vBd}, v{vBd} row_ror:{n} row_mask:0xf bank_mask:0xf")
                e("s_nop 1" if n != 1 else "s_nop 0")
            for l in range(4): e(f"v_readlane_b32 s{[sT, sT3, sT4, sT5][l]}, v{vBd}, {16*l}")
            e(f"s_add_u32 s{sT}, s{sT}, s{sT3}")
            e(f"s_add_u32 s{sT4}, s{sT4}, s{sT5}")
            e(f"s_add_u32 s{sT}, s{sT}, s{sT4}")
            e(f"s_lshl_b32 s{sT3}, s{sPos}, 5")
            e(f"s_sub_i32 s{sT}, s{sT}, s{sT3}")
            e(f"s_add_i32 s{sT}, s{sT}, {bal['bias']}")
            if bal["g"] != 1: e(f"s_mul_i32 s{sT}, s{sT}, {bal['g']}")
            e(f"s_ashr_i32 s{sT}, s{sT}, {bal['sh']}")
            e(f"s_add_i32 s{sT}, s{sT}, s{sC0}")
            e(f"s_max_i32 s{sT}, s{sT}, {bal['cmin']}")
            e(f"s_min_i32 s{sC}, s{sT}, {bal['cmax']}")
            e(f"s_add_u32 s{sPos}, s{sPos}, 4")
    def bal_post(tag, s):
        if s % 8 != 7: return
        k = s // 8
        e(f"s_cmp_lg_u32 s{sW}, {k}")
        e(f"s_cbranch_scc1 L_{tag}_np{k}")
        e(f"s_add_u32 s{sT}, s{sPos}, {(k + 1) - (4 if s >= 16 else 0)}")
        e(f"v_mov_b32 v{vBdT}, s{sT}")
        e("s_mov_b64 exec, 1")
        e(f"buffer_store_dword v{vBdT}, off, {srd(sBd)}, s{sSlot}")
        e("s_mov_b64 exec, -1")
        e(f"L_{tag}_np{k}:")

    e("L_k:")
    e(f"s_add_u32 s{sOff}, s{sOff}, {step}")
    def tree(lo, bit):
        if bit < 0:
            for T in range(5):
                e(f"buffer_load_dwordx4 {ar(woreg(lo, T))}, v{vOffW}, {srd(sWo)}, s{sT2} offen offset:{T*256} {polWo}")
            if lo != 7: e("s_branch L_k_wodone")
            return
        e(f"s_bitcmp1_b32 s{sIt}, {bit}")
        e(f"s_cbranch_scc1 L_k_wo{lo + (1 << bit)}_{bit}")
        tree(lo, bit - 1)
        e(f"L_k_wo{lo + (1 << bit)}_{bit}:")
        tree(lo + (1 << bit), bit - 1)
    tree(0, 2)
    e("L_k_wodone:")
    e(f"s_add_u32 s{sT2}, s{sT2}, 1280")
    e(f"s_cmp_lg_u32 s{sIt}, {NIT-1}")
    e("s_cbranch_scc1 L_k_go")
    e(f"s_mov_b32 s{sK}, s{sV}")
    e(f"s_mov_b32 s{sK+1}, s{sV+1}")
    e(f"s_mov_b32 s{sOff}, s{sOff0}")
    e(f"v_mov_b32 v{vOffC}, v{vOffV}")
    for j in range(1, nv): e(f"v_add_u32 v{vOffC+j}, {j*hs}, v{vOffV}")
    e("L_k_go:")
    soffs()
    e(f"s_add_u32 s{sIt}, s{sIt}, 1")
    for u in range(2):
        for s16 in range(16):
            s = u * 16 + s16
            b, t = s16 // 4, s16 % 4
            if bal: bal_pre(s)
            slotwait("k", s, W, bal, True)
            c = "0" if t == 0 else vr(vD+4*b)
            e(f"v_mfma_f32_16x16x32_bf16 {vr(vD+4*b)}, {vr(vRing+4*s)}, {vr(vQ+4*t)}, {c}")
            ringload(s)
            if bal: bal_post("k", s)
        for r in range(4):
            for k in range(4):
                cc = (r + k) % 4
                ror = (4 * (r - cc)) % 16
                ctl = "quad_perm:[0,1,2,3]" if ror == 0 else f"row_ror:{ror}"
                if k == 0:
                    e(f"v_mov_b32_dpp v{vS}, v{vD+4*r+cc} {ctl} row_mask:0xf bank_mask:{hex(1<<r)}")
                else:
                    e(f"v_add_f32_dpp v{vS}, v{vD+4*r+cc}, v{vS} {ctl} row_mask:0xf bank_mask:{hex(1<<r)}")
        e(f"v_cvt_pk_bf16_f32 v{vS}, v{vS}, v{vS}")
        e(f"v_lshlrev_b32 v{vS}, 16, v{vS}")
        e(f"v_mul_f32 v{vS}, {hex(f2u(128 ** -0.5))}, v{vS}")
        e(f"v_cvt_pk_bf16_f32 v{vS}, v{vS}, v{vS}")
        e(f"v_lshlrev_b32 v{vS}, 16, v{vS}")
        e(f"v_max_f32 v{vMax}, v{vMax}, v{vS}")
        e(f"ds_write_b32 v{vLdsS}, v{vS} offset:{256*u}")
    e(f"v_add_u32 v{vLdsS}, 512, v{vLdsS}")
    e(f"s_cmp_lt_u32 s{sIt}, {NIT}")
    e("s_cbranch_scc1 L_k")

    def probs():
        for u in range(2): e(f"v_fma_f32 v{vT0+u}, v{vSn+u}, v{vC}, -v{vMc}")
        e(f"v_add_u32 v{vLdsR}, 512, v{vLdsR}")
        for u in range(2): e(f"v_exp_f32 v{vT0+u}, v{vT0+u}")
        for u in range(2): e(f"ds_read_b32 v{vSn+u}, v{vLdsR} offset:{256*u}")
        for u in range(2): e(f"v_cvt_pk_bf16_f32 v{vPn+u}, v{vT0+u}, v{vT0+u}")
        for u in range(2): e(f"v_add_f32 v{vL}, v{vL}, v{vT0+u}")
    for u in range(2): e(f"ds_read_b32 v{vSn+u}, v{vLdsR} offset:{256*u}")
    wave_reduce("v_max_f32", vMax, vT0)
    e(f"v_mul_f32 v{vMc}, v{vMax}, v{vC}")
    e(f"v_add_u32 v{vFlag}, 0x01010101, v{vFlag}")
    for j in range(4): e(f"v_bfe_u32 v{vTag+j}, v{vFlag}, {8*j}, 8")
    e(f"s_lshl_b32 s{sT2}, s{sH}, 7")
    e("s_waitcnt lgkmcnt(0)")
    probs()
    e(f"s_mov_b32 s{sIt}, 0")
    stamp(4)

    def vslots(tag, Wn, ctl, last):
        ssel(vP, 0)
        for j in range(16):
            if j < 15: ssel(vP + (j+1) // 8, (j+1) % 8)
            else: e("s_nop 0")
            mm = f"v_smfmac_f32_16x16x64_bf16 {vr(vAcc)}, {vr(vA+4*(j%2))}, {vr(vRing+8*j, 8)}, v{vIdx}"
            if last:
                e(f"s_waitcnt vmcnt({30 - 2*j})"); e(mm)
                if j < 14: e("s_nop 1")
                continue
            for s in (2*j, 2*j+1):
                if tag == "vb" and s < bstart:
                    if bal and s == 0: bal_pre(0)
                    if bal and s == 16 : bal_pre(16)
                    slotwait(tag, s, W, bal, False)
                else:
                    if ctl: bal_pre(s)
                    slotwait(tag, s, Wn, ctl, False)
                if s == 2*j: e(mm)
                ringload(s)
                if ctl or (tag == "vb" and bal and s < bstart and s < 16): bal_post(tag, s)
    def vtrip(tag, Wn, ctl):
        e(f"L_{tag}:")
        e(f"s_add_u32 s{sOff}, s{sOff}, {step}")
        e("s_waitcnt lgkmcnt(0)")
        for u in range(2): e(f"v_mov_b32 v{vP+u}, v{vPn+u}")
        probs()
        soffs()
        e(f"s_add_u32 s{sIt}, s{sIt}, 1")
        e(f"s_cmp_lg_u32 s{sIt}, {NIT-1}")
        e(f"s_cbranch_scc1 L_{tag}_go")
        wave_reduce("v_add_f32", vL, vT0)
        e(f"s_lshl_b32 s{sT}, s{sW}, 3")
        e(f"v_mov_b32 v{vT2}, v{vMc}")
        e(f"v_mov_b32 v{vT3}, v{vL}")
        e(f"v_mov_b32 v{vT1}, s{sT}")
        e(f"ds_write_b64 v{vT1}, v[{vT2}:{vT3}] offset:{L_ML}")
        e(f"L_{tag}_go:")
        vslots(tag, Wn, ctl, False)
    boost = Wboost is not None
    vtrip("va", W, bal)
    e(f"s_cmp_lt_u32 s{sIt}, {NIT - 1 - (1 if boost else 0)}")
    e("s_cbranch_scc1 L_va")
    if boost: vtrip("vb", Wboost, None)
    e(f"v_mov_b32 v{vT0}, 0")
    for u in range(2): e(f"v_mov_b32 v{vP+u}, v{vPn+u}")
    e("s_waitcnt lgkmcnt(0)")
    e("s_barrier")
    e(f"ds_read_b128 {vr(vML)}, v{vT0} offset:{L_ML}")
    e(f"ds_read_b128 {vr(vML+4)}, v{vT0} offset:{L_ML+16}")
    e(f"s_mov_b32 s{sT3}, 0xffffff00")
    e("s_waitcnt lgkmcnt(0)")
    e(f"v_max3_f32 v{vT0}, v{vML}, v{vML+2}, v{vML+4}")
    e(f"v_max_f32 v{vT0}, v{vT0}, v{vML+6}")
    for w in range(4): e(f"v_sub_f32 v{vML+2*w}, v{vML+2*w}, v{vT0}")
    for w in range(4): e(f"v_exp_f32 v{vML+2*w}, v{vML+2*w}")
    e("s_nop 0")
    e(f"v_mul_f32 v{vT0}, v{vML}, v{vML+1}")
    for w in range(1, 4): e(f"v_fmac_f32 v{vT0}, v{vML+2*w}, v{vML+2*w+1}")
    e(f"v_rcp_f32 v{vT0}, v{vT0}")
    e("s_nop 0")
    for w in range(4): e(f"v_mul_f32 v{vBeta+w}, v{vML+2*w}, v{vT0}")
    vslots("vl", None, None, True)
    stamp(5)
    e("s_nop 7")
    e("s_mov_b32 exec_hi, 0")
    e(f"ds_write_b128 v{vLdsA}, {vr(vAcc)} offset:{L_O}")
    e("s_mov_b32 exec_hi, -1")
    e("s_waitcnt lgkmcnt(0)")
    e("s_barrier")
    tstamp(1)
    for w in range(4): e(f"ds_read_b32 v{vX+w}, v{vTlO} offset:{L_O + 512*w}")
    e("s_waitcnt lgkmcnt(2)" if stamps != 2 else "s_waitcnt lgkmcnt(0)")
    e(f"v_mul_f32 v{vX}, v{vX}, v{vBeta}")
    e(f"v_fmac_f32 v{vX}, v{vX+1}, v{vBeta+1}")
    e("s_waitcnt lgkmcnt(0)")
    e(f"v_fmac_f32 v{vX}, v{vX+2}, v{vBeta+2}")
    e(f"v_fmac_f32 v{vX}, v{vX+3}, v{vBeta+3}")
    e(f"v_cvt_pk_bf16_f32 v{vP}, v{vX}, v{vX}")
    tstamp(2)
    e("s_nop 1")
    ssel(vP, 0)
    e("s_nop 1")
    for pr in range(4):
        for T in range(5):
            if T == 2 and pr < 3: ssel(vP, pr+1)
            e(f"v_smfmac_f32_16x16x64_bf16 {ar(aOut+4*T)}, {vr(vA+4*(pr%2))}, {ar(woreg(2*pr, T), 8)}, v{vIdx}")
    tstamp(3)
    e("s_mov_b32 exec_hi, 0")
    e("s_nop 3")
    for T in range(5):
        e(f"ds_write_b128 v{vTlW}, {ar(aOut+4*T)} offset:{L_OUT + 512*T}")
    e("s_mov_b32 exec_hi, -1")
    e("s_waitcnt lgkmcnt(0)")
    e("s_barrier")
    tstamp(4)
    e(f"s_cmp_eq_u32 s{sW}, 3")
    e("s_cbranch_scc1 L_consume")
    for w in range(4):
        e(f"ds_read_b128 {vr(vX+4*w)}, v{vTlR} offset:{L_OUT + 2560*w}")
    e("s_waitcnt lgkmcnt(2)" if stamps != 2 else "s_waitcnt lgkmcnt(0)")
    for j in range(4): e(f"v_add_f32 v{vX+j}, v{vX+j}, v{vX+4+j}")
    e("s_waitcnt lgkmcnt(0)")
    for j in range(4): e(f"v_add_f32 v{vX+8+j}, v{vX+8+j}, v{vX+12+j}")
    for j in range(4): e(f"v_add_f32 v{vX+j}, v{vX+j}, v{vX+8+j}")
    for j in range(4): e(f"v_and_or_b32 v{vX+j}, v{vX+j}, s{sT3}, v{vTag+j}")
    e(f"buffer_store_dwordx4 {vr(vX)}, v{vTlM}, {srd(sIn)}, s{sT2} offen {polSt}")
    stamp(6)
    e("s_branch L_fin")
    e("L_consume:")
    e(f"s_cmp_eq_u32 s{sCons}, 0")
    e("s_cbranch_scc1 L_fin")
    e(f"s_lshl_b32 s{sT}, s{sH}, 12")
    e(f"s_mov_b32 s{sSpin}, 0")
    e(f"v_mov_b32 v{vT2}, 0x0c0c0400")
    e(f"v_mov_b32 v{vT3}, 0x04000c0c")
    e(f"s_mul_i32 s{sIt}, s{sB}, 2560")
    e(f"s_mul_i32 s{sT2}, s{sBr}, 1280")
    e(f"s_add_u32 s{sIt}, s{sIt}, s{sT2}")
    e(f"s_lshl_b32 s{sT2}, s{sH}, 6")
    e(f"s_add_u32 s{sIt}, s{sIt}, s{sT2}")
    e(f"v_lshlrev_b32 v{vS}, 3, v{vLane}")
    e("L_poll:")
    for i in range(4):
        e(f"buffer_load_dwordx4 {vr(vX+4*i)}, v{vOffV}, {srd(sIn)}, s{sT} offen offset:{1024*i} {polLd}")
    e(f"s_add_u32 s{sSpin}, s{sSpin}, 1")
    for i in range(4):
        e(f"s_waitcnt vmcnt({3-i})")
        e(f"v_perm_b32 v{vT0}, v{vX+4*i+1}, v{vX+4*i}, v{vT2}")
        e(f"v_perm_b32 v{vT1}, v{vX+4*i+3}, v{vX+4*i+2}, v{vT3}")
        for j in range(4): e(f"v_and_b32 v{vX+4*i+j}, s{sT3}, v{vX+4*i+j}")
        e(f"v_or_b32 v{vT0}, v{vT0}, v{vT1}")
        e(f"v_xor_b32 v{vX+16+i}, v{vT0}, v{vFlag}")
        if i == 1:
            for j in range(4): e(f"v_add_f32 v{vX+j}, v{vX+j}, v{vX+4+j}")
    e(f"v_or3_b32 v{vT0}, v{vX+16}, v{vX+17}, v{vX+18}")
    e(f"v_or_b32 v{vT0}, v{vT0}, v{vX+19}")
    e(f"v_cmp_ne_u32 vcc, 0, v{vT0}")
    e(f"s_cmp_ge_u32 s{sSpin}, 0x200000")
    e("s_cbranch_scc1 L_polled")
    e("s_cbranch_vccnz L_poll")
    e("L_polled:")
    for j in range(4): e(f"v_add_f32 v{vX+8+j}, v{vX+8+j}, v{vX+12+j}")
    for j in range(4): e(f"v_add_f32 v{vX+j}, v{vX+j}, v{vX+8+j}")
    e("s_nop 1")
    for j in range(4): e(f"v_add_f32_dpp v{vX+j}, v{vX+j}, v{vX+j} row_ror:8 row_mask:0xf bank_mask:0xf")
    for j in range(4): e(f"v_mov_b32 v{vX+4+j}, v{vX+j}")
    e("s_nop 1")
    for j in range(4): e(f"v_permlane16_swap_b32 v{vX+j}, v{vX+4+j}")
    for j in range(4): e(f"v_add_f32 v{vX+j}, v{vX+j}, v{vX+4+j}")
    for j in range(4): e(f"v_mov_b32 v{vX+4+j}, v{vX+j}")
    e("s_nop 1")
    for j in range(4): e(f"v_permlane32_swap_b32 v{vX+j}, v{vX+4+j}")
    for j in range(4): e(f"v_add_f32 v{vX+j}, v{vX+j}, v{vX+4+j}")
    e(f"v_cvt_pk_bf16_f32 v{vX}, v{vX}, v{vX+1}")
    e(f"v_cvt_pk_bf16_f32 v{vX+1}, v{vX+2}, v{vX+3}")
    e("s_mov_b64 exec, 0xff")
    e(f"buffer_store_dwordx2 v[{vX}:{vX+1}], v{vS}, {srd(sOut)}, s{sIt} offen {polOut}")
    e(f"s_cmp_lg_u32 s{sH}, 0")
    e("s_cbranch_scc1 L_nobump")
    e("s_mov_b64 exec, 1")
    e(f"buffer_store_dword v{vFlag}, off, {srd(sN)}, 0 sc0 sc1")
    e("L_nobump:")
    e("s_mov_b64 exec, -1")
    stamp(6)
    e("L_fin:")
    if stamps:
        e("s_waitcnt vmcnt(0) lgkmcnt(0)")
        e(f"s_memrealtime s[{sSt+14}:{sSt+15}]")
        e(f"s_getreg_b32 s{sT3}, hwreg(HW_REG_XCC_ID)")
        e(f"s_add_u32 s{sIn}, s28, 0x100000")
        e(f"s_addc_u32 s{sIn+1}, s29, 0")
        e(f"s_mov_b32 s{sIn+2}, 0x20000")
        e(f"s_lshl_b32 s{sT}, s2, 2")
        e(f"s_add_u32 s{sT}, s{sT}, s{sW}")
        e(f"s_lshl_b32 s{sT}, s{sT}, 7")
        e("s_waitcnt lgkmcnt(0)")
        e(f"v_mov_b32 v{vT0}, 0")
        e("s_mov_b64 exec, 1")
        for i in range(8):
            e(f"v_mov_b32 v{vX+2*i}, s{sSt+2*i}")
            e(f"v_mov_b32 v{vX+2*i+1}, s{sSt+2*i+1}")
        e(f"s_getreg_b32 s{sT2}, hwreg(HW_REG_HW_ID)")
        e(f"v_mov_b32 v{vX+16}, s{sT3}")
        e(f"v_mov_b32 v{vX+17}, s{sT2}")
        for i in range(4):
            e(f"buffer_store_dwordx4 {vr(vX+4*i)}, v{vT0}, {srd(sIn)}, s{sT} offen offset:{16*i}")
        e(f"buffer_store_dwordx2 v[{vX+16}:{vX+17}], v{vT0}, {srd(sIn)}, s{sT} offen offset:64")
    e("L_end:")
    e("s_endpgm")
    e('.section .rodata,"a"')
    e(".p2align 6")
    e(f".amdhsa_kernel {KNAME}")
    e(f"  .amdhsa_next_free_vgpr {ACC_OFF + NA}")
    e("  .amdhsa_next_free_sgpr 102")
    e(f"  .amdhsa_accum_offset {ACC_OFF}")
    e("  .amdhsa_group_segment_fixed_size 0")
    e("  .amdhsa_kernarg_size 104")
    e("  .amdhsa_user_sgpr_count 2")
    e("  .amdhsa_user_sgpr_kernarg_segment_ptr 1")
    e("  .amdhsa_system_sgpr_workgroup_id_x 1")
    e("  .amdhsa_float_denorm_mode_32 3")
    e(".end_amdhsa_kernel")
    return "\n".join(o) + "\n"

if __name__ == "__main__":
    cfg = eval("dict(" + (sys.argv[2] if len(sys.argv) > 2 else "") + ")")
    open(sys.argv[1], "w").write(gen(**cfg))
```

```python
import sys, math, struct
KNAME = "concat_heads__gqa_block_cached__gqa_block_cached__decode_kernel"

HEADER = """; Kernarg layout for this problem (104 bytes, ptrs only, base s[0:1]):
;   offset  96: d_ws      workspace: per-head partial outputs handed to the reducing workgroups
;
; One workgroup (4 waves) per (branch, batch, head).  The workgroup walks its K slab, then its V slab,
; The 32 heads of a (branch, batch) are summed through d_ws; every handed-over word carries this
; The number of loads a wave keeps in flight follows its lead over the neighbouring workgroups.
"""

def f2u(x):
    return struct.unpack("<I", struct.pack("<f", x))[0]

def brev5(s):
    return int(f"{s:05b}"[::-1], 2)

class VM:
    def __init__(self, e): self.e = e; self.ops = []; self.seen = set()
    def issue(self, tag):
        self.ops.append(tag); self.seen.add(tag); assert len(self.ops) <= 63, len(self.ops)
    def wait(self, tag):
        assert tag in self.seen
        if tag not in self.ops: return
        i = max(k for k, t in enumerate(self.ops) if t == tag)
        self.e(f"s_waitcnt vmcnt({len(self.ops) - 1 - i})")
        self.ops = self.ops[i+1:]
    def room(self): return 63 - len(self.ops)

BAL = dict(c0=37, g=1, sh=1, bias=21, d=3, cmin=24, cmax=48, up=16, dn=8, twice=0, gv=None, every=1, rot=0, pubs=4, ph=0)

def gen(pol="nt", polW="nt", polWo="nt", F=2, W=5.0625, Wboost=16, ilv=(2, 1), kfirst=17, stamps=0,
        polSt="sc0 sc1", polLd="sc0 sc1", polOut="", bal=BAL, fast=0, hmap=0, npoll=1, diagdelay=0, hold=dict(n=28, ack=1, max=12), polN="sc1", polB="", early=0):
    o = []
    def e(s): o.append(s)
    D, NIT = 32, 8
    bstart = 0
    if isinstance(Wboost, tuple): bstart, Wboost = Wboost
    assert Wboost is None or Wboost <= 30
    if bal is not None: bal = {**BAL, **bal}
    L_Q = 0
    L_O = 2048
    L_ML = 4096
    L_CTL = 4160
    L_OUT = 4224
    L_S = 4224 + 10240
    LDS = L_S + 16384 + 512
    sO = 14
    sC, sC0 = 22, 23
    sW, sH, sB, sBr, sG, sPos = 30, 31, 32, 33, 34, 35
    sK, sWq, sWo, sX, sIn, sN, sOut = 36, 40, 44, 48, 52, 56, 60
    sBd = sX
    sV = 64
    sIt, sOff, sT, sT2, sT3, sCons, sSpin, sOff0 = 66, 67, 68, 69, 70, 71, 72, 73
    sM = 74
    sSt = 82
    sT4, sT5, sSlot = 98, 99, 100
    def srd(b): return f"s[{b}:{b+3}]"
    vLane, vOffV, vOffW, vC, vMc, vT0, vT1, vT2, vT3 = 1, 2, 3, 4, 5, 6, 7, 8, 9
    vM0, vM1, vIdx, vLdsR = 10, 11, 12, 13
    vSelE, vSelO = 14, 18
    vS, vMax, vL, vFlag, vLdsS, vLdsA = 22, 23, 24, 25, 26, 27
    vBd, vBdA, vBdT, vCtl = 28, 29, 30, 31
    vCtlA = vSelE
    vA = 32
    vAcc = 40
    vQ = 44
    vD = 60
    vP, vPn, vSn = 44, 46, 48
    vTag = 52
    vBeta = 56
    vX = 80
    vML = 112
    vOffC = 120
    vRing = 124
    vTlO, vTlW, vTlR, vTlM = 252, 253, 254, 255
    ACC_OFF = 256
    aOut = 160
    NA = 180
    def vr(b, n=4): return f"v[{b}:{b+n-1}]"
    def ar(b, n=4): return f"a[{b}:{b+n-1}]"
    def stamp(i):
        if stamps == 1 or (stamps == 2 and i not in (1, 2, 3, 4)): e(f"s_memrealtime s[{sSt+2*i}:{sSt+2*i+1}]")
    def tstamp(i):
        if stamps == 2: e(f"s_memrealtime s[{sSt+2*i}:{sSt+2*i+1}]")
    wbase, step = F * 1024, D * 4096
    def off(s): return (s // F) * F * 4096 + (s % F) * 1024
    his = sorted(set(off(s) // 4096 * 4096 for s in range(D)))
    hs = his[1] - his[0]
    ns = min(len(his), 8); nv = len(his) // ns
    def soffs(base=sO):
        e(f"s_mov_b32 s{base}, s{sOff}")
        for i in range(1, ns): e(f"s_add_u32 s{base+i}, s{sOff}, {i*nv*hs}")
    def ringload(s, base=sO):
        k = his.index(off(s) // 4096 * 4096)
        e(f"buffer_load_dwordx4 {vr(vRing+4*s)}, v{vOffC+k%nv}, {srd(sK)}, s{base+k//nv} offen offset:{off(s)%4096} {pol}")
    def woreg(rr, T): return ((rr >> 1) * 5 + T) * 8 + (rr & 1) * 4
    def xsel(r, dst):
        sel = vSelE if r % 2 == 0 else vSelO
        for i in range(4):
            e(f"v_perm_b32 v{dst+i}, v{vX+r//2}, v{vX+r//2}, v{sel+i}")
    def ssel(src, j):
        dst = vA + 4 * (j % 2)
        for i in range(4):
            e(f"v_and_b32_dpp v{dst+i}, v{src}, v{(vM0, vM1)[i&1]} row_newbcast:{2*j+(i>>1)} row_mask:0xf bank_mask:0xf")
    def wave_reduce(op, v, t):
        for n in (8, 4, 2, 1):
            e(f"{op}_dpp v{v}, v{v}, v{v} row_ror:{n} row_mask:0xf bank_mask:0xf")
            e("s_nop 1" if n != 1 else "s_nop 0")
        e(f"v_mov_b32 v{t}, v{v}")
        e("s_nop 1")
        e(f"v_permlane16_swap_b32 v{v}, v{t}")
        e("s_nop 0")
        e(f"{op} v{v}, v{v}, v{t}")
        e(f"v_mov_b32 v{t}, v{v}")
        e("s_nop 1")
        e(f"v_permlane32_swap_b32 v{v}, v{t}")
        e("s_nop 0")
        e(f"{op} v{v}, v{v}, v{t}")

    e(HEADER.rstrip("\n"))
    e(f"; @launch grid=(256,1,1) block=(256,1,1) lds={LDS}")
    e('.amdgcn_target "amdgcn-amd-amdhsa--gfx950"')
    e(".text")
    e(f".globl {KNAME}")
    e(".p2align 8")
    e(f".type {KNAME},@function")
    e(f"{KNAME}:")
    stamp(0)
    e("s_cmp_ge_u32 s2, 256")
    e("s_cbranch_scc1 L_end")
    e("s_load_dwordx16 s[4:19], s[0:1], 0")
    e("s_load_dwordx8 s[20:27], s[0:1], 64")
    e("s_load_dwordx2 s[28:29], s[0:1], 96")
    e(f"v_lshrrev_b32 v{vT0}, 6, v0")
    e(f"v_and_b32 v{vLane}, 63, v0")
    e(f"v_readfirstlane_b32 s{sW}, v{vT0}")
    e(f"s_and_b32 s{sH}, s2, 7")
    e(f"s_bfe_u32 s{sT}, s2, 0x20005")
    if hmap == 0: e(f"s_lshl_b32 s{sT}, s{sT}, 3")
    elif hmap == 2: e(f"s_lshl_b32 s{sH}, s{sH}, 2")
    elif hmap in (4, 5, 6):
        if hmap == 4:
            e(f"s_and_b32 s{sT3}, s{sH}, 1"); e(f"s_lshl_b32 s{sT3}, s{sT3}, 1"); e(f"s_xor_b32 s{sH}, s{sH}, s{sT3}")
        elif hmap == 5:
            e(f"s_and_b32 s{sT3}, s{sH}, 4"); e(f"s_lshr_b32 s{sT3}, s{sT3}, 1"); e(f"s_xor_b32 s{sH}, s{sH}, s{sT3}")
        else:
            e(f"s_lshr_b32 s{sT3}, s2, 7"); e(f"s_lshl_b32 s{sT3}, s{sT3}, 1"); e(f"s_xor_b32 s{sH}, s{sH}, s{sT3}")
        e(f"s_lshl_b32 s{sT}, s{sT}, 3")
    else:
        e(f"s_add_u32 s{sH}, s{sH}, s{sT}")
        e(f"s_and_b32 s{sH}, s{sH}, 7")
        e(f"s_lshl_b32 s{sT}, s{sT}, 3")
    e(f"s_add_u32 s{sH}, s{sH}, s{sT}")
    e(f"s_lshr_b32 s{sBr}, s2, 7")
    e(f"s_bfe_u32 s{sB}, s2, 0x20003")
    e(f"s_lshl_b32 s{sG}, s{sBr}, 2")
    e(f"s_add_u32 s{sG}, s{sG}, s{sB}")
    e(f"v_lshrrev_b32 v{vT0}, 4, v{vLane}")
    e(f"v_and_b32 v{vT1}, 15, v{vLane}")
    e(f"v_mul_u32_u24 v{vT2}, 80, v{vT0}")
    e(f"v_lshlrev_b32 v{vT3}, 4, v{vT1}")
    e(f"v_mul_u32_u24 v{vOffW}, {40*8192}, v{vT0}")
    e(f"v_add_u32 v{vOffW}, v{vOffW}, v{vT3}")
    e(f"v_lshlrev_b32 v{vOffV}, 4, v{vLane}")
    e(f"v_lshrrev_b32 v{vOffC}, 2, v{vT1}")
    e(f"v_lshlrev_b32 v{vOffC}, 8, v{vOffC}")
    e(f"v_lshl_add_u32 v{vOffC}, v{vT0}, 6, v{vOffC}")
    e(f"v_and_b32 v{vS}, 3, v{vLane}")
    e(f"v_lshl_add_u32 v{vOffC}, v{vS}, 4, v{vOffC}")
    for j in range(1, nv): e(f"v_add_u32 v{vOffC+j}, {j*hs}, v{vOffC}")
    e(f"s_lshl_b32 s{sT}, s{sB}, 5")
    e(f"s_add_u32 s{sT}, s{sT}, s{sH}")
    e(f"s_lshl_b32 s{sT}, s{sT}, 20")
    e(f"s_mul_i32 s{sT2}, s{sB}, 1280")
    e(f"s_lshl_b32 s{sT3}, s{sH}, 8")
    e(f"s_mul_i32 s{sOff0}, s{sW}, {wbase}")
    e(f"s_mov_b32 s{sOff}, s{sOff0}")
    e(f"s_mov_b32 s{sX+2}, 1280")
    e(f"s_mov_b32 s{sX+3}, 0x20000")
    e(f"s_sub_u32 s{sWq+2}, {640*8192}, s{sT3}")
    e(f"s_mov_b32 s{sWq+3}, 0x20000")
    e(f"s_mov_b32 s{sK+2}, 0x100000")
    e(f"s_mov_b32 s{sK+3}, 0x20000")
    e(f"s_mul_i32 s{sSpin}, s{sW}, 320")
    e(f"s_mul_i32 s3, s{sW}, {160*8192}")
    if not fast:
        e(f"s_cmp_eq_u32 s{sBr}, 0")
        e("s_waitcnt lgkmcnt(0)")
        e("s_cselect_b64 s[4:5], s[4:5], s[14:15]")
        e("s_cselect_b64 s[10:11], s[10:11], s[20:21]")
        e("s_cselect_b64 s[6:7], s[6:7], s[16:17]")
        e("s_cselect_b64 s[8:9], s[8:9], s[18:19]")
        e("s_cselect_b64 s[12:13], s[12:13], s[22:23]")
        e(f"s_add_u32 s{sX}, s4, s{sT2}")
        e(f"s_addc_u32 s{sX+1}, s5, 0")
        e(f"s_add_u32 s{sWq}, s10, s{sT3}")
        e(f"s_addc_u32 s{sWq+1}, s11, 0")
        vm = VM(e)
        for i in range(5):
            e(f"buffer_load_dwordx4 {vr(vX+4*i)}, v{vT2}, {srd(sX)}, s{sSpin} offen offset:{16*i}"); vm.issue("x")
        e(f"s_add_u32 s{sK}, s6, s{sT}")
        e(f"s_addc_u32 s{sK+1}, s7, 0")
        e(f"s_add_u32 s{sV}, s8, s{sT}")
        e(f"s_addc_u32 s{sV+1}, s9, 0")
        soffs()
        nk = [0]
        def kpre():
            ringload(nk[0]); vm.issue(f"k{nk[0]}"); nk[0] += 1
        a, b = ilv
        r = 0
        while r < 40:
            for _ in range(a):
                if r < 40:
                    e(f"buffer_load_dwordx4 {ar(4*r)}, v{vOffW}, {srd(sWq)}, s3 offen {polW}"); vm.issue(f"wq{r}")
                    if r < 39: e(f"s_add_u32 s3, s3, 8192")
                    r += 1
            for _ in range(b):
                if nk[0] < kfirst: kpre()
        while nk[0] < kfirst: kpre()
    else:
        soffs(sM)
        e(f"s_cmp_eq_u32 s{sBr}, 0")
        e("s_waitcnt lgkmcnt(0)")
        e("s_cselect_b64 s[6:7], s[6:7], s[16:17]")
        e("s_cselect_b64 s[10:11], s[10:11], s[20:21]")
        e("s_cselect_b64 s[4:5], s[4:5], s[14:15]")
        e("s_cselect_b64 s[8:9], s[8:9], s[18:19]")
        e("s_cselect_b64 s[12:13], s[12:13], s[22:23]")
        e(f"s_add_u32 s{sK}, s6, s{sT}")
        e(f"s_addc_u32 s{sK+1}, s7, 0")
        vm = VM(e)
        nk = [0]; kb = [sM]
        def kpre():
            ringload(nk[0], kb[0]); vm.issue(f"k{nk[0]}"); nk[0] += 1
        kpre()
        e(f"s_add_u32 s{sWq}, s10, s{sT3}")
        e(f"s_addc_u32 s{sWq+1}, s11, 0")
        a, b = ilv
        r = 0
        while r < 40:
            for _ in range(a):
                if r < 40:
                    e(f"buffer_load_dwordx4 {ar(4*r)}, v{vOffW}, {srd(sWq)}, s3 offen {polW}"); vm.issue(f"wq{r}")
                    if r < 39: e(f"s_add_u32 s3, s3, 8192")
                    r += 1
            if r == a:
                e(f"s_add_u32 s{sX}, s4, s{sT2}")
                e(f"s_addc_u32 s{sX+1}, s5, 0")
                for i in range(5):
                    e(f"buffer_load_dwordx4 {vr(vX+4*i)}, v{vT2}, {srd(sX)}, s{sSpin} offen offset:{16*i}"); vm.issue("x")
            for _ in range(b):
                if nk[0] < kfirst: kpre()
        while nk[0] < kfirst: kpre()
        e(f"s_add_u32 s{sV}, s8, s{sT}")
        e(f"s_addc_u32 s{sV+1}, s9, 0")
        soffs(); kb[0] = sO
    e(f"s_lshl_b32 s{sT}, s{sG}, 7")
    e(f"s_add_u32 s{sT}, s{sT}, {8*20*4096}")
    e(f"s_add_u32 s{sN}, s28, s{sT}")
    e(f"s_addc_u32 s{sN+1}, s29, 0")
    e(f"s_mov_b32 s{sN+2}, 4")
    e(f"s_mov_b32 s{sN+3}, 0x20000")
    e(f"buffer_load_dword v{vFlag}, off, {srd(sN)}, 0 {polN}"); vm.issue("n")
    stamp(1)
    e(f"s_mul_i32 s{sT}, s{sH}, 163840")
    e(f"s_add_u32 s{sWo}, s12, s{sT}")
    e(f"s_addc_u32 s{sWo+1}, s13, 0")
    e(f"s_mov_b32 s{sWo+2}, 163840")
    e(f"s_mov_b32 s{sWo+3}, 0x20000")
    e(f"s_mul_i32 s{sT}, s{sG}, {20*4096}")
    e(f"s_add_u32 s{sIn}, s28, s{sT}")
    e(f"s_addc_u32 s{sIn+1}, s29, 0")
    e(f"s_mov_b32 s{sIn+2}, {20*4096}")
    e(f"s_mov_b32 s{sIn+3}, 0x20000")
    e(f"s_mov_b32 s{sOut}, s24")
    e(f"s_mov_b32 s{sOut+1}, s25")
    e(f"s_mov_b32 s{sOut+2}, 10240")
    e(f"s_mov_b32 s{sOut+3}, 0x20000")
    e(f"s_cmp_lt_u32 s{sH}, 20")
    e(f"s_cselect_b32 s{sCons}, 1, 0")
    e(f"s_cmp_eq_u32 s{sW}, 3")
    e(f"s_cselect_b32 s{sCons}, s{sCons}, 0")
    e(f"v_mul_u32_u24 v{vOffW}, {8*1280}, v{vT0}")
    e(f"v_add_u32 v{vOffW}, v{vOffW}, v{vT3}")
    e(f"v_and_b32 v{vS}, 1, v{vLane}")
    e(f"v_cmp_eq_u32 vcc, 1, v{vS}")
    e(f"v_mov_b32 v{vT1}, 0x0c0c0100")
    e(f"v_mov_b32 v{vT2}, 0x01000c0c")
    e(f"v_cndmask_b32 v{vMax}, v{vT1}, v{vT2}, vcc")
    e(f"v_mov_b32 v{vT1}, 0x0c0c0302")
    e(f"v_mov_b32 v{vT2}, 0x03020c0c")
    e(f"v_cndmask_b32 v{vL}, v{vT1}, v{vT2}, vcc")
    e(f"v_mov_b32 v{vT1}, 0x0c0c0c0c")
    for i in range(4):
        e(f"s_mov_b32 s{sM+2*i}, {hex(0x00030003 << (2*i))}")
        e(f"s_mov_b32 s{sM+2*i+1}, {hex(0x00030003 << (2*i))}")
    for i in range(4):
        m = f"s[{sM+2*i}:{sM+2*i+1}]"
        e(f"v_cndmask_b32 v{vSelE+i}, v{vT1}, v{vMax}, {m}")
        e(f"v_cndmask_b32 v{vSelO+i}, v{vT1}, v{vL}, {m}")
    e(f"v_mov_b32 v{vT1}, 0xffff")
    e(f"s_mov_b32 s{sM}, 0x000f000f")
    e(f"s_mov_b32 s{sM+1}, 0x000f000f")
    e(f"s_mov_b32 s{sM+2}, 0x00f000f0")
    e(f"s_mov_b32 s{sM+3}, 0x00f000f0")
    e(f"v_cndmask_b32 v{vM0}, 0, v{vT1}, s[{sM}:{sM+1}]")
    e(f"v_cndmask_b32 v{vM1}, 0, v{vT1}, s[{sM+2}:{sM+3}]")
    e(f"v_and_b32 v{vIdx}, 3, v{vLane}")
    e(f"v_xor_b32 v{vT1}, 1, v{vIdx}")
    e(f"v_lshl_or_b32 v{vIdx}, v{vT1}, 2, v{vIdx}")
    e(f"v_mul_u32_u24 v{vIdx}, 0x1111, v{vIdx}")
    for t in range(4):
        e(f"s_mov_b32 s{sM+2*t}, {hex(0x11111111 << t)}")
        e(f"s_mov_b32 s{sM+2*t+1}, {hex(0x11111111 << t)}")
    for i in range(4): e(f"v_mov_b32 v{vAcc+i}, 0")
    for i in range(20): e(f"v_accvgpr_write_b32 a{aOut+i}, 0")
    e(f"v_mov_b32 v{vMax}, 0xff800000")
    e(f"v_mov_b32 v{vL}, 0")
    e(f"v_mov_b32 v{vC}, {hex(f2u(math.log2(math.e)))}")
    e(f"s_lshl_b32 s{sT}, s{sW}, 12")
    e(f"s_add_u32 s{sT}, s{sT}, {L_S}")
    e(f"v_lshl_add_u32 v{vLdsS}, v{vLane}, 2, s{sT}")
    e(f"v_and_b32 v{vT1}, 1, v{vT0}")
    e(f"v_lshlrev_b32 v{vT1}, 1, v{vT1}")
    e(f"v_and_b32 v{vT2}, 1, v{vLane}")
    e(f"v_add_u32 v{vT1}, v{vT1}, v{vT2}")
    e(f"v_lshlrev_b32 v{vLdsR}, 4, v{vT1}")
    e(f"v_and_b32 v{vT1}, 14, v{vLane}")
    e(f"v_add_u32 v{vLdsR}, v{vLdsR}, v{vT1}")
    e(f"v_lshrrev_b32 v{vT1}, 1, v{vT0}")
    e(f"v_add_u32 v{vLdsR}, v{vLdsR}, v{vT1}")
    e(f"v_lshl_add_u32 v{vLdsR}, v{vLdsR}, 2, s{sT}")
    e(f"s_lshl_b32 s{sT}, s{sW}, 9")
    e(f"v_lshlrev_b32 v{vLdsA}, 1, v{vT3}")
    e(f"v_lshl_add_u32 v{vLdsA}, v{vT0}, 4, v{vLdsA}")
    e(f"v_add_u32 v{vLdsA}, s{sT}, v{vLdsA}")
    e(f"v_and_b32 v{vT2}, 1, v{vT0}")
    e(f"v_lshl_add_u32 v{vTlO}, v{vT2}, 4, v{vT1}")
    e(f"v_and_b32 v{vT2}, 1, v{vLane}")
    e(f"v_lshl_add_u32 v{vTlO}, v{vT2}, 3, v{vTlO}")
    e(f"v_and_b32 v{vT2}, 6, v{vLane}")
    e(f"v_add_u32 v{vTlO}, v{vTlO}, v{vT2}")
    e(f"s_lshl_b32 s{sT}, s{sW}, 7")
    e(f"v_lshl_add_u32 v{vTlO}, v{vTlO}, 2, s{sT}")
    e(f"s_lshl_b32 s{sT}, s{sW}, 11")
    e(f"v_add_u32 v{vTlW}, s{sT}, v{vLdsA}")
    e(f"v_lshlrev_b32 v{vTlR}, 4, v0")
    e(f"v_lshrrev_b32 v{vTlM}, 3, v0")
    e(f"v_lshlrev_b32 v{vTlM}, 12, v{vTlM}")
    e(f"v_and_b32 v{vT2}, 7, v0")
    e(f"v_lshl_add_u32 v{vTlM}, v{vT2}, 4, v{vTlM}")
    if bal:
        e(f"s_getreg_b32 s{sT}, hwreg(HW_REG_HW_ID)")
        e(f"s_bfe_u32 s{sSlot}, s{sT}, 0x40008")
        e(f"s_bfe_u32 s{sT}, s{sT}, 0x2000d")
        e(f"s_lshl_b32 s{sT}, s{sT}, 4")
        e(f"s_add_u32 s{sSlot}, s{sSlot}, s{sT}")
        e(f"s_lshl_b32 s{sSlot}, s{sSlot}, 2")
        e(f"v_lshlrev_b32 v{vBdA}, 2, v{vLane}")
        e(f"s_mov_b32 s{sPos}, 0")
        e(f"s_mov_b32 s{sC0}, {bal['c0']}")
        if bal["d"]:
            e(f"s_getreg_b32 s{sT}, hwreg(HW_REG_XCC_ID)")
            e(f"s_and_b32 s{sT}, s{sT}, 1")
            if hmap in (0, 4, 5, 6):
                e(f"s_and_b32 s{sT3}, s{sH}, 3")
                e(f"s_cmp_eq_u32 s{sT3}, 1")
                e(f"s_cselect_b32 s{sT}, 0, s{sT}")
            e(f"s_mul_i32 s{sT}, s{sT}, {bal['d']}")
            e(f"s_sub_u32 s{sC0}, s{sC0}, s{sT}")
        e(f"s_mov_b32 s{sC}, s{sC0}")
    e(f"s_mul_i32 s{sT2}, s{sW}, {32*1280}")
    vm.wait("x")
    if bal:
        e(f"s_mov_b32 s{sBd}, s26")
        e(f"s_mov_b32 s{sBd+1}, s27")
        e(f"s_mov_b32 s{sBd+2}, 256")
        e(f"s_mov_b32 s{sBd+3}, 0x20000")
    xsel(0, vA)
    for r in range(40):
        if r < 39: xsel(r+1, vA + 4*((r+1) % 2))
        else: e("s_nop 1")
        vm.wait(f"wq{r}")
        c = "0" if r == 0 else vr(vD)
        e(f"v_mfma_f32_16x16x32_bf16 {vr(vD)}, {vr(vA+4*(r%2))}, {ar(4*r)}, {c}")
        if nk[0] < D and vm.room() > 0: kpre()
    assert nk[0] == D
    stamp(2)
    e(f"v_lshrrev_b32 v{vT1}, 2, v{vLane}")
    e(f"v_lshlrev_b32 v{vT1}, 5, v{vT1}")
    if bal and bal["rot"]:
        e(f"v_mov_b32 v{vCtl}, s{sC0}")
        e(f"v_mov_b32 v{vCtlA}, {L_CTL}")
        e(f"ds_write_b32 v{vCtlA}, v{vCtl}")
    e("s_nop 5")
    e("s_mov_b32 exec_hi, 0")
    e(f"ds_write_b128 v{vLdsA}, {vr(vD)} offset:{L_Q}")
    e("s_mov_b32 exec_hi, -1")
    e("s_waitcnt lgkmcnt(0)")
    e("s_barrier")
    for w in range(4):
        e(f"ds_read_b128 {vr(vX+8*w)}, v{vT1} offset:{L_Q + 512*w}")
        e(f"ds_read_b128 {vr(vX+8*w+4)}, v{vT1} offset:{L_Q + 512*w + 16}")
    e("s_waitcnt lgkmcnt(4)")
    for j in range(8): e(f"v_add_f32 v{vX+j}, v{vX+j}, v{vX+8+j}")
    e("s_waitcnt lgkmcnt(0)")
    for j in range(8): e(f"v_add_f32 v{vX+16+j}, v{vX+16+j}, v{vX+24+j}")
    for j in range(8): e(f"v_add_f32 v{vX+j}, v{vX+j}, v{vX+16+j}")
    for i in range(4): e(f"v_cvt_pk_bf16_f32 v{vX+8+i}, v{vX+2*i}, v{vX+2*i+1}")
    for t in range(4):
        for i in range(4):
            e(f"v_cndmask_b32 v{vQ+4*t+i}, 0, v{vX+8+i}, s[{sM+2*t}:{sM+2*t+1}]")
    e(f"s_mov_b32 s{sIt}, 0")
    stamp(3)

    def wcnt(Wn, s):
        base = math.floor(Wn + 1e-9); fr = Wn - base
        return base - 1 + int(math.floor((s + 1) * fr + 0.5 + 1e-9) - math.floor(s * fr + 0.5 + 1e-9))
    def slotwait(tag, s, Wn, ctl, extra5):
        x = lambda n: n + (5 if (extra5 and s <= n) else 0)
        if not ctl:
            e(f"s_waitcnt vmcnt({x(wcnt(Wn, s))})"); return
        r = brev5(s)
        if r < bal["up"]:
            e(f"s_waitcnt vmcnt({x(5)})")
            e(f"s_cmp_gt_u32 s{sC}, {32 + r}")
            e(f"s_cbranch_scc1 L_{tag}_w{s}")
            e(f"s_waitcnt vmcnt({x(4)})")
            e(f"L_{tag}_w{s}:")
        elif r >= 32 - bal["dn"]:
            e(f"s_waitcnt vmcnt({x(4)})")
            e(f"s_cmp_gt_u32 s{sC}, {r}")
            e(f"s_cbranch_scc1 L_{tag}_w{s}")
            e(f"s_waitcnt vmcnt({x(3)})")
            e(f"L_{tag}_w{s}:")
        else:
            e(f"s_waitcnt vmcnt({x(4)})")
    def bal_mine(tag, lab):
        if bal["rot"]:
            e(f"s_lshr_b32 s{sT}, s{sPos}, 2")
            if bal["every"] > 1:
                e(f"s_and_b32 s{sT3}, s{sT}, {bal['every'] - 1}")
                e(f"s_cmp_lg_u32 s{sT3}, {bal['ph']}")
                e(f"s_cbranch_scc1 {lab}")
                e(f"s_lshr_b32 s{sT}, s{sT}, {bal['every'].bit_length() - 1}")
            e(f"s_and_b32 s{sT}, s{sT}, 3")
            e(f"s_cmp_lg_u32 s{sT}, s{sW}")
            e(f"s_cbranch_scc1 {lab}")
        elif bal["every"] > 1:
            e(f"s_bfe_u32 s{sT}, s{sPos}, {hex(((bal['every'].bit_length() - 1) << 16) + 2)}")
            e(f"s_cmp_lg_u32 s{sT}, {bal['ph']}")
            e(f"s_cbranch_scc1 {lab}")
    def bal_pre(s, tag="k"):
        if s == 0:
            if bal["rot"]:
                if tag == "k": e("s_waitcnt lgkmcnt(0)")
                e(f"v_readfirstlane_b32 s{sC}, v{vCtl}")
            bal_mine(tag, f"L_{tag}_nord")
            e(f"buffer_load_dword v{vBd}, v{vBdA}, {srd(sBd)}, 0 offen sc1")
            e(f"L_{tag}_nord:")
        if s == 16:
            g, sh = (bal["gv"] if (bal["gv"] and tag != "k") else (bal["g"], bal["sh"]))
            bal_mine(tag, f"L_{tag}_noup")
            for n in (8, 4, 2, 1):
                e(f"v_add_u32_dpp v{vBd}, v{vBd}, v{vBd} row_ror:{n} row_mask:0xf bank_mask:0xf")
                e("s_nop 1" if n != 1 else "s_nop 0")
            for l in range(4): e(f"v_readlane_b32 s{[sT, sT3, sT4, sT5][l]}, v{vBd}, {16*l}")
            e(f"s_add_u32 s{sT}, s{sT}, s{sT3}")
            e(f"s_add_u32 s{sT4}, s{sT4}, s{sT5}")
            e(f"s_add_u32 s{sT}, s{sT}, s{sT4}")
            e(f"s_lshl_b32 s{sT3}, s{sPos}, 5")
            e(f"s_sub_i32 s{sT}, s{sT}, s{sT3}")
            e(f"s_add_i32 s{sT}, s{sT}, {bal['bias']}")
            if g != 1: e(f"s_mul_i32 s{sT}, s{sT}, {g}")
            e(f"s_ashr_i32 s{sT}, s{sT}, {sh}")
            e(f"s_add_i32 s{sT}, s{sT}, s{sC0}")
            e(f"s_max_i32 s{sT}, s{sT}, {bal['cmin']}")
            e(f"s_min_i32 s{sC}, s{sT}, {bal['cmax']}")
            if bal["rot"]:
                e(f"v_mov_b32 v{vBdT}, s{sC}")
                e(f"ds_write_b32 v{vCtlA}, v{vBdT}")
            e(f"L_{tag}_noup:")
            e(f"s_add_u32 s{sPos}, s{sPos}, 4")
        if s == 28 and bal["rot"]:
            e(f"ds_read_b32 v{vCtl}, v{vCtlA}")
    def bal_post(tag, s):
        if s % 8 != 7: return
        k = s // 8
        if bal["pubs"] == 2 and k % 2 == 0: return
        e(f"s_cmp_lg_u32 s{sW}, {k}")
        e(f"s_cbranch_scc1 L_{tag}_np{k}")
        e(f"s_add_u32 s{sT}, s{sPos}, {(k + 1) - (4 if s >= 16 else 0)}")
        e(f"v_mov_b32 v{vBdT}, s{sT}")
        e("s_mov_b64 exec, 1")
        e(f"buffer_store_dword v{vBdT}, off, {srd(sBd)}, s{sSlot}")
        e("s_mov_b64 exec, -1")
        e(f"L_{tag}_np{k}:")

    e("L_k:")
    e(f"s_add_u32 s{sOff}, s{sOff}, {step}")
    def tree(lo, bit):
        if bit < 0:
            for T in range(5):
                e(f"buffer_load_dwordx4 {ar(woreg(lo, T))}, v{vOffW}, {srd(sWo)}, s{sT2} offen offset:{T*256} {polWo}")
            if lo != 7: e("s_branch L_k_wodone")
            return
        e(f"s_bitcmp1_b32 s{sIt}, {bit}")
        e(f"s_cbranch_scc1 L_k_wo{lo + (1 << bit)}_{bit}")
        tree(lo, bit - 1)
        e(f"L_k_wo{lo + (1 << bit)}_{bit}:")
        tree(lo + (1 << bit), bit - 1)
    tree(0, 2)
    e("L_k_wodone:")
    e(f"s_add_u32 s{sT2}, s{sT2}, 1280")
    e(f"s_cmp_lg_u32 s{sIt}, {NIT-1}")
    e("s_cbranch_scc1 L_k_go")
    e(f"s_mov_b32 s{sK}, s{sV}")
    e(f"s_mov_b32 s{sK+1}, s{sV+1}")
    e(f"s_mov_b32 s{sOff}, s{sOff0}")
    e(f"v_mov_b32 v{vOffC}, v{vOffV}")
    for j in range(1, nv): e(f"v_add_u32 v{vOffC+j}, {j*hs}, v{vOffV}")
    e("L_k_go:")
    soffs()
    e(f"s_add_u32 s{sIt}, s{sIt}, 1")
    for u in range(2):
        for s16 in range(16):
            s = u * 16 + s16
            b, t = s16 // 4, s16 % 4
            if bal: bal_pre(s)
            slotwait("k", s, W, bal, True)
            c = "0" if t == 0 else vr(vD+4*b)
            e(f"v_mfma_f32_16x16x32_bf16 {vr(vD+4*b)}, {vr(vRing+4*s)}, {vr(vQ+4*t)}, {c}")
            ringload(s)
            if bal: bal_post("k", s)
        for r in range(4):
            for k in range(4):
                cc = (r + k) % 4
                ror = (4 * (r - cc)) % 16
                ctl = "quad_perm:[0,1,2,3]" if ror == 0 else f"row_ror:{ror}"
                if k == 0:
                    e(f"v_mov_b32_dpp v{vS}, v{vD+4*r+cc} {ctl} row_mask:0xf bank_mask:{hex(1<<r)}")
                else:
                    e(f"v_add_f32_dpp v{vS}, v{vD+4*r+cc}, v{vS} {ctl} row_mask:0xf bank_mask:{hex(1<<r)}")
        e(f"v_cvt_pk_bf16_f32 v{vS}, v{vS}, v{vS}")
        e(f"v_lshlrev_b32 v{vS}, 16, v{vS}")
        e(f"v_mul_f32 v{vS}, {hex(f2u(128 ** -0.5))}, v{vS}")
        e(f"v_cvt_pk_bf16_f32 v{vS}, v{vS}, v{vS}")
        e(f"v_lshlrev_b32 v{vS}, 16, v{vS}")
        e(f"v_max_f32 v{vMax}, v{vMax}, v{vS}")
        e(f"ds_write_b32 v{vLdsS}, v{vS} offset:{256*u}")
    e(f"v_add_u32 v{vLdsS}, 512, v{vLdsS}")
    e(f"s_cmp_lt_u32 s{sIt}, {NIT}")
    e("s_cbranch_scc1 L_k")

    def probs():
        for u in range(2): e(f"v_fma_f32 v{vT0+u}, v{vSn+u}, v{vC}, -v{vMc}")
        e(f"v_add_u32 v{vLdsR}, 512, v{vLdsR}")
        for u in range(2): e(f"v_exp_f32 v{vT0+u}, v{vT0+u}")
        for u in range(2): e(f"ds_read_b32 v{vSn+u}, v{vLdsR} offset:{256*u}")
        for u in range(2): e(f"v_cvt_pk_bf16_f32 v{vPn+u}, v{vT0+u}, v{vT0+u}")
        for u in range(2): e(f"v_add_f32 v{vL}, v{vL}, v{vT0+u}")
    for u in range(2): e(f"ds_read_b32 v{vSn+u}, v{vLdsR} offset:{256*u}")
    wave_reduce("v_max_f32", vMax, vT0)
    e(f"v_mul_f32 v{vMc}, v{vMax}, v{vC}")
    e(f"v_add_u32 v{vFlag}, 0x01010101, v{vFlag}")
    for j in range(4): e(f"v_bfe_u32 v{vTag+j}, v{vFlag}, {8*j}, 8")
    e(f"s_lshl_b32 s{sT2}, s{sH}, 7")
    e("s_waitcnt lgkmcnt(0)")
    probs()
    e(f"s_mov_b32 s{sIt}, 0")
    stamp(4)

    def vslots(tag, Wn, ctl, last):
        ssel(vP, 0)
        for j in range(16):
            if j < 15: ssel(vP + (j+1) // 8, (j+1) % 8)
            else: e("s_nop 0")
            mm = f"v_smfmac_f32_16x16x64_bf16 {vr(vAcc)}, {vr(vA+4*(j%2))}, {vr(vRing+8*j, 8)}, v{vIdx}"
            if last:
                e(f"s_waitcnt vmcnt({30 - 2*j})"); e(mm)
                if j < 14: e("s_nop 1")
                continue
            for s in (2*j, 2*j+1):
                if tag == "vb" and s < bstart:
                    if bal: bal_pre(s, tag)
                    slotwait(tag, s, W, bal, False)
                else:
                    if ctl: bal_pre(s, tag)
                    slotwait(tag, s, Wn, ctl, False)
                if s == 2*j: e(mm)
                ringload(s)
                if ctl or (tag == "vb" and bal and s < bstart and s < 16): bal_post(tag, s)
    def vtrip(tag, Wn, ctl):
        e(f"L_{tag}:")
        e(f"s_add_u32 s{sOff}, s{sOff}, {step}")
        e("s_waitcnt lgkmcnt(0)")
        for u in range(2): e(f"v_mov_b32 v{vP+u}, v{vPn+u}")
        probs()
        soffs()
        e(f"s_add_u32 s{sIt}, s{sIt}, 1")
        e(f"s_cmp_lg_u32 s{sIt}, {NIT-1}")
        e(f"s_cbranch_scc1 L_{tag}_go")
        wave_reduce("v_add_f32", vL, vT0)
        e(f"s_lshl_b32 s{sT}, s{sW}, 3")
        e(f"v_mov_b32 v{vT2}, v{vMc}")
        e(f"v_mov_b32 v{vT3}, v{vL}")
        e(f"v_mov_b32 v{vT1}, s{sT}")
        e(f"ds_write_b64 v{vT1}, v[{vT2}:{vT3}] offset:{L_ML}")
        e(f"L_{tag}_go:")
        vslots(tag, Wn, ctl, False)
    boost = Wboost is not None
    vtrip("va", W, bal)
    e(f"s_cmp_lt_u32 s{sIt}, {NIT - 1 - (1 if boost else 0)}")
    e("s_cbranch_scc1 L_va")
    if boost: vtrip("vb", Wboost, None)
    e(f"v_mov_b32 v{vT0}, 0")
    for u in range(2): e(f"v_mov_b32 v{vP+u}, v{vPn+u}")
    e("s_waitcnt lgkmcnt(0)")
    e("s_barrier")
    e(f"ds_read_b128 {vr(vML)}, v{vT0} offset:{L_ML}")
    e(f"ds_read_b128 {vr(vML+4)}, v{vT0} offset:{L_ML+16}")
    e(f"s_mov_b32 s{sT3}, 0xffffff00")
    e("s_waitcnt lgkmcnt(0)")
    e(f"v_max3_f32 v{vT0}, v{vML}, v{vML+2}, v{vML+4}")
    e(f"v_max_f32 v{vT0}, v{vT0}, v{vML+6}")
    for w in range(4): e(f"v_sub_f32 v{vML+2*w}, v{vML+2*w}, v{vT0}")
    for w in range(4): e(f"v_exp_f32 v{vML+2*w}, v{vML+2*w}")
    e("s_nop 0")
    e(f"v_mul_f32 v{vT0}, v{vML}, v{vML+1}")
    for w in range(1, 4): e(f"v_fmac_f32 v{vT0}, v{vML+2*w}, v{vML+2*w+1}")
    e(f"v_rcp_f32 v{vT0}, v{vT0}")
    e("s_nop 0")
    for w in range(4): e(f"v_mul_f32 v{vBeta+w}, v{vML+2*w}, v{vT0}")
    vslots("vl", None, None, True)
    stamp(5)
    e("s_nop 7")
    e("s_mov_b32 exec_hi, 0")
    e(f"ds_write_b128 v{vLdsA}, {vr(vAcc)} offset:{L_O}")
    e("s_mov_b32 exec_hi, -1")
    e("s_waitcnt lgkmcnt(0)")
    e("s_barrier")
    tstamp(1)
    for w in range(4): e(f"ds_read_b32 v{vX+w}, v{vTlO} offset:{L_O + 512*w}")
    e("s_waitcnt lgkmcnt(2)" if stamps != 2 else "s_waitcnt lgkmcnt(0)")
    e(f"v_mul_f32 v{vX}, v{vX}, v{vBeta}")
    e(f"v_fmac_f32 v{vX}, v{vX+1}, v{vBeta+1}")
    e("s_waitcnt lgkmcnt(0)")
    e(f"v_fmac_f32 v{vX}, v{vX+2}, v{vBeta+2}")
    e(f"v_fmac_f32 v{vX}, v{vX+3}, v{vBeta+3}")
    e(f"v_cvt_pk_bf16_f32 v{vP}, v{vX}, v{vX}")
    tstamp(2)
    e("s_nop 1")
    ssel(vP, 0)
    e("s_nop 1")
    for pr in range(4):
        for T in range(5):
            if T == 2 and pr < 3: ssel(vP, pr+1)
            e(f"v_smfmac_f32_16x16x64_bf16 {ar(aOut+4*T)}, {vr(vA+4*(pr%2))}, {ar(woreg(2*pr, T), 8)}, v{vIdx}")
    tstamp(3)
    e("s_mov_b32 exec_hi, 0")
    e("s_nop 3")
    for T in range(5):
        e(f"ds_write_b128 v{vTlW}, {ar(aOut+4*T)} offset:{L_OUT + 512*T}")
    e("s_mov_b32 exec_hi, -1")
    e("s_waitcnt lgkmcnt(0)")
    e("s_barrier")
    tstamp(4)
    e(f"s_cmp_eq_u32 s{sW}, 3")
    e("s_cbranch_scc1 L_consume")
    for w in range(4):
        e(f"ds_read_b128 {vr(vX+4*w)}, v{vTlR} offset:{L_OUT + 2560*w}")
    e("s_waitcnt lgkmcnt(2)" if stamps != 2 else "s_waitcnt lgkmcnt(0)")
    for j in range(4): e(f"v_add_f32 v{vX+j}, v{vX+j}, v{vX+4+j}")
    e("s_waitcnt lgkmcnt(0)")
    for j in range(4): e(f"v_add_f32 v{vX+8+j}, v{vX+8+j}, v{vX+12+j}")
    for j in range(4): e(f"v_add_f32 v{vX+j}, v{vX+j}, v{vX+8+j}")
    for j in range(4): e(f"v_and_or_b32 v{vX+j}, v{vX+j}, s{sT3}, v{vTag+j}")
    e(f"buffer_store_dwordx4 {vr(vX)}, v{vTlM}, {srd(sIn)}, s{sT2} offen {polSt}")
    if hold:
        e(f"s_cmp_lg_u32 s{sW}, {hold.get('w', 0)}")
        e("s_cbranch_scc1 L_nodone")
        if hold.get("ack"): e("s_waitcnt vmcnt(0)")
        e(f"v_mov_b32 v{vBdT}, 100")
        e("s_mov_b64 exec, 1")
        e(f"buffer_store_dword v{vBdT}, off, {srd(sBd)}, s{sSlot}")
        e("s_mov_b64 exec, -1")
        e("L_nodone:")
    stamp(6)
    e("s_branch L_fin")
    def bump():
        e(f"s_cmp_lg_u32 s{sH}, 0")
        e("s_cbranch_scc1 L_nobump")
        e("s_mov_b64 exec, 1")
        e(f"buffer_store_dword v{vFlag}, off, {srd(sN)}, 0 {polB}")
        e("L_nobump:")
    e("L_consume:")
    e(f"s_cmp_eq_u32 s{sCons}, 0")
    e("s_cbranch_scc1 L_fin")
    e(f"s_lshl_b32 s{sT}, s{sH}, 12")
    e(f"s_mov_b32 s{sSpin}, 0")
    e(f"v_mov_b32 v{vT2}, 0x0c0c0400")
    e(f"v_mov_b32 v{vT3}, 0x04000c0c")
    e(f"s_mul_i32 s{sIt}, s{sB}, 2560")
    e(f"s_mul_i32 s{sT2}, s{sBr}, 1280")
    e(f"s_add_u32 s{sIt}, s{sIt}, s{sT2}")
    e(f"s_lshl_b32 s{sT2}, s{sH}, 6")
    e(f"s_add_u32 s{sIt}, s{sIt}, s{sT2}")
    e(f"v_lshlrev_b32 v{vS}, 3, v{vLane}")
    if hold:
        e(f"s_mov_b32 s{sT4}, 0")
        e("L_hold:")
        e(f"buffer_load_dword v{vBd}, v{vBdA}, {srd(sBd)}, 0 offen sc1")
        e(f"s_add_u32 s{sT4}, s{sT4}, 1")
        e("s_waitcnt vmcnt(0)")
        e(f"v_cmp_eq_u32 vcc, 100, v{vBd}")
        e(f"s_cmp_ge_u32 s{sT4}, {hold.get('max', 12)}")
        e("s_cbranch_scc1 L_held")
        e(f"s_bcnt1_i32_b64 s{sT5}, vcc")
        e(f"s_cmp_lt_u32 s{sT5}, {hold.get('n', 32)}")
        e("s_cbranch_scc1 L_hold")
        e("L_held:")
    if diagdelay:
        assert stamps
        e("L_dd:")
        e("s_memrealtime s[74:75]")
        e("s_waitcnt lgkmcnt(0)")
        e(f"s_sub_u32 s74, s74, s{sSt}")
        e(f"s_cmp_lt_u32 s74, {diagdelay}")
        e("s_cbranch_scc1 L_dd")
    if npoll == 1:
        e("L_poll:")
        for i in range(4):
            e(f"buffer_load_dwordx4 {vr(vX+4*i)}, v{vOffV}, {srd(sIn)}, s{sT} offen offset:{1024*i} {polLd}")
        e(f"s_add_u32 s{sSpin}, s{sSpin}, 1")
        for i in range(4):
            e(f"s_waitcnt vmcnt({3-i})")
            e(f"v_perm_b32 v{vT0}, v{vX+4*i+1}, v{vX+4*i}, v{vT2}")
            e(f"v_perm_b32 v{vT1}, v{vX+4*i+3}, v{vX+4*i+2}, v{vT3}")
            for j in range(4): e(f"v_and_b32 v{vX+4*i+j}, s{sT3}, v{vX+4*i+j}")
            e(f"v_or_b32 v{vT0}, v{vT0}, v{vT1}")
            e(f"v_xor_b32 v{vX+16+i}, v{vT0}, v{vFlag}")
            if i == 1:
                for j in range(4): e(f"v_add_f32 v{vX+j}, v{vX+j}, v{vX+4+j}")
        e(f"v_or3_b32 v{vT0}, v{vX+16}, v{vX+17}, v{vX+18}")
        e(f"v_or_b32 v{vT0}, v{vT0}, v{vX+19}")
        e(f"v_cmp_ne_u32 vcc, 0, v{vT0}")
        e(f"s_cmp_ge_u32 s{sSpin}, 0x200000")
        e("s_cbranch_scc1 L_polled")
        e("s_cbranch_vccnz L_poll")
        e("L_polled:")
        for j in range(4): e(f"v_add_f32 v{vX+8+j}, v{vX+8+j}, v{vX+12+j}")
        for j in range(4): e(f"v_add_f32 v{vX+j}, v{vX+j}, v{vX+8+j}")
    else:
        def pr(k): return vRing + 20 * k
        def issue(k):
            for i in range(4):
                e(f"buffer_load_dwordx4 {vr(pr(k)+4*i)}, v{vOffV}, {srd(sIn)}, s{sT} offen offset:{1024*i} {polLd}")
        for k in range(npoll): issue(k)
        e("L_poll:")
        e(f"s_add_u32 s{sSpin}, s{sSpin}, 1")
        for k in range(npoll):
            r = pr(k)
            for i in range(4):
                e(f"s_waitcnt vmcnt({4*(npoll-1) + 3 - i})")
                e(f"v_perm_b32 v{vT0}, v{r+4*i+1}, v{r+4*i}, v{vT2}")
                e(f"v_perm_b32 v{vT1}, v{r+4*i+3}, v{r+4*i+2}, v{vT3}")
                for j in range(4): e(f"v_and_b32 v{vX+4*i+j}, s{sT3}, v{r+4*i+j}")
                e(f"v_or_b32 v{vT0}, v{vT0}, v{vT1}")
                e(f"v_xor_b32 v{vX+16+i}, v{vT0}, v{vFlag}")
                if i == 1:
                    for j in range(4): e(f"v_add_f32 v{vX+j}, v{vX+j}, v{vX+4+j}")
            e(f"v_or3_b32 v{vT0}, v{vX+16}, v{vX+17}, v{vX+18}")
            e(f"v_or_b32 v{vT0}, v{vT0}, v{vX+19}")
            e(f"v_cmp_ne_u32 vcc, 0, v{vT0}")
            e("s_cbranch_vccz L_polled")
            issue(k)
        e(f"s_cmp_lt_u32 s{sSpin}, 0x100000")
        e("s_cbranch_scc1 L_poll")
        e("L_polled:")
        for j in range(4): e(f"v_add_f32 v{vX+8+j}, v{vX+8+j}, v{vX+12+j}")
        for j in range(4): e(f"v_add_f32 v{vX+j}, v{vX+j}, v{vX+8+j}")
    if early:
        bump()
        e("s_mov_b64 exec, -1")
    e("s_nop 1")
    for j in range(4): e(f"v_add_f32_dpp v{vX+j}, v{vX+j}, v{vX+j} row_ror:8 row_mask:0xf bank_mask:0xf")
    for j in range(4): e(f"v_mov_b32 v{vX+4+j}, v{vX+j}")
    e("s_nop 1")
    for j in range(4): e(f"v_permlane16_swap_b32 v{vX+j}, v{vX+4+j}")
    for j in range(4): e(f"v_add_f32 v{vX+j}, v{vX+j}, v{vX+4+j}")
    for j in range(4): e(f"v_mov_b32 v{vX+4+j}, v{vX+j}")
    e("s_nop 1")
    for j in range(4): e(f"v_permlane32_swap_b32 v{vX+j}, v{vX+4+j}")
    for j in range(4): e(f"v_add_f32 v{vX+j}, v{vX+j}, v{vX+4+j}")
    e(f"v_cvt_pk_bf16_f32 v{vX}, v{vX}, v{vX+1}")
    e(f"v_cvt_pk_bf16_f32 v{vX+1}, v{vX+2}, v{vX+3}")
    e("s_mov_b64 exec, 0xff")
    e(f"buffer_store_dwordx2 v[{vX}:{vX+1}], v{vS}, {srd(sOut)}, s{sIt} offen {polOut}")
    if not early: bump()
    e("s_mov_b64 exec, -1")
    stamp(6)
    e("L_fin:")
    if stamps:
        e("s_waitcnt vmcnt(0) lgkmcnt(0)")
        e(f"s_memrealtime s[{sSt+14}:{sSt+15}]")
        e(f"s_getreg_b32 s{sT3}, hwreg(HW_REG_XCC_ID)")
        e(f"s_add_u32 s{sIn}, s28, 0x100000")
        e(f"s_addc_u32 s{sIn+1}, s29, 0")
        e(f"s_mov_b32 s{sIn+2}, 0x20000")
        e(f"s_lshl_b32 s{sT}, s2, 2")
        e(f"s_add_u32 s{sT}, s{sT}, s{sW}")
        e(f"s_lshl_b32 s{sT}, s{sT}, 7")
        e("s_waitcnt lgkmcnt(0)")
        e(f"v_mov_b32 v{vT0}, 0")
        e("s_mov_b64 exec, 1")
        for i in range(8):
            e(f"v_mov_b32 v{vX+2*i}, s{sSt+2*i}")
            e(f"v_mov_b32 v{vX+2*i+1}, s{sSt+2*i+1}")
        e(f"s_getreg_b32 s{sT2}, hwreg(HW_REG_HW_ID)")
        e(f"v_mov_b32 v{vX+16}, s{sT3}")
        e(f"v_mov_b32 v{vX+17}, s{sT2}")
        for i in range(4):
            e(f"buffer_store_dwordx4 {vr(vX+4*i)}, v{vT0}, {srd(sIn)}, s{sT} offen offset:{16*i}")
        e(f"buffer_store_dwordx2 v[{vX+16}:{vX+17}], v{vT0}, {srd(sIn)}, s{sT} offen offset:64")
    e("L_end:")
    e("s_endpgm")
    e('.section .rodata,"a"')
    e(".p2align 6")
    e(f".amdhsa_kernel {KNAME}")
    e(f"  .amdhsa_next_free_vgpr {ACC_OFF + NA}")
    e("  .amdhsa_next_free_sgpr 102")
    e(f"  .amdhsa_accum_offset {ACC_OFF}")
    e("  .amdhsa_group_segment_fixed_size 0")
    e("  .amdhsa_kernarg_size 104")
    e("  .amdhsa_user_sgpr_count 2")
    e("  .amdhsa_user_sgpr_kernarg_segment_ptr 1")
    e("  .amdhsa_system_sgpr_workgroup_id_x 1")
    e("  .amdhsa_float_denorm_mode_32 3")
    e(".end_amdhsa_kernel")
    return "\n".join(o) + "\n"

if __name__ == "__main__":
    cfg = eval("dict(" + (sys.argv[2] if len(sys.argv) > 2 else "") + ")")
    open(sys.argv[1], "w").write(gen(**cfg))
```

```python
import sys, math, struct
KNAME = "concat_heads__gqa_block_cached__gqa_block_cached__decode_kernel"

HEADER = """; Kernarg layout for this problem (104 bytes, ptrs only, base s[0:1]):
;   offset  96: d_ws      workspace: per-head partial outputs handed to the reducing workgroups
;
; One workgroup (4 waves) per (branch, batch, head).  The workgroup walks its K slab, then its V slab,
; The 32 heads of a (branch, batch) are summed through d_ws; every handed-over word carries this
; workgroups of the same die (progress board in d_debug), and a reducing wave first looks at its
"""

def f2u(x):
    return struct.unpack("<I", struct.pack("<f", x))[0]

def brev5(s):
    return int(f"{s:05b}"[::-1], 2)

class VM:
    def __init__(self, e): self.e = e; self.ops = []; self.seen = set()
    def issue(self, tag):
        self.ops.append(tag); self.seen.add(tag); assert len(self.ops) <= 63, len(self.ops)
    def wait(self, tag):
        assert tag in self.seen
        if tag not in self.ops: return
        i = max(k for k, t in enumerate(self.ops) if t == tag)
        self.e(f"s_waitcnt vmcnt({len(self.ops) - 1 - i})")
        self.ops = self.ops[i+1:]
    def room(self): return 63 - len(self.ops)

BAL = dict(c0=37, g=1, sh=1, bias=21, d=3, cmin=24, cmax=48, up=16, dn=8, twice=0, gv=None, every=1, rot=0, pubs=4, ph=0, polL="sc1", polS="")

def gen(pol="nt", polW="nt", polWo="nt", F=2, W=5.0625, Wboost=16, ilv=(2, 1), kfirst=17, stamps=0,
        polSt="sc0 sc1", polLd="sc0 sc1", polOut="", bal=BAL, fast=0, hmap=0, npoll=1, diagdelay=0, hold=dict(n=28, ack=1, max=12), polN="sc1", polB="", early=0):
    o = []
    def e(s): o.append(s)
    D, NIT = 32, 8
    bstart = 0
    if isinstance(Wboost, tuple): bstart, Wboost = Wboost
    assert Wboost is None or Wboost <= 30
    if bal is not None: bal = {**BAL, **bal}
    L_Q = 0
    L_O = 2048
    L_ML = 4096
    L_CTL = 4160
    L_OUT = 4224
    L_S = 4224 + 10240
    LDS = L_S + 16384 + 512
    sO = 14
    sC, sC0 = 22, 23
    sW, sH, sB, sBr, sG, sPos = 30, 31, 32, 33, 34, 35
    sK, sWq, sWo, sX, sIn, sN, sOut = 36, 40, 44, 48, 52, 56, 60
    sBd = sX
    sV = 64
    sIt, sOff, sT, sT2, sT3, sCons, sSpin, sOff0 = 66, 67, 68, 69, 70, 71, 72, 73
    sM = 74
    sSt = 82
    sT4, sT5, sSlot = 98, 99, 100
    def srd(b): return f"s[{b}:{b+3}]"
    vLane, vOffV, vOffW, vC, vMc, vT0, vT1, vT2, vT3 = 1, 2, 3, 4, 5, 6, 7, 8, 9
    vM0, vM1, vIdx, vLdsR = 10, 11, 12, 13
    vSelE, vSelO = 14, 18
    vS, vMax, vL, vFlag, vLdsS, vLdsA = 22, 23, 24, 25, 26, 27
    vBd, vBdA, vBdT, vCtl = 28, 29, 30, 31
    vCtlA = vSelE
    vA = 32
    vAcc = 40
    vQ = 44
    vD = 60
    vP, vPn, vSn = 44, 46, 48
    vTag = 52
    vBeta = 56
    vX = 80
    vML = 112
    vOffC = 120
    vRing = 124
    vTlO, vTlW, vTlR, vTlM = 252, 253, 254, 255
    ACC_OFF = 256
    aOut = 160
    NA = 180
    def vr(b, n=4): return f"v[{b}:{b+n-1}]"
    def ar(b, n=4): return f"a[{b}:{b+n-1}]"
    def stamp(i):
        if stamps == 1 or (stamps == 2 and i not in (1, 2, 3, 4)): e(f"s_memrealtime s[{sSt+2*i}:{sSt+2*i+1}]")
    def tstamp(i):
        if stamps == 2: e(f"s_memrealtime s[{sSt+2*i}:{sSt+2*i+1}]")
    wbase, step = F * 1024, D * 4096
    def off(s): return (s // F) * F * 4096 + (s % F) * 1024
    his = sorted(set(off(s) // 4096 * 4096 for s in range(D)))
    hs = his[1] - his[0]
    ns = min(len(his), 8); nv = len(his) // ns
    def soffs(base=sO):
        e(f"s_mov_b32 s{base}, s{sOff}")
        for i in range(1, ns): e(f"s_add_u32 s{base+i}, s{sOff}, {i*nv*hs}")
    def ringload(s, base=sO):
        k = his.index(off(s) // 4096 * 4096)
        e(f"buffer_load_dwordx4 {vr(vRing+4*s)}, v{vOffC+k%nv}, {srd(sK)}, s{base+k//nv} offen offset:{off(s)%4096} {pol}")
    def woreg(rr, T): return ((rr >> 1) * 5 + T) * 8 + (rr & 1) * 4
    def xsel(r, dst):
        sel = vSelE if r % 2 == 0 else vSelO
        for i in range(4):
            e(f"v_perm_b32 v{dst+i}, v{vX+r//2}, v{vX+r//2}, v{sel+i}")
    def ssel(src, j):
        dst = vA + 4 * (j % 2)
        for i in range(4):
            e(f"v_and_b32_dpp v{dst+i}, v{src}, v{(vM0, vM1)[i&1]} row_newbcast:{2*j+(i>>1)} row_mask:0xf bank_mask:0xf")
    def wave_reduce(op, v, t):
        for n in (8, 4, 2, 1):
            e(f"{op}_dpp v{v}, v{v}, v{v} row_ror:{n} row_mask:0xf bank_mask:0xf")
            e("s_nop 1" if n != 1 else "s_nop 0")
        e(f"v_mov_b32 v{t}, v{v}")
        e("s_nop 1")
        e(f"v_permlane16_swap_b32 v{v}, v{t}")
        e("s_nop 0")
        e(f"{op} v{v}, v{v}, v{t}")
        e(f"v_mov_b32 v{t}, v{v}")
        e("s_nop 1")
        e(f"v_permlane32_swap_b32 v{v}, v{t}")
        e("s_nop 0")
        e(f"{op} v{v}, v{v}, v{t}")

    e(HEADER.rstrip("\n"))
    e(f"; @launch grid=(256,1,1) block=(256,1,1) lds={LDS}")
    e('.amdgcn_target "amdgcn-amd-amdhsa--gfx950"')
    e(".text")
    e(f".globl {KNAME}")
    e(".p2align 8")
    e(f".type {KNAME},@function")
    e(f"{KNAME}:")
    stamp(0)
    e("s_cmp_ge_u32 s2, 256")
    e("s_cbranch_scc1 L_end")
    e("s_load_dwordx16 s[4:19], s[0:1], 0")
    e("s_load_dwordx8 s[20:27], s[0:1], 64")
    e("s_load_dwordx2 s[28:29], s[0:1], 96")
    e(f"v_lshrrev_b32 v{vT0}, 6, v0")
    e(f"v_and_b32 v{vLane}, 63, v0")
    e(f"v_readfirstlane_b32 s{sW}, v{vT0}")
    e(f"s_and_b32 s{sH}, s2, 7")
    e(f"s_bfe_u32 s{sT}, s2, 0x20005")
    if hmap == 0: e(f"s_lshl_b32 s{sT}, s{sT}, 3")
    elif hmap == 2: e(f"s_lshl_b32 s{sH}, s{sH}, 2")
    elif hmap in (4, 5, 6):
        if hmap == 4:
            e(f"s_and_b32 s{sT3}, s{sH}, 1"); e(f"s_lshl_b32 s{sT3}, s{sT3}, 1"); e(f"s_xor_b32 s{sH}, s{sH}, s{sT3}")
        elif hmap == 5:
            e(f"s_and_b32 s{sT3}, s{sH}, 4"); e(f"s_lshr_b32 s{sT3}, s{sT3}, 1"); e(f"s_xor_b32 s{sH}, s{sH}, s{sT3}")
        else:
            e(f"s_lshr_b32 s{sT3}, s2, 7"); e(f"s_lshl_b32 s{sT3}, s{sT3}, 1"); e(f"s_xor_b32 s{sH}, s{sH}, s{sT3}")
        e(f"s_lshl_b32 s{sT}, s{sT}, 3")
    else:
        e(f"s_add_u32 s{sH}, s{sH}, s{sT}")
        e(f"s_and_b32 s{sH}, s{sH}, 7")
        e(f"s_lshl_b32 s{sT}, s{sT}, 3")
    e(f"s_add_u32 s{sH}, s{sH}, s{sT}")
    e(f"s_lshr_b32 s{sBr}, s2, 7")
    e(f"s_bfe_u32 s{sB}, s2, 0x20003")
    e(f"s_lshl_b32 s{sG}, s{sBr}, 2")
    e(f"s_add_u32 s{sG}, s{sG}, s{sB}")
    e(f"v_lshrrev_b32 v{vT0}, 4, v{vLane}")
    e(f"v_and_b32 v{vT1}, 15, v{vLane}")
    e(f"v_mul_u32_u24 v{vT2}, 80, v{vT0}")
    e(f"v_lshlrev_b32 v{vT3}, 4, v{vT1}")
    e(f"v_mul_u32_u24 v{vOffW}, {40*8192}, v{vT0}")
    e(f"v_add_u32 v{vOffW}, v{vOffW}, v{vT3}")
    e(f"v_lshlrev_b32 v{vOffV}, 4, v{vLane}")
    e(f"v_lshrrev_b32 v{vOffC}, 2, v{vT1}")
    e(f"v_lshlrev_b32 v{vOffC}, 8, v{vOffC}")
    e(f"v_lshl_add_u32 v{vOffC}, v{vT0}, 6, v{vOffC}")
    e(f"v_and_b32 v{vS}, 3, v{vLane}")
    e(f"v_lshl_add_u32 v{vOffC}, v{vS}, 4, v{vOffC}")
    for j in range(1, nv): e(f"v_add_u32 v{vOffC+j}, {j*hs}, v{vOffC}")
    e(f"s_lshl_b32 s{sT}, s{sB}, 5")
    e(f"s_add_u32 s{sT}, s{sT}, s{sH}")
    e(f"s_lshl_b32 s{sT}, s{sT}, 20")
    e(f"s_mul_i32 s{sT2}, s{sB}, 1280")
    e(f"s_lshl_b32 s{sT3}, s{sH}, 8")
    e(f"s_mul_i32 s{sOff0}, s{sW}, {wbase}")
    e(f"s_mov_b32 s{sOff}, s{sOff0}")
    e(f"s_mov_b32 s{sX+2}, 1280")
    e(f"s_mov_b32 s{sX+3}, 0x20000")
    e(f"s_sub_u32 s{sWq+2}, {640*8192}, s{sT3}")
    e(f"s_mov_b32 s{sWq+3}, 0x20000")
    e(f"s_mov_b32 s{sK+2}, 0x100000")
    e(f"s_mov_b32 s{sK+3}, 0x20000")
    e(f"s_mul_i32 s{sSpin}, s{sW}, 320")
    e(f"s_mul_i32 s3, s{sW}, {160*8192}")
    if not fast:
        e(f"s_cmp_eq_u32 s{sBr}, 0")
        e("s_waitcnt lgkmcnt(0)")
        e("s_cselect_b64 s[4:5], s[4:5], s[14:15]")
        e("s_cselect_b64 s[10:11], s[10:11], s[20:21]")
        e("s_cselect_b64 s[6:7], s[6:7], s[16:17]")
        e("s_cselect_b64 s[8:9], s[8:9], s[18:19]")
        e("s_cselect_b64 s[12:13], s[12:13], s[22:23]")
        e(f"s_add_u32 s{sX}, s4, s{sT2}")
        e(f"s_addc_u32 s{sX+1}, s5, 0")
        e(f"s_add_u32 s{sWq}, s10, s{sT3}")
        e(f"s_addc_u32 s{sWq+1}, s11, 0")
        vm = VM(e)
        for i in range(5):
            e(f"buffer_load_dwordx4 {vr(vX+4*i)}, v{vT2}, {srd(sX)}, s{sSpin} offen offset:{16*i}"); vm.issue("x")
        e(f"s_add_u32 s{sK}, s6, s{sT}")
        e(f"s_addc_u32 s{sK+1}, s7, 0")
        e(f"s_add_u32 s{sV}, s8, s{sT}")
        e(f"s_addc_u32 s{sV+1}, s9, 0")
        soffs()
        nk = [0]
        def kpre():
            ringload(nk[0]); vm.issue(f"k{nk[0]}"); nk[0] += 1
        a, b = ilv
        r = 0
        while r < 40:
            for _ in range(a):
                if r < 40:
                    e(f"buffer_load_dwordx4 {ar(4*r)}, v{vOffW}, {srd(sWq)}, s3 offen {polW}"); vm.issue(f"wq{r}")
                    if r < 39: e(f"s_add_u32 s3, s3, 8192")
                    r += 1
            for _ in range(b):
                if nk[0] < kfirst: kpre()
        while nk[0] < kfirst: kpre()
    else:
        soffs(sM)
        e(f"s_cmp_eq_u32 s{sBr}, 0")
        e("s_waitcnt lgkmcnt(0)")
        e("s_cselect_b64 s[6:7], s[6:7], s[16:17]")
        e("s_cselect_b64 s[10:11], s[10:11], s[20:21]")
        e("s_cselect_b64 s[4:5], s[4:5], s[14:15]")
        e("s_cselect_b64 s[8:9], s[8:9], s[18:19]")
        e("s_cselect_b64 s[12:13], s[12:13], s[22:23]")
        e(f"s_add_u32 s{sK}, s6, s{sT}")
        e(f"s_addc_u32 s{sK+1}, s7, 0")
        vm = VM(e)
        nk = [0]; kb = [sM]
        def kpre():
            ringload(nk[0], kb[0]); vm.issue(f"k{nk[0]}"); nk[0] += 1
        kpre()
        e(f"s_add_u32 s{sWq}, s10, s{sT3}")
        e(f"s_addc_u32 s{sWq+1}, s11, 0")
        a, b = ilv
        r = 0
        while r < 40:
            for _ in range(a):
                if r < 40:
                    e(f"buffer_load_dwordx4 {ar(4*r)}, v{vOffW}, {srd(sWq)}, s3 offen {polW}"); vm.issue(f"wq{r}")
                    if r < 39: e(f"s_add_u32 s3, s3, 8192")
                    r += 1
            if r == a:
                e(f"s_add_u32 s{sX}, s4, s{sT2}")
                e(f"s_addc_u32 s{sX+1}, s5, 0")
                for i in range(5):
                    e(f"buffer_load_dwordx4 {vr(vX+4*i)}, v{vT2}, {srd(sX)}, s{sSpin} offen offset:{16*i}"); vm.issue("x")
            for _ in range(b):
                if nk[0] < kfirst: kpre()
        while nk[0] < kfirst: kpre()
        e(f"s_add_u32 s{sV}, s8, s{sT}")
        e(f"s_addc_u32 s{sV+1}, s9, 0")
        soffs(); kb[0] = sO
    e(f"s_lshl_b32 s{sT}, s{sG}, 7")
    e(f"s_add_u32 s{sT}, s{sT}, {8*20*4096}")
    e(f"s_add_u32 s{sN}, s28, s{sT}")
    e(f"s_addc_u32 s{sN+1}, s29, 0")
    e(f"s_mov_b32 s{sN+2}, 4")
    e(f"s_mov_b32 s{sN+3}, 0x20000")
    e(f"buffer_load_dword v{vFlag}, off, {srd(sN)}, 0 {polN}"); vm.issue("n")
    stamp(1)
    e(f"s_mul_i32 s{sT}, s{sH}, 163840")
    e(f"s_add_u32 s{sWo}, s12, s{sT}")
    e(f"s_addc_u32 s{sWo+1}, s13, 0")
    e(f"s_mov_b32 s{sWo+2}, 163840")
    e(f"s_mov_b32 s{sWo+3}, 0x20000")
    e(f"s_mul_i32 s{sT}, s{sG}, {20*4096}")
    e(f"s_add_u32 s{sIn}, s28, s{sT}")
    e(f"s_addc_u32 s{sIn+1}, s29, 0")
    e(f"s_mov_b32 s{sIn+2}, {20*4096}")
    e(f"s_mov_b32 s{sIn+3}, 0x20000")
    e(f"s_mov_b32 s{sOut}, s24")
    e(f"s_mov_b32 s{sOut+1}, s25")
    e(f"s_mov_b32 s{sOut+2}, 10240")
    e(f"s_mov_b32 s{sOut+3}, 0x20000")
    e(f"s_cmp_lt_u32 s{sH}, 20")
    e(f"s_cselect_b32 s{sCons}, 1, 0")
    e(f"s_cmp_eq_u32 s{sW}, 3")
    e(f"s_cselect_b32 s{sCons}, s{sCons}, 0")
    e(f"v_mul_u32_u24 v{vOffW}, {8*1280}, v{vT0}")
    e(f"v_add_u32 v{vOffW}, v{vOffW}, v{vT3}")
    e(f"v_and_b32 v{vS}, 1, v{vLane}")
    e(f"v_cmp_eq_u32 vcc, 1, v{vS}")
    e(f"v_mov_b32 v{vT1}, 0x0c0c0100")
    e(f"v_mov_b32 v{vT2}, 0x01000c0c")
    e(f"v_cndmask_b32 v{vMax}, v{vT1}, v{vT2}, vcc")
    e(f"v_mov_b32 v{vT1}, 0x0c0c0302")
    e(f"v_mov_b32 v{vT2}, 0x03020c0c")
    e(f"v_cndmask_b32 v{vL}, v{vT1}, v{vT2}, vcc")
    e(f"v_mov_b32 v{vT1}, 0x0c0c0c0c")
    for i in range(4):
        e(f"s_mov_b32 s{sM+2*i}, {hex(0x00030003 << (2*i))}")
        e(f"s_mov_b32 s{sM+2*i+1}, {hex(0x00030003 << (2*i))}")
    for i in range(4):
        m = f"s[{sM+2*i}:{sM+2*i+1}]"
        e(f"v_cndmask_b32 v{vSelE+i}, v{vT1}, v{vMax}, {m}")
        e(f"v_cndmask_b32 v{vSelO+i}, v{vT1}, v{vL}, {m}")
    e(f"v_mov_b32 v{vT1}, 0xffff")
    e(f"s_mov_b32 s{sM}, 0x000f000f")
    e(f"s_mov_b32 s{sM+1}, 0x000f000f")
    e(f"s_mov_b32 s{sM+2}, 0x00f000f0")
    e(f"s_mov_b32 s{sM+3}, 0x00f000f0")
    e(f"v_cndmask_b32 v{vM0}, 0, v{vT1}, s[{sM}:{sM+1}]")
    e(f"v_cndmask_b32 v{vM1}, 0, v{vT1}, s[{sM+2}:{sM+3}]")
    e(f"v_and_b32 v{vIdx}, 3, v{vLane}")
    e(f"v_xor_b32 v{vT1}, 1, v{vIdx}")
    e(f"v_lshl_or_b32 v{vIdx}, v{vT1}, 2, v{vIdx}")
    e(f"v_mul_u32_u24 v{vIdx}, 0x1111, v{vIdx}")
    for t in range(4):
        e(f"s_mov_b32 s{sM+2*t}, {hex(0x11111111 << t)}")
        e(f"s_mov_b32 s{sM+2*t+1}, {hex(0x11111111 << t)}")
    for i in range(4): e(f"v_mov_b32 v{vAcc+i}, 0")
    for i in range(20): e(f"v_accvgpr_write_b32 a{aOut+i}, 0")
    e(f"v_mov_b32 v{vMax}, 0xff800000")
    e(f"v_mov_b32 v{vL}, 0")
    e(f"v_mov_b32 v{vC}, {hex(f2u(math.log2(math.e)))}")
    e(f"s_lshl_b32 s{sT}, s{sW}, 12")
    e(f"s_add_u32 s{sT}, s{sT}, {L_S}")
    e(f"v_lshl_add_u32 v{vLdsS}, v{vLane}, 2, s{sT}")
    e(f"v_and_b32 v{vT1}, 1, v{vT0}")
    e(f"v_lshlrev_b32 v{vT1}, 1, v{vT1}")
    e(f"v_and_b32 v{vT2}, 1, v{vLane}")
    e(f"v_add_u32 v{vT1}, v{vT1}, v{vT2}")
    e(f"v_lshlrev_b32 v{vLdsR}, 4, v{vT1}")
    e(f"v_and_b32 v{vT1}, 14, v{vLane}")
    e(f"v_add_u32 v{vLdsR}, v{vLdsR}, v{vT1}")
    e(f"v_lshrrev_b32 v{vT1}, 1, v{vT0}")
    e(f"v_add_u32 v{vLdsR}, v{vLdsR}, v{vT1}")
    e(f"v_lshl_add_u32 v{vLdsR}, v{vLdsR}, 2, s{sT}")
    e(f"s_lshl_b32 s{sT}, s{sW}, 9")
    e(f"v_lshlrev_b32 v{vLdsA}, 1, v{vT3}")
    e(f"v_lshl_add_u32 v{vLdsA}, v{vT0}, 4, v{vLdsA}")
    e(f"v_add_u32 v{vLdsA}, s{sT}, v{vLdsA}")
    e(f"v_and_b32 v{vT2}, 1, v{vT0}")
    e(f"v_lshl_add_u32 v{vTlO}, v{vT2}, 4, v{vT1}")
    e(f"v_and_b32 v{vT2}, 1, v{vLane}")
    e(f"v_lshl_add_u32 v{vTlO}, v{vT2}, 3, v{vTlO}")
    e(f"v_and_b32 v{vT2}, 6, v{vLane}")
    e(f"v_add_u32 v{vTlO}, v{vTlO}, v{vT2}")
    e(f"s_lshl_b32 s{sT}, s{sW}, 7")
    e(f"v_lshl_add_u32 v{vTlO}, v{vTlO}, 2, s{sT}")
    e(f"s_lshl_b32 s{sT}, s{sW}, 11")
    e(f"v_add_u32 v{vTlW}, s{sT}, v{vLdsA}")
    e(f"v_lshlrev_b32 v{vTlR}, 4, v0")
    e(f"v_lshrrev_b32 v{vTlM}, 3, v0")
    e(f"v_lshlrev_b32 v{vTlM}, 12, v{vTlM}")
    e(f"v_and_b32 v{vT2}, 7, v0")
    e(f"v_lshl_add_u32 v{vTlM}, v{vT2}, 4, v{vTlM}")
    if bal:
        e(f"s_getreg_b32 s{sT}, hwreg(HW_REG_HW_ID)")
        e(f"s_bfe_u32 s{sSlot}, s{sT}, 0x40008")
        e(f"s_bfe_u32 s{sT}, s{sT}, 0x2000d")
        e(f"s_lshl_b32 s{sT}, s{sT}, 4")
        e(f"s_add_u32 s{sSlot}, s{sSlot}, s{sT}")
        e(f"s_lshl_b32 s{sSlot}, s{sSlot}, 2")
        e(f"v_lshlrev_b32 v{vBdA}, 2, v{vLane}")
        e(f"s_mov_b32 s{sPos}, 0")
        e(f"s_mov_b32 s{sC0}, {bal['c0']}")
        if bal["d"]:
            e(f"s_getreg_b32 s{sT}, hwreg(HW_REG_XCC_ID)")
            e(f"s_and_b32 s{sT}, s{sT}, 1")
            if hmap in (0, 4, 5, 6):
                e(f"s_and_b32 s{sT3}, s{sH}, 3")
                e(f"s_cmp_eq_u32 s{sT3}, 1")
                e(f"s_cselect_b32 s{sT}, 0, s{sT}")
            e(f"s_mul_i32 s{sT}, s{sT}, {bal['d']}")
            e(f"s_sub_u32 s{sC0}, s{sC0}, s{sT}")
        e(f"s_mov_b32 s{sC}, s{sC0}")
    e(f"s_mul_i32 s{sT2}, s{sW}, {32*1280}")
    vm.wait("x")
    if bal:
        e(f"s_mov_b32 s{sBd}, s26")
        e(f"s_mov_b32 s{sBd+1}, s27")
        e(f"s_mov_b32 s{sBd+2}, 256")
        e(f"s_mov_b32 s{sBd+3}, 0x20000")
    xsel(0, vA)
    for r in range(40):
        if r < 39: xsel(r+1, vA + 4*((r+1) % 2))
        else: e("s_nop 1")
        vm.wait(f"wq{r}")
        c = "0" if r == 0 else vr(vD)
        e(f"v_mfma_f32_16x16x32_bf16 {vr(vD)}, {vr(vA+4*(r%2))}, {ar(4*r)}, {c}")
        if nk[0] < D and vm.room() > 0: kpre()
    assert nk[0] == D
    stamp(2)
    e(f"v_lshrrev_b32 v{vT1}, 2, v{vLane}")
    e(f"v_lshlrev_b32 v{vT1}, 5, v{vT1}")
    if bal and bal["rot"]:
        e(f"v_mov_b32 v{vCtl}, s{sC0}")
        e(f"v_mov_b32 v{vCtlA}, {L_CTL}")
        e(f"ds_write_b32 v{vCtlA}, v{vCtl}")
    e("s_nop 5")
    e("s_mov_b32 exec_hi, 0")
    e(f"ds_write_b128 v{vLdsA}, {vr(vD)} offset:{L_Q}")
    e("s_mov_b32 exec_hi, -1")
    e("s_waitcnt lgkmcnt(0)")
    e("s_barrier")
    for w in range(4):
        e(f"ds_read_b128 {vr(vX+8*w)}, v{vT1} offset:{L_Q + 512*w}")
        e(f"ds_read_b128 {vr(vX+8*w+4)}, v{vT1} offset:{L_Q + 512*w + 16}")
    e("s_waitcnt lgkmcnt(4)")
    for j in range(8): e(f"v_add_f32 v{vX+j}, v{vX+j}, v{vX+8+j}")
    e("s_waitcnt lgkmcnt(0)")
    for j in range(8): e(f"v_add_f32 v{vX+16+j}, v{vX+16+j}, v{vX+24+j}")
    for j in range(8): e(f"v_add_f32 v{vX+j}, v{vX+j}, v{vX+16+j}")
    for i in range(4): e(f"v_cvt_pk_bf16_f32 v{vX+8+i}, v{vX+2*i}, v{vX+2*i+1}")
    for t in range(4):
        for i in range(4):
            e(f"v_cndmask_b32 v{vQ+4*t+i}, 0, v{vX+8+i}, s[{sM+2*t}:{sM+2*t+1}]")
    e(f"s_mov_b32 s{sIt}, 0")
    stamp(3)

    def wcnt(Wn, s):
        base = math.floor(Wn + 1e-9); fr = Wn - base
        return base - 1 + int(math.floor((s + 1) * fr + 0.5 + 1e-9) - math.floor(s * fr + 0.5 + 1e-9))
    def slotwait(tag, s, Wn, ctl, extra5):
        x = lambda n: n + (5 if (extra5 and s <= n) else 0)
        if not ctl:
            e(f"s_waitcnt vmcnt({x(wcnt(Wn, s))})"); return
        r = brev5(s)
        if r < bal["up"]:
            e(f"s_waitcnt vmcnt({x(5)})")
            e(f"s_cmp_gt_u32 s{sC}, {32 + r}")
            e(f"s_cbranch_scc1 L_{tag}_w{s}")
            e(f"s_waitcnt vmcnt({x(4)})")
            e(f"L_{tag}_w{s}:")
        elif r >= 32 - bal["dn"]:
            e(f"s_waitcnt vmcnt({x(4)})")
            e(f"s_cmp_gt_u32 s{sC}, {r}")
            e(f"s_cbranch_scc1 L_{tag}_w{s}")
            e(f"s_waitcnt vmcnt({x(3)})")
            e(f"L_{tag}_w{s}:")
        else:
            e(f"s_waitcnt vmcnt({x(4)})")
    def bal_mine(tag, lab):
        if bal["rot"]:
            e(f"s_lshr_b32 s{sT}, s{sPos}, 2")
            if bal["every"] > 1:
                e(f"s_and_b32 s{sT3}, s{sT}, {bal['every'] - 1}")
                e(f"s_cmp_lg_u32 s{sT3}, {bal['ph']}")
                e(f"s_cbranch_scc1 {lab}")
                e(f"s_lshr_b32 s{sT}, s{sT}, {bal['every'].bit_length() - 1}")
            e(f"s_and_b32 s{sT}, s{sT}, 3")
            e(f"s_cmp_lg_u32 s{sT}, s{sW}")
            e(f"s_cbranch_scc1 {lab}")
        elif bal["every"] > 1:
            e(f"s_bfe_u32 s{sT}, s{sPos}, {hex(((bal['every'].bit_length() - 1) << 16) + 2)}")
            e(f"s_cmp_lg_u32 s{sT}, {bal['ph']}")
            e(f"s_cbranch_scc1 {lab}")
    def bal_pre(s, tag="k"):
        if s == 0:
            if bal["rot"]:
                if tag == "k": e("s_waitcnt lgkmcnt(0)")
                e(f"v_readfirstlane_b32 s{sC}, v{vCtl}")
            bal_mine(tag, f"L_{tag}_nord")
            e(f"buffer_load_dword v{vBd}, v{vBdA}, {srd(sBd)}, 0 offen {bal['polL']}")
            e(f"L_{tag}_nord:")
        if s == 16:
            g, sh = (bal["gv"] if (bal["gv"] and tag != "k") else (bal["g"], bal["sh"]))
            bal_mine(tag, f"L_{tag}_noup")
            for n in (8, 4, 2, 1):
                e(f"v_add_u32_dpp v{vBd}, v{vBd}, v{vBd} row_ror:{n} row_mask:0xf bank_mask:0xf")
                e("s_nop 1" if n != 1 else "s_nop 0")
            for l in range(4): e(f"v_readlane_b32 s{[sT, sT3, sT4, sT5][l]}, v{vBd}, {16*l}")
            e(f"s_add_u32 s{sT}, s{sT}, s{sT3}")
            e(f"s_add_u32 s{sT4}, s{sT4}, s{sT5}")
            e(f"s_add_u32 s{sT}, s{sT}, s{sT4}")
            e(f"s_lshl_b32 s{sT3}, s{sPos}, 5")
            e(f"s_sub_i32 s{sT}, s{sT}, s{sT3}")
            e(f"s_add_i32 s{sT}, s{sT}, {bal['bias']}")
            if g != 1: e(f"s_mul_i32 s{sT}, s{sT}, {g}")
            e(f"s_ashr_i32 s{sT}, s{sT}, {sh}")
            e(f"s_add_i32 s{sT}, s{sT}, s{sC0}")
            e(f"s_max_i32 s{sT}, s{sT}, {bal['cmin']}")
            e(f"s_min_i32 s{sC}, s{sT}, {bal['cmax']}")
            if bal["rot"]:
                e(f"v_mov_b32 v{vBdT}, s{sC}")
                e(f"ds_write_b32 v{vCtlA}, v{vBdT}")
            e(f"L_{tag}_noup:")
            e(f"s_add_u32 s{sPos}, s{sPos}, 4")
        if s == 28 and bal["rot"]:
            e(f"ds_read_b32 v{vCtl}, v{vCtlA}")
    def bal_post(tag, s):
        if s % 8 != 7: return
        k = s // 8
        if bal["pubs"] == 2 and k % 2 == 0: return
        e(f"s_cmp_lg_u32 s{sW}, {k}")
        e(f"s_cbranch_scc1 L_{tag}_np{k}")
        e(f"s_add_u32 s{sT}, s{sPos}, {(k + 1) - (4 if s >= 16 else 0)}")
        e(f"v_mov_b32 v{vBdT}, s{sT}")
        e("s_mov_b64 exec, 1")
        e(f"buffer_store_dword v{vBdT}, off, {srd(sBd)}, s{sSlot} {bal['polS']}")
        e("s_mov_b64 exec, -1")
        e(f"L_{tag}_np{k}:")

    e("L_k:")
    e(f"s_add_u32 s{sOff}, s{sOff}, {step}")
    def tree(lo, bit):
        if bit < 0:
            for T in range(5):
                e(f"buffer_load_dwordx4 {ar(woreg(lo, T))}, v{vOffW}, {srd(sWo)}, s{sT2} offen offset:{T*256} {polWo}")
            if lo != 7: e("s_branch L_k_wodone")
            return
        e(f"s_bitcmp1_b32 s{sIt}, {bit}")
        e(f"s_cbranch_scc1 L_k_wo{lo + (1 << bit)}_{bit}")
        tree(lo, bit - 1)
        e(f"L_k_wo{lo + (1 << bit)}_{bit}:")
        tree(lo + (1 << bit), bit - 1)
    tree(0, 2)
    e("L_k_wodone:")
    e(f"s_add_u32 s{sT2}, s{sT2}, 1280")
    e(f"s_cmp_lg_u32 s{sIt}, {NIT-1}")
    e("s_cbranch_scc1 L_k_go")
    e(f"s_mov_b32 s{sK}, s{sV}")
    e(f"s_mov_b32 s{sK+1}, s{sV+1}")
    e(f"s_mov_b32 s{sOff}, s{sOff0}")
    e(f"v_mov_b32 v{vOffC}, v{vOffV}")
    for j in range(1, nv): e(f"v_add_u32 v{vOffC+j}, {j*hs}, v{vOffV}")
    e("L_k_go:")
    soffs()
    e(f"s_add_u32 s{sIt}, s{sIt}, 1")
    for u in range(2):
        for s16 in range(16):
            s = u * 16 + s16
            b, t = s16 // 4, s16 % 4
            if bal: bal_pre(s)
            slotwait("k", s, W, bal, True)
            c = "0" if t == 0 else vr(vD+4*b)
            e(f"v_mfma_f32_16x16x32_bf16 {vr(vD+4*b)}, {vr(vRing+4*s)}, {vr(vQ+4*t)}, {c}")
            ringload(s)
            if bal: bal_post("k", s)
        for r in range(4):
            for k in range(4):
                cc = (r + k) % 4
                ror = (4 * (r - cc)) % 16
                ctl = "quad_perm:[0,1,2,3]" if ror == 0 else f"row_ror:{ror}"
                if k == 0:
                    e(f"v_mov_b32_dpp v{vS}, v{vD+4*r+cc} {ctl} row_mask:0xf bank_mask:{hex(1<<r)}")
                else:
                    e(f"v_add_f32_dpp v{vS}, v{vD+4*r+cc}, v{vS} {ctl} row_mask:0xf bank_mask:{hex(1<<r)}")
        e(f"v_cvt_pk_bf16_f32 v{vS}, v{vS}, v{vS}")
        e(f"v_lshlrev_b32 v{vS}, 16, v{vS}")
        e(f"v_mul_f32 v{vS}, {hex(f2u(128 ** -0.5))}, v{vS}")
        e(f"v_cvt_pk_bf16_f32 v{vS}, v{vS}, v{vS}")
        e(f"v_lshlrev_b32 v{vS}, 16, v{vS}")
        e(f"v_max_f32 v{vMax}, v{vMax}, v{vS}")
        e(f"ds_write_b32 v{vLdsS}, v{vS} offset:{256*u}")
    e(f"v_add_u32 v{vLdsS}, 512, v{vLdsS}")
    e(f"s_cmp_lt_u32 s{sIt}, {NIT}")
    e("s_cbranch_scc1 L_k")

    def probs():
        for u in range(2): e(f"v_fma_f32 v{vT0+u}, v{vSn+u}, v{vC}, -v{vMc}")
        e(f"v_add_u32 v{vLdsR}, 512, v{vLdsR}")
        for u in range(2): e(f"v_exp_f32 v{vT0+u}, v{vT0+u}")
        for u in range(2): e(f"ds_read_b32 v{vSn+u}, v{vLdsR} offset:{256*u}")
        for u in range(2): e(f"v_cvt_pk_bf16_f32 v{vPn+u}, v{vT0+u}, v{vT0+u}")
        for u in range(2): e(f"v_add_f32 v{vL}, v{vL}, v{vT0+u}")
    for u in range(2): e(f"ds_read_b32 v{vSn+u}, v{vLdsR} offset:{256*u}")
    wave_reduce("v_max_f32", vMax, vT0)
    e(f"v_mul_f32 v{vMc}, v{vMax}, v{vC}")
    e(f"v_add_u32 v{vFlag}, 0x01010101, v{vFlag}")
    for j in range(4): e(f"v_bfe_u32 v{vTag+j}, v{vFlag}, {8*j}, 8")
    e(f"s_lshl_b32 s{sT2}, s{sH}, 7")
    e("s_waitcnt lgkmcnt(0)")
    probs()
    e(f"s_mov_b32 s{sIt}, 0")
    stamp(4)

    def vslots(tag, Wn, ctl, last):
        ssel(vP, 0)
        for j in range(16):
            if j < 15: ssel(vP + (j+1) // 8, (j+1) % 8)
            else: e("s_nop 0")
            mm = f"v_smfmac_f32_16x16x64_bf16 {vr(vAcc)}, {vr(vA+4*(j%2))}, {vr(vRing+8*j, 8)}, v{vIdx}"
            if last:
                e(f"s_waitcnt vmcnt({30 - 2*j})"); e(mm)
                if j < 14: e("s_nop 1")
                continue
            for s in (2*j, 2*j+1):
                if tag == "vb" and s < bstart:
                    if bal: bal_pre(s, tag)
                    slotwait(tag, s, W, bal, False)
                else:
                    if ctl: bal_pre(s, tag)
                    slotwait(tag, s, Wn, ctl, False)
                if s == 2*j: e(mm)
                ringload(s)
                if ctl or (tag == "vb" and bal and s < bstart and s < 16): bal_post(tag, s)
    def vtrip(tag, Wn, ctl):
        e(f"L_{tag}:")
        e(f"s_add_u32 s{sOff}, s{sOff}, {step}")
        e("s_waitcnt lgkmcnt(0)")
        for u in range(2): e(f"v_mov_b32 v{vP+u}, v{vPn+u}")
        probs()
        soffs()
        e(f"s_add_u32 s{sIt}, s{sIt}, 1")
        e(f"s_cmp_lg_u32 s{sIt}, {NIT-1}")
        e(f"s_cbranch_scc1 L_{tag}_go")
        wave_reduce("v_add_f32", vL, vT0)
        e(f"s_lshl_b32 s{sT}, s{sW}, 3")
        e(f"v_mov_b32 v{vT2}, v{vMc}")
        e(f"v_mov_b32 v{vT3}, v{vL}")
        e(f"v_mov_b32 v{vT1}, s{sT}")
        e(f"ds_write_b64 v{vT1}, v[{vT2}:{vT3}] offset:{L_ML}")
        e(f"L_{tag}_go:")
        vslots(tag, Wn, ctl, False)
    boost = Wboost is not None
    vtrip("va", W, bal)
    e(f"s_cmp_lt_u32 s{sIt}, {NIT - 1 - (1 if boost else 0)}")
    e("s_cbranch_scc1 L_va")
    if boost: vtrip("vb", Wboost, None)
    e(f"v_mov_b32 v{vT0}, 0")
    for u in range(2): e(f"v_mov_b32 v{vP+u}, v{vPn+u}")
    e("s_waitcnt lgkmcnt(0)")
    e("s_barrier")
    e(f"ds_read_b128 {vr(vML)}, v{vT0} offset:{L_ML}")
    e(f"ds_read_b128 {vr(vML+4)}, v{vT0} offset:{L_ML+16}")
    e(f"s_mov_b32 s{sT3}, 0xffffff00")
    e("s_waitcnt lgkmcnt(0)")
    e(f"v_max3_f32 v{vT0}, v{vML}, v{vML+2}, v{vML+4}")
    e(f"v_max_f32 v{vT0}, v{vT0}, v{vML+6}")
    for w in range(4): e(f"v_sub_f32 v{vML+2*w}, v{vML+2*w}, v{vT0}")
    for w in range(4): e(f"v_exp_f32 v{vML+2*w}, v{vML+2*w}")
    e("s_nop 0")
    e(f"v_mul_f32 v{vT0}, v{vML}, v{vML+1}")
    for w in range(1, 4): e(f"v_fmac_f32 v{vT0}, v{vML+2*w}, v{vML+2*w+1}")
    e(f"v_rcp_f32 v{vT0}, v{vT0}")
    e("s_nop 0")
    for w in range(4): e(f"v_mul_f32 v{vBeta+w}, v{vML+2*w}, v{vT0}")
    vslots("vl", None, None, True)
    stamp(5)
    e("s_nop 7")
    e("s_mov_b32 exec_hi, 0")
    e(f"ds_write_b128 v{vLdsA}, {vr(vAcc)} offset:{L_O}")
    e("s_mov_b32 exec_hi, -1")
    e("s_waitcnt lgkmcnt(0)")
    e("s_barrier")
    tstamp(1)
    for w in range(4): e(f"ds_read_b32 v{vX+w}, v{vTlO} offset:{L_O + 512*w}")
    e("s_waitcnt lgkmcnt(2)" if stamps != 2 else "s_waitcnt lgkmcnt(0)")
    e(f"v_mul_f32 v{vX}, v{vX}, v{vBeta}")
    e(f"v_fmac_f32 v{vX}, v{vX+1}, v{vBeta+1}")
    e("s_waitcnt lgkmcnt(0)")
    e(f"v_fmac_f32 v{vX}, v{vX+2}, v{vBeta+2}")
    e(f"v_fmac_f32 v{vX}, v{vX+3}, v{vBeta+3}")
    e(f"v_cvt_pk_bf16_f32 v{vP}, v{vX}, v{vX}")
    tstamp(2)
    e("s_nop 1")
    ssel(vP, 0)
    e("s_nop 1")
    for pr in range(4):
        for T in range(5):
            if T == 2 and pr < 3: ssel(vP, pr+1)
            e(f"v_smfmac_f32_16x16x64_bf16 {ar(aOut+4*T)}, {vr(vA+4*(pr%2))}, {ar(woreg(2*pr, T), 8)}, v{vIdx}")
    tstamp(3)
    e("s_mov_b32 exec_hi, 0")
    e("s_nop 3")
    for T in range(5):
        e(f"ds_write_b128 v{vTlW}, {ar(aOut+4*T)} offset:{L_OUT + 512*T}")
    e("s_mov_b32 exec_hi, -1")
    e("s_waitcnt lgkmcnt(0)")
    e("s_barrier")
    tstamp(4)
    e(f"s_cmp_eq_u32 s{sW}, 3")
    e("s_cbranch_scc1 L_consume")
    for w in range(4):
        e(f"ds_read_b128 {vr(vX+4*w)}, v{vTlR} offset:{L_OUT + 2560*w}")
    e("s_waitcnt lgkmcnt(2)" if stamps != 2 else "s_waitcnt lgkmcnt(0)")
    for j in range(4): e(f"v_add_f32 v{vX+j}, v{vX+j}, v{vX+4+j}")
    e("s_waitcnt lgkmcnt(0)")
    for j in range(4): e(f"v_add_f32 v{vX+8+j}, v{vX+8+j}, v{vX+12+j}")
    for j in range(4): e(f"v_add_f32 v{vX+j}, v{vX+j}, v{vX+8+j}")
    for j in range(4): e(f"v_and_or_b32 v{vX+j}, v{vX+j}, s{sT3}, v{vTag+j}")
    e(f"buffer_store_dwordx4 {vr(vX)}, v{vTlM}, {srd(sIn)}, s{sT2} offen {polSt}")
    if hold:
        e(f"s_cmp_lg_u32 s{sW}, {hold.get('w', 0)}")
        e("s_cbranch_scc1 L_nodone")
        if hold.get("ack"): e("s_waitcnt vmcnt(0)")
        e(f"v_mov_b32 v{vBdT}, 100")
        e("s_mov_b64 exec, 1")
        e(f"buffer_store_dword v{vBdT}, off, {srd(sBd)}, s{sSlot}")
        e("s_mov_b64 exec, -1")
        e("L_nodone:")
    stamp(6)
    e("s_branch L_fin")
    def bump():
        e(f"s_cmp_lg_u32 s{sH}, 0")
        e("s_cbranch_scc1 L_nobump")
        e("s_mov_b64 exec, 1")
        e(f"buffer_store_dword v{vFlag}, off, {srd(sN)}, 0 {polB}")
        e("L_nobump:")
    e("L_consume:")
    e(f"s_cmp_eq_u32 s{sCons}, 0")
    e("s_cbranch_scc1 L_fin")
    e(f"s_lshl_b32 s{sT}, s{sH}, 12")
    e(f"s_mov_b32 s{sSpin}, 0")
    e(f"v_mov_b32 v{vT2}, 0x0c0c0400")
    e(f"v_mov_b32 v{vT3}, 0x04000c0c")
    e(f"s_mul_i32 s{sIt}, s{sB}, 2560")
    e(f"s_mul_i32 s{sT2}, s{sBr}, 1280")
    e(f"s_add_u32 s{sIt}, s{sIt}, s{sT2}")
    e(f"s_lshl_b32 s{sT2}, s{sH}, 6")
    e(f"s_add_u32 s{sIt}, s{sIt}, s{sT2}")
    e(f"v_lshlrev_b32 v{vS}, 3, v{vLane}")
    if hold:
        e(f"s_mov_b32 s{sT4}, 0")
        e("L_hold:")
        e(f"buffer_load_dword v{vBd}, v{vBdA}, {srd(sBd)}, 0 offen sc1")
        e(f"s_add_u32 s{sT4}, s{sT4}, 1")
        e("s_waitcnt vmcnt(0)")
        e(f"v_cmp_eq_u32 vcc, 100, v{vBd}")
        e(f"s_cmp_ge_u32 s{sT4}, {hold.get('max', 12)}")
        e("s_cbranch_scc1 L_held")
        e(f"s_bcnt1_i32_b64 s{sT5}, vcc")
        e(f"s_cmp_lt_u32 s{sT5}, {hold.get('n', 32)}")
        e("s_cbranch_scc1 L_hold")
        e("L_held:")
    if diagdelay:
        assert stamps
        e("L_dd:")
        e("s_memrealtime s[74:75]")
        e("s_waitcnt lgkmcnt(0)")
        e(f"s_sub_u32 s74, s74, s{sSt}")
        e(f"s_cmp_lt_u32 s74, {diagdelay}")
        e("s_cbranch_scc1 L_dd")
    if npoll == 1:
        e("L_poll:")
        for i in range(4):
            e(f"buffer_load_dwordx4 {vr(vX+4*i)}, v{vOffV}, {srd(sIn)}, s{sT} offen offset:{1024*i} {polLd}")
        e(f"s_add_u32 s{sSpin}, s{sSpin}, 1")
        for i in range(4):
            e(f"s_waitcnt vmcnt({3-i})")
            e(f"v_perm_b32 v{vT0}, v{vX+4*i+1}, v{vX+4*i}, v{vT2}")
            e(f"v_perm_b32 v{vT1}, v{vX+4*i+3}, v{vX+4*i+2}, v{vT3}")
            for j in range(4): e(f"v_and_b32 v{vX+4*i+j}, s{sT3}, v{vX+4*i+j}")
            e(f"v_or_b32 v{vT0}, v{vT0}, v{vT1}")
            e(f"v_xor_b32 v{vX+16+i}, v{vT0}, v{vFlag}")
            if i == 1:
                for j in range(4): e(f"v_add_f32 v{vX+j}, v{vX+j}, v{vX+4+j}")
        e(f"v_or3_b32 v{vT0}, v{vX+16}, v{vX+17}, v{vX+18}")
        e(f"v_or_b32 v{vT0}, v{vT0}, v{vX+19}")
        e(f"v_cmp_ne_u32 vcc, 0, v{vT0}")
        e(f"s_cmp_ge_u32 s{sSpin}, 0x200000")
        e("s_cbranch_scc1 L_polled")
        e("s_cbranch_vccnz L_poll")
        e("L_polled:")
        for j in range(4): e(f"v_add_f32 v{vX+8+j}, v{vX+8+j}, v{vX+12+j}")
        for j in range(4): e(f"v_add_f32 v{vX+j}, v{vX+j}, v{vX+8+j}")
    else:
        def pr(k): return vRing + 20 * k
        def issue(k):
            for i in range(4):
                e(f"buffer_load_dwordx4 {vr(pr(k)+4*i)}, v{vOffV}, {srd(sIn)}, s{sT} offen offset:{1024*i} {polLd}")
        for k in range(npoll): issue(k)
        e("L_poll:")
        e(f"s_add_u32 s{sSpin}, s{sSpin}, 1")
        for k in range(npoll):
            r = pr(k)
            for i in range(4):
                e(f"s_waitcnt vmcnt({4*(npoll-1) + 3 - i})")
                e(f"v_perm_b32 v{vT0}, v{r+4*i+1}, v{r+4*i}, v{vT2}")
                e(f"v_perm_b32 v{vT1}, v{r+4*i+3}, v{r+4*i+2}, v{vT3}")
                for j in range(4): e(f"v_and_b32 v{vX+4*i+j}, s{sT3}, v{r+4*i+j}")
                e(f"v_or_b32 v{vT0}, v{vT0}, v{vT1}")
                e(f"v_xor_b32 v{vX+16+i}, v{vT0}, v{vFlag}")
                if i == 1:
                    for j in range(4): e(f"v_add_f32 v{vX+j}, v{vX+j}, v{vX+4+j}")
            e(f"v_or3_b32 v{vT0}, v{vX+16}, v{vX+17}, v{vX+18}")
            e(f"v_or_b32 v{vT0}, v{vT0}, v{vX+19}")
            e(f"v_cmp_ne_u32 vcc, 0, v{vT0}")
            e("s_cbranch_vccz L_polled")
            issue(k)
        e(f"s_cmp_lt_u32 s{sSpin}, 0x100000")
        e("s_cbranch_scc1 L_poll")
        e("L_polled:")
        for j in range(4): e(f"v_add_f32 v{vX+8+j}, v{vX+8+j}, v{vX+12+j}")
        for j in range(4): e(f"v_add_f32 v{vX+j}, v{vX+j}, v{vX+8+j}")
    if early:
        bump()
        e("s_mov_b64 exec, -1")
    e("s_nop 1")
    for j in range(4): e(f"v_add_f32_dpp v{vX+j}, v{vX+j}, v{vX+j} row_ror:8 row_mask:0xf bank_mask:0xf")
    for j in range(4): e(f"v_mov_b32 v{vX+4+j}, v{vX+j}")
    e("s_nop 1")
    for j in range(4): e(f"v_permlane16_swap_b32 v{vX+j}, v{vX+4+j}")
    for j in range(4): e(f"v_add_f32 v{vX+j}, v{vX+j}, v{vX+4+j}")
    for j in range(4): e(f"v_mov_b32 v{vX+4+j}, v{vX+j}")
    e("s_nop 1")
    for j in range(4): e(f"v_permlane32_swap_b32 v{vX+j}, v{vX+4+j}")
    for j in range(4): e(f"v_add_f32 v{vX+j}, v{vX+j}, v{vX+4+j}")
    e(f"v_cvt_pk_bf16_f32 v{vX}, v{vX}, v{vX+1}")
    e(f"v_cvt_pk_bf16_f32 v{vX+1}, v{vX+2}, v{vX+3}")
    e("s_mov_b64 exec, 0xff")
    e(f"buffer_store_dwordx2 v[{vX}:{vX+1}], v{vS}, {srd(sOut)}, s{sIt} offen {polOut}")
    if not early: bump()
    e("s_mov_b64 exec, -1")
    stamp(6)
    e("L_fin:")
    if stamps:
        e("s_waitcnt vmcnt(0) lgkmcnt(0)")
        e(f"s_memrealtime s[{sSt+14}:{sSt+15}]")
        e(f"s_getreg_b32 s{sT3}, hwreg(HW_REG_XCC_ID)")
        e(f"s_add_u32 s{sIn}, s28, 0x100000")
        e(f"s_addc_u32 s{sIn+1}, s29, 0")
        e(f"s_mov_b32 s{sIn+2}, 0x20000")
        e(f"s_lshl_b32 s{sT}, s2, 2")
        e(f"s_add_u32 s{sT}, s{sT}, s{sW}")
        e(f"s_lshl_b32 s{sT}, s{sT}, 7")
        e("s_waitcnt lgkmcnt(0)")
        e(f"v_mov_b32 v{vT0}, 0")
        e("s_mov_b64 exec, 1")
        for i in range(8):
            e(f"v_mov_b32 v{vX+2*i}, s{sSt+2*i}")
            e(f"v_mov_b32 v{vX+2*i+1}, s{sSt+2*i+1}")
        e(f"s_getreg_b32 s{sT2}, hwreg(HW_REG_HW_ID)")
        e(f"v_mov_b32 v{vX+16}, s{sT3}")
        e(f"v_mov_b32 v{vX+17}, s{sT2}")
        for i in range(4):
            e(f"buffer_store_dwordx4 {vr(vX+4*i)}, v{vT0}, {srd(sIn)}, s{sT} offen offset:{16*i}")
        e(f"buffer_store_dwordx2 v[{vX+16}:{vX+17}], v{vT0}, {srd(sIn)}, s{sT} offen offset:64")
    e("L_end:")
    e("s_endpgm")
    e('.section .rodata,"a"')
    e(".p2align 6")
    e(f".amdhsa_kernel {KNAME}")
    e(f"  .amdhsa_next_free_vgpr {ACC_OFF + NA}")
    e("  .amdhsa_next_free_sgpr 102")
    e(f"  .amdhsa_accum_offset {ACC_OFF}")
    e("  .amdhsa_group_segment_fixed_size 0")
    e("  .amdhsa_kernarg_size 104")
    e("  .amdhsa_user_sgpr_count 2")
    e("  .amdhsa_user_sgpr_kernarg_segment_ptr 1")
    e("  .amdhsa_system_sgpr_workgroup_id_x 1")
    e("  .amdhsa_float_denorm_mode_32 3")
    e(".end_amdhsa_kernel")
    return "\n".join(o) + "\n"

if __name__ == "__main__":
    cfg = eval("dict(" + (sys.argv[2] if len(sys.argv) > 2 else "") + ")")
    open(sys.argv[1], "w").write(gen(**cfg))
```

```python
import sys, math, struct
KNAME = "concat_heads__gqa_block_cached__gqa_block_cached__decode_kernel"

HEADER = """; Kernarg layout for this problem (104 bytes, ptrs only, base s[0:1]):
;   offset  96: d_ws      workspace: per-head partial outputs handed to the reducing workgroups
;
; One workgroup (4 waves) per (branch, batch, head).  The workgroup walks its K slab, then its V slab,
; The 32 heads of a (branch, batch) are summed through d_ws; every handed-over word carries this
; workgroups of the same die (progress board in d_debug), and a reducing wave first looks at its
"""

def f2u(x):
    return struct.unpack("<I", struct.pack("<f", x))[0]

def brev5(s):
    return int(f"{s:05b}"[::-1], 2)

class VM:
    def __init__(self, e): self.e = e; self.ops = []; self.seen = set()
    def issue(self, tag):
        self.ops.append(tag); self.seen.add(tag); assert len(self.ops) <= 63, len(self.ops)
    def wait(self, tag):
        assert tag in self.seen
        if tag not in self.ops: return
        i = max(k for k, t in enumerate(self.ops) if t == tag)
        self.e(f"s_waitcnt vmcnt({len(self.ops) - 1 - i})")
        self.ops = self.ops[i+1:]
    def room(self): return 63 - len(self.ops)

BAL = dict(c0=37, g=1, sh=1, bias=21, d=3, cmin=24, cmax=48, up=16, dn=8, twice=0, gv=None, every=1, rot=0, pubs=4, ph=0, polL="sc1", polS="")

def gen(pol="nt", polW="nt", polWo="nt", F=2, W=5.0625, Wboost=16, ilv=(2, 1), kfirst=17, stamps=0,
        polSt="sc0 sc1", polLd="sc0 sc1", polOut="", bal=BAL, fast=0, hmap=0, npoll=1, diagdelay=0, hold=dict(n=28, ack=1, max=12), polN="sc1", polB="", early=0):
    o = []
    def e(s): o.append(s)
    D, NIT = 32, 8
    bstart = 0
    if isinstance(Wboost, tuple): bstart, Wboost = Wboost
    assert Wboost is None or Wboost <= 30
    if bal is not None: bal = {**BAL, **bal}
    L_Q = 0
    L_O = 2048
    L_ML = 4096
    L_CTL = 4160
    L_OUT = 4224
    L_S = 4224 + 10240
    LDS = L_S + 16384 + 512
    sO = 14
    sC, sC0 = 22, 23
    sW, sH, sB, sBr, sG, sPos = 30, 31, 32, 33, 34, 35
    sK, sWq, sWo, sX, sIn, sN, sOut = 36, 40, 44, 48, 52, 56, 60
    sBd = sX
    sV = 64
    sIt, sOff, sT, sT2, sT3, sCons, sSpin, sOff0 = 66, 67, 68, 69, 70, 71, 72, 73
    sM = 74
    sSt = 82
    sT4, sT5, sSlot = 98, 99, 100
    def srd(b): return f"s[{b}:{b+3}]"
    vLane, vOffV, vOffW, vC, vMc, vT0, vT1, vT2, vT3 = 1, 2, 3, 4, 5, 6, 7, 8, 9
    vM0, vM1, vIdx, vLdsR = 10, 11, 12, 13
    vSelE, vSelO = 14, 18
    vS, vMax, vL, vFlag, vLdsS, vLdsA = 22, 23, 24, 25, 26, 27
    vBd, vBdA, vBdT, vCtl = 28, 29, 30, 31
    vCtlA = vSelE
    vA = 32
    vAcc = 40
    vQ = 44
    vD = 60
    vP, vPn, vSn = 44, 46, 48
    vTag = 52
    vBeta = 56
    vX = 80
    vML = 112
    vOffC = 120
    vRing = 124
    vTlO, vTlW, vTlR, vTlM = 252, 253, 254, 255
    ACC_OFF = 256
    aOut = 160
    NA = 180
    def vr(b, n=4): return f"v[{b}:{b+n-1}]"
    def ar(b, n=4): return f"a[{b}:{b+n-1}]"
    def stamp(i):
        if stamps in (1, 3) or (stamps == 2 and i not in (1, 2, 3, 4)): e(f"s_memrealtime s[{sSt+2*i}:{sSt+2*i+1}]")
    def tstamp(i):
        if stamps == 2: e(f"s_memrealtime s[{sSt+2*i}:{sSt+2*i+1}]")
    wbase, step = F * 1024, D * 4096
    def off(s): return (s // F) * F * 4096 + (s % F) * 1024
    his = sorted(set(off(s) // 4096 * 4096 for s in range(D)))
    hs = his[1] - his[0]
    ns = min(len(his), 8); nv = len(his) // ns
    def soffs(base=sO):
        e(f"s_mov_b32 s{base}, s{sOff}")
        for i in range(1, ns): e(f"s_add_u32 s{base+i}, s{sOff}, {i*nv*hs}")
    def ringload(s, base=sO):
        k = his.index(off(s) // 4096 * 4096)
        e(f"buffer_load_dwordx4 {vr(vRing+4*s)}, v{vOffC+k%nv}, {srd(sK)}, s{base+k//nv} offen offset:{off(s)%4096} {pol}")
    def woreg(rr, T): return ((rr >> 1) * 5 + T) * 8 + (rr & 1) * 4
    def xsel(r, dst):
        sel = vSelE if r % 2 == 0 else vSelO
        for i in range(4):
            e(f"v_perm_b32 v{dst+i}, v{vX+r//2}, v{vX+r//2}, v{sel+i}")
    def ssel(src, j):
        dst = vA + 4 * (j % 2)
        for i in range(4):
            e(f"v_and_b32_dpp v{dst+i}, v{src}, v{(vM0, vM1)[i&1]} row_newbcast:{2*j+(i>>1)} row_mask:0xf bank_mask:0xf")
    def wave_reduce(op, v, t):
        for n in (8, 4, 2, 1):
            e(f"{op}_dpp v{v}, v{v}, v{v} row_ror:{n} row_mask:0xf bank_mask:0xf")
            e("s_nop 1" if n != 1 else "s_nop 0")
        e(f"v_mov_b32 v{t}, v{v}")
        e("s_nop 1")
        e(f"v_permlane16_swap_b32 v{v}, v{t}")
        e("s_nop 0")
        e(f"{op} v{v}, v{v}, v{t}")
        e(f"v_mov_b32 v{t}, v{v}")
        e("s_nop 1")
        e(f"v_permlane32_swap_b32 v{v}, v{t}")
        e("s_nop 0")
        e(f"{op} v{v}, v{v}, v{t}")

    e(HEADER.rstrip("\n"))
    e(f"; @launch grid=(256,1,1) block=(256,1,1) lds={LDS}")
    e('.amdgcn_target "amdgcn-amd-amdhsa--gfx950"')
    e(".text")
    e(f".globl {KNAME}")
    e(".p2align 8")
    e(f".type {KNAME},@function")
    e(f"{KNAME}:")
    stamp(0)
    e("s_cmp_ge_u32 s2, 256")
    e("s_cbranch_scc1 L_end")
    e("s_load_dwordx16 s[4:19], s[0:1], 0")
    e("s_load_dwordx8 s[20:27], s[0:1], 64")
    e("s_load_dwordx2 s[28:29], s[0:1], 96")
    e(f"v_lshrrev_b32 v{vT0}, 6, v0")
    e(f"v_and_b32 v{vLane}, 63, v0")
    e(f"v_readfirstlane_b32 s{sW}, v{vT0}")
    e(f"s_and_b32 s{sH}, s2, 7")
    e(f"s_bfe_u32 s{sT}, s2, 0x20005")
    if hmap == 0: e(f"s_lshl_b32 s{sT}, s{sT}, 3")
    elif hmap == 2: e(f"s_lshl_b32 s{sH}, s{sH}, 2")
    elif hmap in (4, 5, 6):
        if hmap == 4:
            e(f"s_and_b32 s{sT3}, s{sH}, 1"); e(f"s_lshl_b32 s{sT3}, s{sT3}, 1"); e(f"s_xor_b32 s{sH}, s{sH}, s{sT3}")
        elif hmap == 5:
            e(f"s_and_b32 s{sT3}, s{sH}, 4"); e(f"s_lshr_b32 s{sT3}, s{sT3}, 1"); e(f"s_xor_b32 s{sH}, s{sH}, s{sT3}")
        else:
            e(f"s_lshr_b32 s{sT3}, s2, 7"); e(f"s_lshl_b32 s{sT3}, s{sT3}, 1"); e(f"s_xor_b32 s{sH}, s{sH}, s{sT3}")
        e(f"s_lshl_b32 s{sT}, s{sT}, 3")
    else:
        e(f"s_add_u32 s{sH}, s{sH}, s{sT}")
        e(f"s_and_b32 s{sH}, s{sH}, 7")
        e(f"s_lshl_b32 s{sT}, s{sT}, 3")
    e(f"s_add_u32 s{sH}, s{sH}, s{sT}")
    e(f"s_lshr_b32 s{sBr}, s2, 7")
    e(f"s_bfe_u32 s{sB}, s2, 0x20003")
    e(f"s_lshl_b32 s{sG}, s{sBr}, 2")
    e(f"s_add_u32 s{sG}, s{sG}, s{sB}")
    e(f"v_lshrrev_b32 v{vT0}, 4, v{vLane}")
    e(f"v_and_b32 v{vT1}, 15, v{vLane}")
    e(f"v_mul_u32_u24 v{vT2}, 80, v{vT0}")
    e(f"v_lshlrev_b32 v{vT3}, 4, v{vT1}")
    e(f"v_mul_u32_u24 v{vOffW}, {40*8192}, v{vT0}")
    e(f"v_add_u32 v{vOffW}, v{vOffW}, v{vT3}")
    e(f"v_lshlrev_b32 v{vOffV}, 4, v{vLane}")
    e(f"v_lshrrev_b32 v{vOffC}, 2, v{vT1}")
    e(f"v_lshlrev_b32 v{vOffC}, 8, v{vOffC}")
    e(f"v_lshl_add_u32 v{vOffC}, v{vT0}, 6, v{vOffC}")
    e(f"v_and_b32 v{vS}, 3, v{vLane}")
    e(f"v_lshl_add_u32 v{vOffC}, v{vS}, 4, v{vOffC}")
    for j in range(1, nv): e(f"v_add_u32 v{vOffC+j}, {j*hs}, v{vOffC}")
    e(f"s_lshl_b32 s{sT}, s{sB}, 5")
    e(f"s_add_u32 s{sT}, s{sT}, s{sH}")
    e(f"s_lshl_b32 s{sT}, s{sT}, 20")
    e(f"s_mul_i32 s{sT2}, s{sB}, 1280")
    e(f"s_lshl_b32 s{sT3}, s{sH}, 8")
    e(f"s_mul_i32 s{sOff0}, s{sW}, {wbase}")
    e(f"s_mov_b32 s{sOff}, s{sOff0}")
    e(f"s_mov_b32 s{sX+2}, 1280")
    e(f"s_mov_b32 s{sX+3}, 0x20000")
    e(f"s_sub_u32 s{sWq+2}, {640*8192}, s{sT3}")
    e(f"s_mov_b32 s{sWq+3}, 0x20000")
    e(f"s_mov_b32 s{sK+2}, 0x100000")
    e(f"s_mov_b32 s{sK+3}, 0x20000")
    e(f"s_mul_i32 s{sSpin}, s{sW}, 320")
    e(f"s_mul_i32 s3, s{sW}, {160*8192}")
    if not fast:
        e(f"s_cmp_eq_u32 s{sBr}, 0")
        e("s_waitcnt lgkmcnt(0)")
        e("s_cselect_b64 s[4:5], s[4:5], s[14:15]")
        e("s_cselect_b64 s[10:11], s[10:11], s[20:21]")
        e("s_cselect_b64 s[6:7], s[6:7], s[16:17]")
        e("s_cselect_b64 s[8:9], s[8:9], s[18:19]")
        e("s_cselect_b64 s[12:13], s[12:13], s[22:23]")
        e(f"s_add_u32 s{sX}, s4, s{sT2}")
        e(f"s_addc_u32 s{sX+1}, s5, 0")
        e(f"s_add_u32 s{sWq}, s10, s{sT3}")
        e(f"s_addc_u32 s{sWq+1}, s11, 0")
        vm = VM(e)
        for i in range(5):
            e(f"buffer_load_dwordx4 {vr(vX+4*i)}, v{vT2}, {srd(sX)}, s{sSpin} offen offset:{16*i}"); vm.issue("x")
        e(f"s_add_u32 s{sK}, s6, s{sT}")
        e(f"s_addc_u32 s{sK+1}, s7, 0")
        e(f"s_add_u32 s{sV}, s8, s{sT}")
        e(f"s_addc_u32 s{sV+1}, s9, 0")
        soffs()
        nk = [0]
        def kpre():
            ringload(nk[0]); vm.issue(f"k{nk[0]}"); nk[0] += 1
        a, b = ilv
        r = 0
        while r < 40:
            for _ in range(a):
                if r < 40:
                    e(f"buffer_load_dwordx4 {ar(4*r)}, v{vOffW}, {srd(sWq)}, s3 offen {polW}"); vm.issue(f"wq{r}")
                    if r < 39: e(f"s_add_u32 s3, s3, 8192")
                    r += 1
            for _ in range(b):
                if nk[0] < kfirst: kpre()
        while nk[0] < kfirst: kpre()
    else:
        soffs(sM)
        e(f"s_cmp_eq_u32 s{sBr}, 0")
        e("s_waitcnt lgkmcnt(0)")
        e("s_cselect_b64 s[6:7], s[6:7], s[16:17]")
        e("s_cselect_b64 s[10:11], s[10:11], s[20:21]")
        e("s_cselect_b64 s[4:5], s[4:5], s[14:15]")
        e("s_cselect_b64 s[8:9], s[8:9], s[18:19]")
        e("s_cselect_b64 s[12:13], s[12:13], s[22:23]")
        e(f"s_add_u32 s{sK}, s6, s{sT}")
        e(f"s_addc_u32 s{sK+1}, s7, 0")
        vm = VM(e)
        nk = [0]; kb = [sM]
        def kpre():
            ringload(nk[0], kb[0]); vm.issue(f"k{nk[0]}"); nk[0] += 1
        kpre()
        e(f"s_add_u32 s{sWq}, s10, s{sT3}")
        e(f"s_addc_u32 s{sWq+1}, s11, 0")
        a, b = ilv
        r = 0
        while r < 40:
            for _ in range(a):
                if r < 40:
                    e(f"buffer_load_dwordx4 {ar(4*r)}, v{vOffW}, {srd(sWq)}, s3 offen {polW}"); vm.issue(f"wq{r}")
                    if r < 39: e(f"s_add_u32 s3, s3, 8192")
                    r += 1
            if r == a:
                e(f"s_add_u32 s{sX}, s4, s{sT2}")
                e(f"s_addc_u32 s{sX+1}, s5, 0")
                for i in range(5):
                    e(f"buffer_load_dwordx4 {vr(vX+4*i)}, v{vT2}, {srd(sX)}, s{sSpin} offen offset:{16*i}"); vm.issue("x")
            for _ in range(b):
                if nk[0] < kfirst: kpre()
        while nk[0] < kfirst: kpre()
        e(f"s_add_u32 s{sV}, s8, s{sT}")
        e(f"s_addc_u32 s{sV+1}, s9, 0")
        soffs(); kb[0] = sO
    e(f"s_lshl_b32 s{sT}, s{sG}, 7")
    e(f"s_add_u32 s{sT}, s{sT}, {8*20*4096}")
    e(f"s_add_u32 s{sN}, s28, s{sT}")
    e(f"s_addc_u32 s{sN+1}, s29, 0")
    e(f"s_mov_b32 s{sN+2}, 4")
    e(f"s_mov_b32 s{sN+3}, 0x20000")
    e(f"buffer_load_dword v{vFlag}, off, {srd(sN)}, 0 {polN}"); vm.issue("n")
    stamp(1)
    e(f"s_mul_i32 s{sT}, s{sH}, 163840")
    e(f"s_add_u32 s{sWo}, s12, s{sT}")
    e(f"s_addc_u32 s{sWo+1}, s13, 0")
    e(f"s_mov_b32 s{sWo+2}, 163840")
    e(f"s_mov_b32 s{sWo+3}, 0x20000")
    e(f"s_mul_i32 s{sT}, s{sG}, {20*4096}")
    e(f"s_add_u32 s{sIn}, s28, s{sT}")
    e(f"s_addc_u32 s{sIn+1}, s29, 0")
    e(f"s_mov_b32 s{sIn+2}, {20*4096}")
    e(f"s_mov_b32 s{sIn+3}, 0x20000")
    e(f"s_mov_b32 s{sOut}, s24")
    e(f"s_mov_b32 s{sOut+1}, s25")
    e(f"s_mov_b32 s{sOut+2}, 10240")
    e(f"s_mov_b32 s{sOut+3}, 0x20000")
    e(f"s_cmp_lt_u32 s{sH}, 20")
    e(f"s_cselect_b32 s{sCons}, 1, 0")
    e(f"s_cmp_eq_u32 s{sW}, 3")
    e(f"s_cselect_b32 s{sCons}, s{sCons}, 0")
    e(f"v_mul_u32_u24 v{vOffW}, {8*1280}, v{vT0}")
    e(f"v_add_u32 v{vOffW}, v{vOffW}, v{vT3}")
    e(f"v_and_b32 v{vS}, 1, v{vLane}")
    e(f"v_cmp_eq_u32 vcc, 1, v{vS}")
    e(f"v_mov_b32 v{vT1}, 0x0c0c0100")
    e(f"v_mov_b32 v{vT2}, 0x01000c0c")
    e(f"v_cndmask_b32 v{vMax}, v{vT1}, v{vT2}, vcc")
    e(f"v_mov_b32 v{vT1}, 0x0c0c0302")
    e(f"v_mov_b32 v{vT2}, 0x03020c0c")
    e(f"v_cndmask_b32 v{vL}, v{vT1}, v{vT2}, vcc")
    e(f"v_mov_b32 v{vT1}, 0x0c0c0c0c")
    for i in range(4):
        e(f"s_mov_b32 s{sM+2*i}, {hex(0x00030003 << (2*i))}")
        e(f"s_mov_b32 s{sM+2*i+1}, {hex(0x00030003 << (2*i))}")
    for i in range(4):
        m = f"s[{sM+2*i}:{sM+2*i+1}]"
        e(f"v_cndmask_b32 v{vSelE+i}, v{vT1}, v{vMax}, {m}")
        e(f"v_cndmask_b32 v{vSelO+i}, v{vT1}, v{vL}, {m}")
    e(f"v_mov_b32 v{vT1}, 0xffff")
    e(f"s_mov_b32 s{sM}, 0x000f000f")
    e(f"s_mov_b32 s{sM+1}, 0x000f000f")
    e(f"s_mov_b32 s{sM+2}, 0x00f000f0")
    e(f"s_mov_b32 s{sM+3}, 0x00f000f0")
    e(f"v_cndmask_b32 v{vM0}, 0, v{vT1}, s[{sM}:{sM+1}]")
    e(f"v_cndmask_b32 v{vM1}, 0, v{vT1}, s[{sM+2}:{sM+3}]")
    e(f"v_and_b32 v{vIdx}, 3, v{vLane}")
    e(f"v_xor_b32 v{vT1}, 1, v{vIdx}")
    e(f"v_lshl_or_b32 v{vIdx}, v{vT1}, 2, v{vIdx}")
    e(f"v_mul_u32_u24 v{vIdx}, 0x1111, v{vIdx}")
    for t in range(4):
        e(f"s_mov_b32 s{sM+2*t}, {hex(0x11111111 << t)}")
        e(f"s_mov_b32 s{sM+2*t+1}, {hex(0x11111111 << t)}")
    for i in range(4): e(f"v_mov_b32 v{vAcc+i}, 0")
    for i in range(20): e(f"v_accvgpr_write_b32 a{aOut+i}, 0")
    e(f"v_mov_b32 v{vMax}, 0xff800000")
    e(f"v_mov_b32 v{vL}, 0")
    e(f"v_mov_b32 v{vC}, {hex(f2u(math.log2(math.e)))}")
    e(f"s_lshl_b32 s{sT}, s{sW}, 12")
    e(f"s_add_u32 s{sT}, s{sT}, {L_S}")
    e(f"v_lshl_add_u32 v{vLdsS}, v{vLane}, 2, s{sT}")
    e(f"v_and_b32 v{vT1}, 1, v{vT0}")
    e(f"v_lshlrev_b32 v{vT1}, 1, v{vT1}")
    e(f"v_and_b32 v{vT2}, 1, v{vLane}")
    e(f"v_add_u32 v{vT1}, v{vT1}, v{vT2}")
    e(f"v_lshlrev_b32 v{vLdsR}, 4, v{vT1}")
    e(f"v_and_b32 v{vT1}, 14, v{vLane}")
    e(f"v_add_u32 v{vLdsR}, v{vLdsR}, v{vT1}")
    e(f"v_lshrrev_b32 v{vT1}, 1, v{vT0}")
    e(f"v_add_u32 v{vLdsR}, v{vLdsR}, v{vT1}")
    e(f"v_lshl_add_u32 v{vLdsR}, v{vLdsR}, 2, s{sT}")
    e(f"s_lshl_b32 s{sT}, s{sW}, 9")
    e(f"v_lshlrev_b32 v{vLdsA}, 1, v{vT3}")
    e(f"v_lshl_add_u32 v{vLdsA}, v{vT0}, 4, v{vLdsA}")
    e(f"v_add_u32 v{vLdsA}, s{sT}, v{vLdsA}")
    e(f"v_and_b32 v{vT2}, 1, v{vT0}")
    e(f"v_lshl_add_u32 v{vTlO}, v{vT2}, 4, v{vT1}")
    e(f"v_and_b32 v{vT2}, 1, v{vLane}")
    e(f"v_lshl_add_u32 v{vTlO}, v{vT2}, 3, v{vTlO}")
    e(f"v_and_b32 v{vT2}, 6, v{vLane}")
    e(f"v_add_u32 v{vTlO}, v{vTlO}, v{vT2}")
    e(f"s_lshl_b32 s{sT}, s{sW}, 7")
    e(f"v_lshl_add_u32 v{vTlO}, v{vTlO}, 2, s{sT}")
    e(f"s_lshl_b32 s{sT}, s{sW}, 11")
    e(f"v_add_u32 v{vTlW}, s{sT}, v{vLdsA}")
    e(f"v_lshlrev_b32 v{vTlR}, 4, v0")
    e(f"v_lshrrev_b32 v{vTlM}, 3, v0")
    e(f"v_lshlrev_b32 v{vTlM}, 12, v{vTlM}")
    e(f"v_and_b32 v{vT2}, 7, v0")
    e(f"v_lshl_add_u32 v{vTlM}, v{vT2}, 4, v{vTlM}")
    if bal:
        e(f"s_getreg_b32 s{sT}, hwreg(HW_REG_HW_ID)")
        e(f"s_bfe_u32 s{sSlot}, s{sT}, 0x40008")
        e(f"s_bfe_u32 s{sT}, s{sT}, 0x2000d")
        e(f"s_lshl_b32 s{sT}, s{sT}, 4")
        e(f"s_add_u32 s{sSlot}, s{sSlot}, s{sT}")
        e(f"s_lshl_b32 s{sSlot}, s{sSlot}, 2")
        e(f"v_lshlrev_b32 v{vBdA}, 2, v{vLane}")
        e(f"s_mov_b32 s{sPos}, 0")
        e(f"s_mov_b32 s{sC0}, {bal['c0']}")
        if bal["d"]:
            e(f"s_getreg_b32 s{sT}, hwreg(HW_REG_XCC_ID)")
            e(f"s_and_b32 s{sT}, s{sT}, 1")
            if hmap in (0, 4, 5, 6):
                e(f"s_and_b32 s{sT3}, s{sH}, 3")
                e(f"s_cmp_eq_u32 s{sT3}, 1")
                e(f"s_cselect_b32 s{sT}, 0, s{sT}")
            e(f"s_mul_i32 s{sT}, s{sT}, {bal['d']}")
            e(f"s_sub_u32 s{sC0}, s{sC0}, s{sT}")
        e(f"s_mov_b32 s{sC}, s{sC0}")
    e(f"s_mul_i32 s{sT2}, s{sW}, {32*1280}")
    vm.wait("x")
    if bal:
        e(f"s_mov_b32 s{sBd}, s26")
        e(f"s_mov_b32 s{sBd+1}, s27")
        e(f"s_mov_b32 s{sBd+2}, 256")
        e(f"s_mov_b32 s{sBd+3}, 0x20000")
    xsel(0, vA)
    for r in range(40):
        if r < 39: xsel(r+1, vA + 4*((r+1) % 2))
        else: e("s_nop 1")
        vm.wait(f"wq{r}")
        c = "0" if r == 0 else vr(vD)
        e(f"v_mfma_f32_16x16x32_bf16 {vr(vD)}, {vr(vA+4*(r%2))}, {ar(4*r)}, {c}")
        if nk[0] < D and vm.room() > 0: kpre()
    assert nk[0] == D
    stamp(2)
    e(f"v_lshrrev_b32 v{vT1}, 2, v{vLane}")
    e(f"v_lshlrev_b32 v{vT1}, 5, v{vT1}")
    if bal and bal["rot"]:
        e(f"v_mov_b32 v{vCtl}, s{sC0}")
        e(f"v_mov_b32 v{vCtlA}, {L_CTL}")
        e(f"ds_write_b32 v{vCtlA}, v{vCtl}")
    e("s_nop 5")
    e("s_mov_b32 exec_hi, 0")
    e(f"ds_write_b128 v{vLdsA}, {vr(vD)} offset:{L_Q}")
    e("s_mov_b32 exec_hi, -1")
    e("s_waitcnt lgkmcnt(0)")
    e("s_barrier")
    for w in range(4):
        e(f"ds_read_b128 {vr(vX+8*w)}, v{vT1} offset:{L_Q + 512*w}")
        e(f"ds_read_b128 {vr(vX+8*w+4)}, v{vT1} offset:{L_Q + 512*w + 16}")
    e("s_waitcnt lgkmcnt(4)")
    for j in range(8): e(f"v_add_f32 v{vX+j}, v{vX+j}, v{vX+8+j}")
    e("s_waitcnt lgkmcnt(0)")
    for j in range(8): e(f"v_add_f32 v{vX+16+j}, v{vX+16+j}, v{vX+24+j}")
    for j in range(8): e(f"v_add_f32 v{vX+j}, v{vX+j}, v{vX+16+j}")
    for i in range(4): e(f"v_cvt_pk_bf16_f32 v{vX+8+i}, v{vX+2*i}, v{vX+2*i+1}")
    for t in range(4):
        for i in range(4):
            e(f"v_cndmask_b32 v{vQ+4*t+i}, 0, v{vX+8+i}, s[{sM+2*t}:{sM+2*t+1}]")
    e(f"s_mov_b32 s{sIt}, 0")
    stamp(3)

    def wcnt(Wn, s):
        base = math.floor(Wn + 1e-9); fr = Wn - base
        return base - 1 + int(math.floor((s + 1) * fr + 0.5 + 1e-9) - math.floor(s * fr + 0.5 + 1e-9))
    def slotwait(tag, s, Wn, ctl, extra5):
        x = lambda n: n + (5 if (extra5 and s <= n) else 0)
        if not ctl:
            e(f"s_waitcnt vmcnt({x(wcnt(Wn, s))})"); return
        r = brev5(s)
        if r < bal["up"]:
            e(f"s_waitcnt vmcnt({x(5)})")
            e(f"s_cmp_gt_u32 s{sC}, {32 + r}")
            e(f"s_cbranch_scc1 L_{tag}_w{s}")
            e(f"s_waitcnt vmcnt({x(4)})")
            e(f"L_{tag}_w{s}:")
        elif r >= 32 - bal["dn"]:
            e(f"s_waitcnt vmcnt({x(4)})")
            e(f"s_cmp_gt_u32 s{sC}, {r}")
            e(f"s_cbranch_scc1 L_{tag}_w{s}")
            e(f"s_waitcnt vmcnt({x(3)})")
            e(f"L_{tag}_w{s}:")
        else:
            e(f"s_waitcnt vmcnt({x(4)})")
    def bal_mine(tag, lab):
        if bal["rot"]:
            e(f"s_lshr_b32 s{sT}, s{sPos}, 2")
            if bal["every"] > 1:
                e(f"s_and_b32 s{sT3}, s{sT}, {bal['every'] - 1}")
                e(f"s_cmp_lg_u32 s{sT3}, {bal['ph']}")
                e(f"s_cbranch_scc1 {lab}")
                e(f"s_lshr_b32 s{sT}, s{sT}, {bal['every'].bit_length() - 1}")
            e(f"s_and_b32 s{sT}, s{sT}, 3")
            e(f"s_cmp_lg_u32 s{sT}, s{sW}")
            e(f"s_cbranch_scc1 {lab}")
        elif bal["every"] > 1:
            e(f"s_bfe_u32 s{sT}, s{sPos}, {hex(((bal['every'].bit_length() - 1) << 16) + 2)}")
            e(f"s_cmp_lg_u32 s{sT}, {bal['ph']}")
            e(f"s_cbranch_scc1 {lab}")
    def bal_pre(s, tag="k"):
        if s == 0:
            if bal["rot"]:
                if tag == "k": e("s_waitcnt lgkmcnt(0)")
                e(f"v_readfirstlane_b32 s{sC}, v{vCtl}")
            bal_mine(tag, f"L_{tag}_nord")
            e(f"buffer_load_dword v{vBd}, v{vBdA}, {srd(sBd)}, 0 offen {bal['polL']}")
            e(f"L_{tag}_nord:")
        if s == 16:
            g, sh = (bal["gv"] if (bal["gv"] and tag != "k") else (bal["g"], bal["sh"]))
            bal_mine(tag, f"L_{tag}_noup")
            for n in (8, 4, 2, 1):
                e(f"v_add_u32_dpp v{vBd}, v{vBd}, v{vBd} row_ror:{n} row_mask:0xf bank_mask:0xf")
                e("s_nop 1" if n != 1 else "s_nop 0")
            for l in range(4): e(f"v_readlane_b32 s{[sT, sT3, sT4, sT5][l]}, v{vBd}, {16*l}")
            e(f"s_add_u32 s{sT}, s{sT}, s{sT3}")
            e(f"s_add_u32 s{sT4}, s{sT4}, s{sT5}")
            e(f"s_add_u32 s{sT}, s{sT}, s{sT4}")
            e(f"s_lshl_b32 s{sT3}, s{sPos}, 5")
            e(f"s_sub_i32 s{sT}, s{sT}, s{sT3}")
            e(f"s_add_i32 s{sT}, s{sT}, {bal['bias']}")
            if g != 1: e(f"s_mul_i32 s{sT}, s{sT}, {g}")
            e(f"s_ashr_i32 s{sT}, s{sT}, {sh}")
            e(f"s_add_i32 s{sT}, s{sT}, s{sC0}")
            e(f"s_max_i32 s{sT}, s{sT}, {bal['cmin']}")
            e(f"s_min_i32 s{sC}, s{sT}, {bal['cmax']}")
            if bal["rot"]:
                e(f"v_mov_b32 v{vBdT}, s{sC}")
                e(f"ds_write_b32 v{vCtlA}, v{vBdT}")
            e(f"L_{tag}_noup:")
            e(f"s_add_u32 s{sPos}, s{sPos}, 4")
        if s == 28 and bal["rot"]:
            e(f"ds_read_b32 v{vCtl}, v{vCtlA}")
    def bal_post(tag, s):
        if s % 8 != 7: return
        k = s // 8
        if bal["pubs"] == 2 and k % 2 == 0: return
        e(f"s_cmp_lg_u32 s{sW}, {k}")
        e(f"s_cbranch_scc1 L_{tag}_np{k}")
        e(f"s_add_u32 s{sT}, s{sPos}, {(k + 1) - (4 if s >= 16 else 0)}")
        e(f"v_mov_b32 v{vBdT}, s{sT}")
        e("s_mov_b64 exec, 1")
        e(f"buffer_store_dword v{vBdT}, off, {srd(sBd)}, s{sSlot} {bal['polS']}")
        e("s_mov_b64 exec, -1")
        e(f"L_{tag}_np{k}:")

    e("L_k:")
    e(f"s_add_u32 s{sOff}, s{sOff}, {step}")
    def tree(lo, bit):
        if bit < 0:
            for T in range(5):
                e(f"buffer_load_dwordx4 {ar(woreg(lo, T))}, v{vOffW}, {srd(sWo)}, s{sT2} offen offset:{T*256} {polWo}")
            if lo != 7: e("s_branch L_k_wodone")
            return
        e(f"s_bitcmp1_b32 s{sIt}, {bit}")
        e(f"s_cbranch_scc1 L_k_wo{lo + (1 << bit)}_{bit}")
        tree(lo, bit - 1)
        e(f"L_k_wo{lo + (1 << bit)}_{bit}:")
        tree(lo + (1 << bit), bit - 1)
    tree(0, 2)
    e("L_k_wodone:")
    e(f"s_add_u32 s{sT2}, s{sT2}, 1280")
    e(f"s_cmp_lg_u32 s{sIt}, {NIT-1}")
    e("s_cbranch_scc1 L_k_go")
    e(f"s_mov_b32 s{sK}, s{sV}")
    e(f"s_mov_b32 s{sK+1}, s{sV+1}")
    e(f"s_mov_b32 s{sOff}, s{sOff0}")
    e(f"v_mov_b32 v{vOffC}, v{vOffV}")
    for j in range(1, nv): e(f"v_add_u32 v{vOffC+j}, {j*hs}, v{vOffV}")
    e("L_k_go:")
    soffs()
    e(f"s_add_u32 s{sIt}, s{sIt}, 1")
    for u in range(2):
        for s16 in range(16):
            s = u * 16 + s16
            b, t = s16 // 4, s16 % 4
            if bal: bal_pre(s)
            slotwait("k", s, W, bal, True)
            c = "0" if t == 0 else vr(vD+4*b)
            e(f"v_mfma_f32_16x16x32_bf16 {vr(vD+4*b)}, {vr(vRing+4*s)}, {vr(vQ+4*t)}, {c}")
            ringload(s)
            if bal: bal_post("k", s)
        for r in range(4):
            for k in range(4):
                cc = (r + k) % 4
                ror = (4 * (r - cc)) % 16
                ctl = "quad_perm:[0,1,2,3]" if ror == 0 else f"row_ror:{ror}"
                if k == 0:
                    e(f"v_mov_b32_dpp v{vS}, v{vD+4*r+cc} {ctl} row_mask:0xf bank_mask:{hex(1<<r)}")
                else:
                    e(f"v_add_f32_dpp v{vS}, v{vD+4*r+cc}, v{vS} {ctl} row_mask:0xf bank_mask:{hex(1<<r)}")
        e(f"v_cvt_pk_bf16_f32 v{vS}, v{vS}, v{vS}")
        e(f"v_lshlrev_b32 v{vS}, 16, v{vS}")
        e(f"v_mul_f32 v{vS}, {hex(f2u(128 ** -0.5))}, v{vS}")
        e(f"v_cvt_pk_bf16_f32 v{vS}, v{vS}, v{vS}")
        e(f"v_lshlrev_b32 v{vS}, 16, v{vS}")
        e(f"v_max_f32 v{vMax}, v{vMax}, v{vS}")
        e(f"ds_write_b32 v{vLdsS}, v{vS} offset:{256*u}")
    e(f"v_add_u32 v{vLdsS}, 512, v{vLdsS}")
    e(f"s_cmp_lt_u32 s{sIt}, {NIT}")
    e("s_cbranch_scc1 L_k")

    def probs():
        for u in range(2): e(f"v_fma_f32 v{vT0+u}, v{vSn+u}, v{vC}, -v{vMc}")
        e(f"v_add_u32 v{vLdsR}, 512, v{vLdsR}")
        for u in range(2): e(f"v_exp_f32 v{vT0+u}, v{vT0+u}")
        for u in range(2): e(f"ds_read_b32 v{vSn+u}, v{vLdsR} offset:{256*u}")
        for u in range(2): e(f"v_cvt_pk_bf16_f32 v{vPn+u}, v{vT0+u}, v{vT0+u}")
        for u in range(2): e(f"v_add_f32 v{vL}, v{vL}, v{vT0+u}")
    for u in range(2): e(f"ds_read_b32 v{vSn+u}, v{vLdsR} offset:{256*u}")
    wave_reduce("v_max_f32", vMax, vT0)
    e(f"v_mul_f32 v{vMc}, v{vMax}, v{vC}")
    e(f"v_add_u32 v{vFlag}, 0x01010101, v{vFlag}")
    for j in range(4): e(f"v_bfe_u32 v{vTag+j}, v{vFlag}, {8*j}, 8")
    e(f"s_lshl_b32 s{sT2}, s{sH}, 7")
    e("s_waitcnt lgkmcnt(0)")
    probs()
    e(f"s_mov_b32 s{sIt}, 0")
    stamp(4)

    def vslots(tag, Wn, ctl, last):
        ssel(vP, 0)
        for j in range(16):
            if j < 15: ssel(vP + (j+1) // 8, (j+1) % 8)
            else: e("s_nop 0")
            mm = f"v_smfmac_f32_16x16x64_bf16 {vr(vAcc)}, {vr(vA+4*(j%2))}, {vr(vRing+8*j, 8)}, v{vIdx}"
            if last:
                e(f"s_waitcnt vmcnt({30 - 2*j})"); e(mm)
                if j < 14: e("s_nop 1")
                continue
            for s in (2*j, 2*j+1):
                if tag == "vb" and s < bstart:
                    if bal: bal_pre(s, tag)
                    slotwait(tag, s, W, bal, False)
                else:
                    if ctl: bal_pre(s, tag)
                    slotwait(tag, s, Wn, ctl, False)
                if s == 2*j: e(mm)
                ringload(s)
                if ctl or (tag == "vb" and bal and s < bstart and s < 16): bal_post(tag, s)
    def vtrip(tag, Wn, ctl):
        e(f"L_{tag}:")
        e(f"s_add_u32 s{sOff}, s{sOff}, {step}")
        e("s_waitcnt lgkmcnt(0)")
        for u in range(2): e(f"v_mov_b32 v{vP+u}, v{vPn+u}")
        probs()
        soffs()
        e(f"s_add_u32 s{sIt}, s{sIt}, 1")
        e(f"s_cmp_lg_u32 s{sIt}, {NIT-1}")
        e(f"s_cbranch_scc1 L_{tag}_go")
        wave_reduce("v_add_f32", vL, vT0)
        e(f"s_lshl_b32 s{sT}, s{sW}, 3")
        e(f"v_mov_b32 v{vT2}, v{vMc}")
        e(f"v_mov_b32 v{vT3}, v{vL}")
        e(f"v_mov_b32 v{vT1}, s{sT}")
        e(f"ds_write_b64 v{vT1}, v[{vT2}:{vT3}] offset:{L_ML}")
        e(f"L_{tag}_go:")
        vslots(tag, Wn, ctl, False)
    boost = Wboost is not None
    vtrip("va", W, bal)
    e(f"s_cmp_lt_u32 s{sIt}, {NIT - 1 - (1 if boost else 0)}")
    e("s_cbranch_scc1 L_va")
    if boost: vtrip("vb", Wboost, None)
    e(f"v_mov_b32 v{vT0}, 0")
    for u in range(2): e(f"v_mov_b32 v{vP+u}, v{vPn+u}")
    e("s_waitcnt lgkmcnt(0)")
    e("s_barrier")
    e(f"ds_read_b128 {vr(vML)}, v{vT0} offset:{L_ML}")
    e(f"ds_read_b128 {vr(vML+4)}, v{vT0} offset:{L_ML+16}")
    e(f"s_mov_b32 s{sT3}, 0xffffff00")
    e("s_waitcnt lgkmcnt(0)")
    e(f"v_max3_f32 v{vT0}, v{vML}, v{vML+2}, v{vML+4}")
    e(f"v_max_f32 v{vT0}, v{vT0}, v{vML+6}")
    for w in range(4): e(f"v_sub_f32 v{vML+2*w}, v{vML+2*w}, v{vT0}")
    for w in range(4): e(f"v_exp_f32 v{vML+2*w}, v{vML+2*w}")
    e("s_nop 0")
    e(f"v_mul_f32 v{vT0}, v{vML}, v{vML+1}")
    for w in range(1, 4): e(f"v_fmac_f32 v{vT0}, v{vML+2*w}, v{vML+2*w+1}")
    e(f"v_rcp_f32 v{vT0}, v{vT0}")
    e("s_nop 0")
    for w in range(4): e(f"v_mul_f32 v{vBeta+w}, v{vML+2*w}, v{vT0}")
    vslots("vl", None, None, True)
    stamp(5)
    e("s_nop 7")
    e("s_mov_b32 exec_hi, 0")
    e(f"ds_write_b128 v{vLdsA}, {vr(vAcc)} offset:{L_O}")
    e("s_mov_b32 exec_hi, -1")
    e("s_waitcnt lgkmcnt(0)")
    e("s_barrier")
    tstamp(1)
    for w in range(4): e(f"ds_read_b32 v{vX+w}, v{vTlO} offset:{L_O + 512*w}")
    e("s_waitcnt lgkmcnt(2)" if stamps != 2 else "s_waitcnt lgkmcnt(0)")
    e(f"v_mul_f32 v{vX}, v{vX}, v{vBeta}")
    e(f"v_fmac_f32 v{vX}, v{vX+1}, v{vBeta+1}")
    e("s_waitcnt lgkmcnt(0)")
    e(f"v_fmac_f32 v{vX}, v{vX+2}, v{vBeta+2}")
    e(f"v_fmac_f32 v{vX}, v{vX+3}, v{vBeta+3}")
    e(f"v_cvt_pk_bf16_f32 v{vP}, v{vX}, v{vX}")
    tstamp(2)
    e("s_nop 1")
    ssel(vP, 0)
    e("s_nop 1")
    for pr in range(4):
        for T in range(5):
            if T == 2 and pr < 3: ssel(vP, pr+1)
            e(f"v_smfmac_f32_16x16x64_bf16 {ar(aOut+4*T)}, {vr(vA+4*(pr%2))}, {ar(woreg(2*pr, T), 8)}, v{vIdx}")
    tstamp(3)
    e("s_mov_b32 exec_hi, 0")
    e("s_nop 3")
    for T in range(5):
        e(f"ds_write_b128 v{vTlW}, {ar(aOut+4*T)} offset:{L_OUT + 512*T}")
    e("s_mov_b32 exec_hi, -1")
    e("s_waitcnt lgkmcnt(0)")
    e("s_barrier")
    tstamp(4)
    e(f"s_cmp_eq_u32 s{sW}, 3")
    e("s_cbranch_scc1 L_consume")
    for w in range(4):
        e(f"ds_read_b128 {vr(vX+4*w)}, v{vTlR} offset:{L_OUT + 2560*w}")
    e("s_waitcnt lgkmcnt(2)" if stamps != 2 else "s_waitcnt lgkmcnt(0)")
    for j in range(4): e(f"v_add_f32 v{vX+j}, v{vX+j}, v{vX+4+j}")
    e("s_waitcnt lgkmcnt(0)")
    for j in range(4): e(f"v_add_f32 v{vX+8+j}, v{vX+8+j}, v{vX+12+j}")
    for j in range(4): e(f"v_add_f32 v{vX+j}, v{vX+j}, v{vX+8+j}")
    for j in range(4): e(f"v_and_or_b32 v{vX+j}, v{vX+j}, s{sT3}, v{vTag+j}")
    e(f"buffer_store_dwordx4 {vr(vX)}, v{vTlM}, {srd(sIn)}, s{sT2} offen {polSt}")
    if hold:
        e(f"s_cmp_lg_u32 s{sW}, {hold.get('w', 0)}")
        e("s_cbranch_scc1 L_nodone")
        if hold.get("ack"): e("s_waitcnt vmcnt(0)")
        e(f"v_mov_b32 v{vBdT}, 100")
        e("s_mov_b64 exec, 1")
        e(f"buffer_store_dword v{vBdT}, off, {srd(sBd)}, s{sSlot}")
        e("s_mov_b64 exec, -1")
        e("L_nodone:")
    stamp(6)
    e("s_branch L_fin")
    def bump():
        e(f"s_cmp_lg_u32 s{sH}, 0")
        e("s_cbranch_scc1 L_nobump")
        e("s_mov_b64 exec, 1")
        e(f"buffer_store_dword v{vFlag}, off, {srd(sN)}, 0 {polB}")
        e("L_nobump:")
    e("L_consume:")
    e(f"s_cmp_eq_u32 s{sCons}, 0")
    e("s_cbranch_scc1 L_fin")
    e(f"s_lshl_b32 s{sT}, s{sH}, 12")
    e(f"s_mov_b32 s{sSpin}, 0")
    e(f"v_mov_b32 v{vT2}, 0x0c0c0400")
    e(f"v_mov_b32 v{vT3}, 0x04000c0c")
    e(f"s_mul_i32 s{sIt}, s{sB}, 2560")
    e(f"s_mul_i32 s{sT2}, s{sBr}, 1280")
    e(f"s_add_u32 s{sIt}, s{sIt}, s{sT2}")
    e(f"s_lshl_b32 s{sT2}, s{sH}, 6")
    e(f"s_add_u32 s{sIt}, s{sIt}, s{sT2}")
    e(f"v_lshlrev_b32 v{vS}, 3, v{vLane}")
    if hold:
        e(f"s_mov_b32 s{sT4}, 0")
        e("L_hold:")
        e(f"buffer_load_dword v{vBd}, v{vBdA}, {srd(sBd)}, 0 offen sc1")
        e(f"s_add_u32 s{sT4}, s{sT4}, 1")
        e("s_waitcnt vmcnt(0)")
        e(f"v_cmp_eq_u32 vcc, 100, v{vBd}")
        e(f"s_cmp_ge_u32 s{sT4}, {hold.get('max', 12)}")
        e("s_cbranch_scc1 L_held")
        e(f"s_bcnt1_i32_b64 s{sT5}, vcc")
        e(f"s_cmp_lt_u32 s{sT5}, {hold.get('n', 32)}")
        e("s_cbranch_scc1 L_hold")
        e("L_held:")
    if diagdelay:
        assert stamps
        e("L_dd:")
        e("s_memrealtime s[74:75]")
        e("s_waitcnt lgkmcnt(0)")
        e(f"s_sub_u32 s74, s74, s{sSt}")
        e(f"s_cmp_lt_u32 s74, {diagdelay}")
        e("s_cbranch_scc1 L_dd")
    if npoll == 1:
        e("L_poll:")
        for i in range(4):
            e(f"buffer_load_dwordx4 {vr(vX+4*i)}, v{vOffV}, {srd(sIn)}, s{sT} offen offset:{1024*i} {polLd}")
        e(f"s_add_u32 s{sSpin}, s{sSpin}, 1")
        for i in range(4):
            e(f"s_waitcnt vmcnt({3-i})")
            e(f"v_perm_b32 v{vT0}, v{vX+4*i+1}, v{vX+4*i}, v{vT2}")
            e(f"v_perm_b32 v{vT1}, v{vX+4*i+3}, v{vX+4*i+2}, v{vT3}")
            for j in range(4): e(f"v_and_b32 v{vX+4*i+j}, s{sT3}, v{vX+4*i+j}")
            e(f"v_or_b32 v{vT0}, v{vT0}, v{vT1}")
            e(f"v_xor_b32 v{vX+16+i}, v{vT0}, v{vFlag}")
            if i == 1:
                for j in range(4): e(f"v_add_f32 v{vX+j}, v{vX+j}, v{vX+4+j}")
        e(f"v_or3_b32 v{vT0}, v{vX+16}, v{vX+17}, v{vX+18}")
        e(f"v_or_b32 v{vT0}, v{vT0}, v{vX+19}")
        e(f"v_cmp_ne_u32 vcc, 0, v{vT0}")
        e(f"s_cmp_ge_u32 s{sSpin}, 0x200000")
        e("s_cbranch_scc1 L_polled")
        e("s_cbranch_vccnz L_poll")
        e("L_polled:")
        for j in range(4): e(f"v_add_f32 v{vX+8+j}, v{vX+8+j}, v{vX+12+j}")
        for j in range(4): e(f"v_add_f32 v{vX+j}, v{vX+j}, v{vX+8+j}")
    else:
        def pr(k): return vRing + 20 * k
        def issue(k):
            for i in range(4):
                e(f"buffer_load_dwordx4 {vr(pr(k)+4*i)}, v{vOffV}, {srd(sIn)}, s{sT} offen offset:{1024*i} {polLd}")
        for k in range(npoll): issue(k)
        e("L_poll:")
        e(f"s_add_u32 s{sSpin}, s{sSpin}, 1")
        for k in range(npoll):
            r = pr(k)
            for i in range(4):
                e(f"s_waitcnt vmcnt({4*(npoll-1) + 3 - i})")
                e(f"v_perm_b32 v{vT0}, v{r+4*i+1}, v{r+4*i}, v{vT2}")
                e(f"v_perm_b32 v{vT1}, v{r+4*i+3}, v{r+4*i+2}, v{vT3}")
                for j in range(4): e(f"v_and_b32 v{vX+4*i+j}, s{sT3}, v{r+4*i+j}")
                e(f"v_or_b32 v{vT0}, v{vT0}, v{vT1}")
                e(f"v_xor_b32 v{vX+16+i}, v{vT0}, v{vFlag}")
                if i == 1:
                    for j in range(4): e(f"v_add_f32 v{vX+j}, v{vX+j}, v{vX+4+j}")
            e(f"v_or3_b32 v{vT0}, v{vX+16}, v{vX+17}, v{vX+18}")
            e(f"v_or_b32 v{vT0}, v{vT0}, v{vX+19}")
            e(f"v_cmp_ne_u32 vcc, 0, v{vT0}")
            e("s_cbranch_vccz L_polled")
            issue(k)
        e(f"s_cmp_lt_u32 s{sSpin}, 0x100000")
        e("s_cbranch_scc1 L_poll")
        e("L_polled:")
        for j in range(4): e(f"v_add_f32 v{vX+8+j}, v{vX+8+j}, v{vX+12+j}")
        for j in range(4): e(f"v_add_f32 v{vX+j}, v{vX+j}, v{vX+8+j}")
    if early:
        bump()
        e("s_mov_b64 exec, -1")
    e("s_nop 1")
    for j in range(4): e(f"v_add_f32_dpp v{vX+j}, v{vX+j}, v{vX+j} row_ror:8 row_mask:0xf bank_mask:0xf")
    for j in range(4): e(f"v_mov_b32 v{vX+4+j}, v{vX+j}")
    e("s_nop 1")
    for j in range(4): e(f"v_permlane16_swap_b32 v{vX+j}, v{vX+4+j}")
    for j in range(4): e(f"v_add_f32 v{vX+j}, v{vX+j}, v{vX+4+j}")
    for j in range(4): e(f"v_mov_b32 v{vX+4+j}, v{vX+j}")
    e("s_nop 1")
    for j in range(4): e(f"v_permlane32_swap_b32 v{vX+j}, v{vX+4+j}")
    for j in range(4): e(f"v_add_f32 v{vX+j}, v{vX+j}, v{vX+4+j}")
    e(f"v_cvt_pk_bf16_f32 v{vX}, v{vX}, v{vX+1}")
    e(f"v_cvt_pk_bf16_f32 v{vX+1}, v{vX+2}, v{vX+3}")
    e("s_mov_b64 exec, 0xff")
    e(f"buffer_store_dwordx2 v[{vX}:{vX+1}], v{vS}, {srd(sOut)}, s{sIt} offen {polOut}")
    if not early: bump()
    e("s_mov_b64 exec, -1")
    stamp(6)
    e("L_fin:")
    if stamps == 3:
        e("s_waitcnt vmcnt(0) lgkmcnt(0)")
        e(f"s_memrealtime s[{sSt+14}:{sSt+15}]")
        e(f"s_mov_b32 s{sIn}, s26")
        e(f"s_mov_b32 s{sIn+1}, s27")
        e(f"s_mov_b32 s{sIn+2}, 256")
        e("s_waitcnt lgkmcnt(0)")
        e("s_mov_b64 exec, 1")
        for w, (i, neg) in enumerate([(0, 1), (0, 0), (1, 0), (3, 1), (3, 0), (4, 0), (5, 1), (5, 0), (7, 0)]):
            if neg: e(f"s_not_b32 s{sT}, s{sSt+2*i}")
            else: e(f"s_mov_b32 s{sT}, s{sSt+2*i}")
            e(f"v_mov_b32 v{vX+w}, s{sT}")
            e(f"buffer_atomic_umax v{vX+w}, off, {srd(sIn)}, 0 offset:{4*w} sc1")
    elif stamps:
        e("s_waitcnt vmcnt(0) lgkmcnt(0)")
        e(f"s_memrealtime s[{sSt+14}:{sSt+15}]")
        e(f"s_getreg_b32 s{sT3}, hwreg(HW_REG_XCC_ID)")
        e(f"s_add_u32 s{sIn}, s28, 0x100000")
        e(f"s_addc_u32 s{sIn+1}, s29, 0")
        e(f"s_mov_b32 s{sIn+2}, 0x20000")
        e(f"s_lshl_b32 s{sT}, s2, 2")
        e(f"s_add_u32 s{sT}, s{sT}, s{sW}")
        e(f"s_lshl_b32 s{sT}, s{sT}, 7")
        e("s_waitcnt lgkmcnt(0)")
        e(f"v_mov_b32 v{vT0}, 0")
        e("s_mov_b64 exec, 1")
        for i in range(8):
            e(f"v_mov_b32 v{vX+2*i}, s{sSt+2*i}")
            e(f"v_mov_b32 v{vX+2*i+1}, s{sSt+2*i+1}")
        e(f"s_getreg_b32 s{sT2}, hwreg(HW_REG_HW_ID)")
        e(f"v_mov_b32 v{vX+16}, s{sT3}")
        e(f"v_mov_b32 v{vX+17}, s{sT2}")
        for i in range(4):
            e(f"buffer_store_dwordx4 {vr(vX+4*i)}, v{vT0}, {srd(sIn)}, s{sT} offen offset:{16*i}")
        e(f"buffer_store_dwordx2 v[{vX+16}:{vX+17}], v{vT0}, {srd(sIn)}, s{sT} offen offset:64")
    e("L_end:")
    e("s_endpgm")
    e('.section .rodata,"a"')
    e(".p2align 6")
    e(f".amdhsa_kernel {KNAME}")
    e(f"  .amdhsa_next_free_vgpr {ACC_OFF + NA}")
    e("  .amdhsa_next_free_sgpr 102")
    e(f"  .amdhsa_accum_offset {ACC_OFF}")
    e("  .amdhsa_group_segment_fixed_size 0")
    e("  .amdhsa_kernarg_size 104")
    e("  .amdhsa_user_sgpr_count 2")
    e("  .amdhsa_user_sgpr_kernarg_segment_ptr 1")
    e("  .amdhsa_system_sgpr_workgroup_id_x 1")
    e("  .amdhsa_float_denorm_mode_32 3")
    e(".end_amdhsa_kernel")
    return "\n".join(o) + "\n"

if __name__ == "__main__":
    cfg = eval("dict(" + (sys.argv[2] if len(sys.argv) > 2 else "") + ")")
    open(sys.argv[1], "w").write(gen(**cfg))
```

```python
import sys, math, struct
KNAME = "concat_heads__gqa_block_cached__gqa_block_cached__decode_kernel"

HEADER = """; Kernarg layout for this problem (104 bytes, ptrs only, base s[0:1]):
;   offset  96: d_ws      workspace: per-head partial outputs handed to the reducing workgroups
;
; One workgroup (4 waves) per (branch, batch, head).  The workgroup walks its K slab, then its V slab,
; The 32 heads of a (branch, batch) are summed through d_ws; every handed-over word carries this
; workgroups of the same die (progress board in d_debug), and a reducing wave first looks at its
"""

def f2u(x):
    return struct.unpack("<I", struct.pack("<f", x))[0]

def brev5(s):
    return int(f"{s:05b}"[::-1], 2)

class VM:
    def __init__(self, e): self.e = e; self.ops = []; self.seen = set()
    def issue(self, tag):
        self.ops.append(tag); self.seen.add(tag); assert len(self.ops) <= 63, len(self.ops)
    def wait(self, tag):
        assert tag in self.seen
        if tag not in self.ops: return
        i = max(k for k, t in enumerate(self.ops) if t == tag)
        self.e(f"s_waitcnt vmcnt({len(self.ops) - 1 - i})")
        self.ops = self.ops[i+1:]
    def room(self): return 63 - len(self.ops)

BAL = dict(c0=37, g=1, sh=1, bias=21, d=3, cmin=24, cmax=48, up=16, dn=8, twice=0, gv=None, every=1, rot=0, pubs=4, ph=0, polL="sc1", polS="")

def gen(pol="nt", polW="nt", polWo="nt", F=2, W=5.0625, Wboost=16, ilv=(2, 1), kfirst=17, stamps=0,
        polSt="sc0 sc1", polLd="sc0 sc1", polOut="", bal=BAL, fast=0, hmap=0, npoll=1, diagdelay=0, hold=dict(n=28, ack=1, max=12), polN="sc1", polB="", early=0, fin2=1, pk=1):
    o = []
    def e(s): o.append(s)
    D, NIT = 32, 8
    bstart = 0
    if isinstance(Wboost, tuple): bstart, Wboost = Wboost
    assert Wboost is None or Wboost <= 30
    if bal is not None: bal = {**BAL, **bal}
    L_Q = 0
    L_O = 2048
    L_ML = 4096
    L_CTL = 4160
    L_OUT = 4224
    L_S = 4224 + 10240
    LDS = L_S + 16384 + 512
    sO = 14
    sC, sC0 = 22, 23
    sW, sH, sB, sBr, sG, sPos = 30, 31, 32, 33, 34, 35
    sK, sWq, sWo, sX, sIn, sN, sOut = 36, 40, 44, 48, 52, 56, 60
    sBd = sX
    sV = 64
    sIt, sOff, sT, sT2, sT3, sCons, sSpin, sOff0 = 66, 67, 68, 69, 70, 71, 72, 73
    sM = 74
    sSt = 82
    sT4, sT5, sSlot = 98, 99, 100
    def srd(b): return f"s[{b}:{b+3}]"
    vLane, vOffV, vOffW, vC, vMc, vT0, vT1, vT2, vT3 = 1, 2, 3, 4, 5, 6, 7, 8, 9
    vM0, vM1, vIdx, vLdsR = 10, 11, 12, 13
    vSelE, vSelO = 14, 18
    vS, vMax, vL, vFlag, vLdsS, vLdsA = 22, 23, 24, 25, 26, 27
    vBd, vBdA, vBdT, vCtl = 28, 29, 30, 31
    vCtlA = vSelE
    vA = 32
    vAcc = 40
    vQ = 44
    vD = 60
    vP, vPn, vSn = 44, 46, 48
    vTag = 52
    vBeta = 56
    vX = 80
    vML = 112
    vOffC = 120
    vRing = 124
    vTlO, vTlW, vTlR, vTlM = 252, 253, 254, 255
    ACC_OFF = 256
    aOut = 160
    NA = 180
    def vr(b, n=4): return f"v[{b}:{b+n-1}]"
    def ar(b, n=4): return f"a[{b}:{b+n-1}]"
    def stamp(i):
        if stamps in (1, 3) or (stamps == 2 and i not in (1, 2, 3, 4)): e(f"s_memrealtime s[{sSt+2*i}:{sSt+2*i+1}]")
    def tstamp(i):
        if stamps == 2: e(f"s_memrealtime s[{sSt+2*i}:{sSt+2*i+1}]")
    wbase, step = F * 1024, D * 4096
    def off(s): return (s // F) * F * 4096 + (s % F) * 1024
    his = sorted(set(off(s) // 4096 * 4096 for s in range(D)))
    hs = his[1] - his[0]
    ns = min(len(his), 8); nv = len(his) // ns
    def soffs(base=sO):
        e(f"s_mov_b32 s{base}, s{sOff}")
        for i in range(1, ns): e(f"s_add_u32 s{base+i}, s{sOff}, {i*nv*hs}")
    def ringload(s, base=sO):
        k = his.index(off(s) // 4096 * 4096)
        e(f"buffer_load_dwordx4 {vr(vRing+4*s)}, v{vOffC+k%nv}, {srd(sK)}, s{base+k//nv} offen offset:{off(s)%4096} {pol}")
    def woreg(rr, T): return ((rr >> 1) * 5 + T) * 8 + (rr & 1) * 4
    def xsel(r, dst):
        sel = vSelE if r % 2 == 0 else vSelO
        for i in range(4):
            e(f"v_perm_b32 v{dst+i}, v{vX+r//2}, v{vX+r//2}, v{sel+i}")
    def ssel(src, j):
        dst = vA + 4 * (j % 2)
        for i in range(4):
            e(f"v_and_b32_dpp v{dst+i}, v{src}, v{(vM0, vM1)[i&1]} row_newbcast:{2*j+(i>>1)} row_mask:0xf bank_mask:0xf")
    def add4(d, a, b):
        if pk:
            for j in (0, 2): e(f"v_pk_add_f32 v[{d+j}:{d+j+1}], v[{a+j}:{a+j+1}], v[{b+j}:{b+j+1}]")
        else:
            for j in range(4): e(f"v_add_f32 v{d+j}, v{a+j}, v{b+j}")
    def wave_reduce(op, v, t):
        for n in (8, 4, 2, 1):
            e(f"{op}_dpp v{v}, v{v}, v{v} row_ror:{n} row_mask:0xf bank_mask:0xf")
            e("s_nop 1" if n != 1 else "s_nop 0")
        e(f"v_mov_b32 v{t}, v{v}")
        e("s_nop 1")
        e(f"v_permlane16_swap_b32 v{v}, v{t}")
        e("s_nop 0")
        e(f"{op} v{v}, v{v}, v{t}")
        e(f"v_mov_b32 v{t}, v{v}")
        e("s_nop 1")
        e(f"v_permlane32_swap_b32 v{v}, v{t}")
        e("s_nop 0")
        e(f"{op} v{v}, v{v}, v{t}")

    e(HEADER.rstrip("\n"))
    e(f"; @launch grid=(256,1,1) block=(256,1,1) lds={LDS}")
    e('.amdgcn_target "amdgcn-amd-amdhsa--gfx950"')
    e(".text")
    e(f".globl {KNAME}")
    e(".p2align 8")
    e(f".type {KNAME},@function")
    e(f"{KNAME}:")
    stamp(0)
    e("s_cmp_ge_u32 s2, 256")
    e("s_cbranch_scc1 L_end")
    e("s_load_dwordx16 s[4:19], s[0:1], 0")
    e("s_load_dwordx8 s[20:27], s[0:1], 64")
    e("s_load_dwordx2 s[28:29], s[0:1], 96")
    e(f"v_lshrrev_b32 v{vT0}, 6, v0")
    e(f"v_and_b32 v{vLane}, 63, v0")
    e(f"v_readfirstlane_b32 s{sW}, v{vT0}")
    e(f"s_and_b32 s{sH}, s2, 7")
    e(f"s_bfe_u32 s{sT}, s2, 0x20005")
    if hmap == 0: e(f"s_lshl_b32 s{sT}, s{sT}, 3")
    elif hmap == 2: e(f"s_lshl_b32 s{sH}, s{sH}, 2")
    elif hmap in (4, 5, 6):
        if hmap == 4:
            e(f"s_and_b32 s{sT3}, s{sH}, 1"); e(f"s_lshl_b32 s{sT3}, s{sT3}, 1"); e(f"s_xor_b32 s{sH}, s{sH}, s{sT3}")
        elif hmap == 5:
            e(f"s_and_b32 s{sT3}, s{sH}, 4"); e(f"s_lshr_b32 s{sT3}, s{sT3}, 1"); e(f"s_xor_b32 s{sH}, s{sH}, s{sT3}")
        else:
            e(f"s_lshr_b32 s{sT3}, s2, 7"); e(f"s_lshl_b32 s{sT3}, s{sT3}, 1"); e(f"s_xor_b32 s{sH}, s{sH}, s{sT3}")
        e(f"s_lshl_b32 s{sT}, s{sT}, 3")
    else:
        e(f"s_add_u32 s{sH}, s{sH}, s{sT}")
        e(f"s_and_b32 s{sH}, s{sH}, 7")
        e(f"s_lshl_b32 s{sT}, s{sT}, 3")
    e(f"s_add_u32 s{sH}, s{sH}, s{sT}")
    e(f"s_lshr_b32 s{sBr}, s2, 7")
    e(f"s_bfe_u32 s{sB}, s2, 0x20003")
    e(f"s_lshl_b32 s{sG}, s{sBr}, 2")
    e(f"s_add_u32 s{sG}, s{sG}, s{sB}")
    e(f"v_lshrrev_b32 v{vT0}, 4, v{vLane}")
    e(f"v_and_b32 v{vT1}, 15, v{vLane}")
    e(f"v_mul_u32_u24 v{vT2}, 80, v{vT0}")
    e(f"v_lshlrev_b32 v{vT3}, 4, v{vT1}")
    e(f"v_mul_u32_u24 v{vOffW}, {40*8192}, v{vT0}")
    e(f"v_add_u32 v{vOffW}, v{vOffW}, v{vT3}")
    e(f"v_lshlrev_b32 v{vOffV}, 4, v{vLane}")
    e(f"v_lshrrev_b32 v{vOffC}, 2, v{vT1}")
    e(f"v_lshlrev_b32 v{vOffC}, 8, v{vOffC}")
    e(f"v_lshl_add_u32 v{vOffC}, v{vT0}, 6, v{vOffC}")
    e(f"v_and_b32 v{vS}, 3, v{vLane}")
    e(f"v_lshl_add_u32 v{vOffC}, v{vS}, 4, v{vOffC}")
    for j in range(1, nv): e(f"v_add_u32 v{vOffC+j}, {j*hs}, v{vOffC}")
    e(f"s_lshl_b32 s{sT}, s{sB}, 5")
    e(f"s_add_u32 s{sT}, s{sT}, s{sH}")
    e(f"s_lshl_b32 s{sT}, s{sT}, 20")
    e(f"s_mul_i32 s{sT2}, s{sB}, 1280")
    e(f"s_lshl_b32 s{sT3}, s{sH}, 8")
    e(f"s_mul_i32 s{sOff0}, s{sW}, {wbase}")
    e(f"s_mov_b32 s{sOff}, s{sOff0}")
    e(f"s_mov_b32 s{sX+2}, 1280")
    e(f"s_mov_b32 s{sX+3}, 0x20000")
    e(f"s_sub_u32 s{sWq+2}, {640*8192}, s{sT3}")
    e(f"s_mov_b32 s{sWq+3}, 0x20000")
    e(f"s_mov_b32 s{sK+2}, 0x100000")
    e(f"s_mov_b32 s{sK+3}, 0x20000")
    e(f"s_mul_i32 s{sSpin}, s{sW}, 320")
    e(f"s_mul_i32 s3, s{sW}, {160*8192}")
    if not fast:
        e(f"s_cmp_eq_u32 s{sBr}, 0")
        e("s_waitcnt lgkmcnt(0)")
        e("s_cselect_b64 s[4:5], s[4:5], s[14:15]")
        e("s_cselect_b64 s[10:11], s[10:11], s[20:21]")
        e("s_cselect_b64 s[6:7], s[6:7], s[16:17]")
        e("s_cselect_b64 s[8:9], s[8:9], s[18:19]")
        e("s_cselect_b64 s[12:13], s[12:13], s[22:23]")
        e(f"s_add_u32 s{sX}, s4, s{sT2}")
        e(f"s_addc_u32 s{sX+1}, s5, 0")
        e(f"s_add_u32 s{sWq}, s10, s{sT3}")
        e(f"s_addc_u32 s{sWq+1}, s11, 0")
        vm = VM(e)
        for i in range(5):
            e(f"buffer_load_dwordx4 {vr(vX+4*i)}, v{vT2}, {srd(sX)}, s{sSpin} offen offset:{16*i}"); vm.issue("x")
        e(f"s_add_u32 s{sK}, s6, s{sT}")
        e(f"s_addc_u32 s{sK+1}, s7, 0")
        e(f"s_add_u32 s{sV}, s8, s{sT}")
        e(f"s_addc_u32 s{sV+1}, s9, 0")
        soffs()
        nk = [0]
        def kpre():
            ringload(nk[0]); vm.issue(f"k{nk[0]}"); nk[0] += 1
        a, b = ilv
        r = 0
        while r < 40:
            for _ in range(a):
                if r < 40:
                    e(f"buffer_load_dwordx4 {ar(4*r)}, v{vOffW}, {srd(sWq)}, s3 offen {polW}"); vm.issue(f"wq{r}")
                    if r < 39: e(f"s_add_u32 s3, s3, 8192")
                    r += 1
            for _ in range(b):
                if nk[0] < kfirst: kpre()
        while nk[0] < kfirst: kpre()
    else:
        soffs(sM)
        e(f"s_cmp_eq_u32 s{sBr}, 0")
        e("s_waitcnt lgkmcnt(0)")
        e("s_cselect_b64 s[6:7], s[6:7], s[16:17]")
        e("s_cselect_b64 s[10:11], s[10:11], s[20:21]")
        e("s_cselect_b64 s[4:5], s[4:5], s[14:15]")
        e("s_cselect_b64 s[8:9], s[8:9], s[18:19]")
        e("s_cselect_b64 s[12:13], s[12:13], s[22:23]")
        e(f"s_add_u32 s{sK}, s6, s{sT}")
        e(f"s_addc_u32 s{sK+1}, s7, 0")
        vm = VM(e)
        nk = [0]; kb = [sM]
        def kpre():
            ringload(nk[0], kb[0]); vm.issue(f"k{nk[0]}"); nk[0] += 1
        kpre()
        e(f"s_add_u32 s{sWq}, s10, s{sT3}")
        e(f"s_addc_u32 s{sWq+1}, s11, 0")
        a, b = ilv
        r = 0
        while r < 40:
            for _ in range(a):
                if r < 40:
                    e(f"buffer_load_dwordx4 {ar(4*r)}, v{vOffW}, {srd(sWq)}, s3 offen {polW}"); vm.issue(f"wq{r}")
                    if r < 39: e(f"s_add_u32 s3, s3, 8192")
                    r += 1
            if r == a:
                e(f"s_add_u32 s{sX}, s4, s{sT2}")
                e(f"s_addc_u32 s{sX+1}, s5, 0")
                for i in range(5):
                    e(f"buffer_load_dwordx4 {vr(vX+4*i)}, v{vT2}, {srd(sX)}, s{sSpin} offen offset:{16*i}"); vm.issue("x")
            for _ in range(b):
                if nk[0] < kfirst: kpre()
        while nk[0] < kfirst: kpre()
        e(f"s_add_u32 s{sV}, s8, s{sT}")
        e(f"s_addc_u32 s{sV+1}, s9, 0")
        soffs(); kb[0] = sO
    e(f"s_lshl_b32 s{sT}, s{sG}, 7")
    e(f"s_add_u32 s{sT}, s{sT}, {8*20*4096}")
    e(f"s_add_u32 s{sN}, s28, s{sT}")
    e(f"s_addc_u32 s{sN+1}, s29, 0")
    e(f"s_mov_b32 s{sN+2}, 4")
    e(f"s_mov_b32 s{sN+3}, 0x20000")
    e(f"buffer_load_dword v{vFlag}, off, {srd(sN)}, 0 {polN}"); vm.issue("n")
    stamp(1)
    e(f"s_mul_i32 s{sT}, s{sH}, 163840")
    e(f"s_add_u32 s{sWo}, s12, s{sT}")
    e(f"s_addc_u32 s{sWo+1}, s13, 0")
    e(f"s_mov_b32 s{sWo+2}, 163840")
    e(f"s_mov_b32 s{sWo+3}, 0x20000")
    e(f"s_mul_i32 s{sT}, s{sG}, {20*4096}")
    e(f"s_add_u32 s{sIn}, s28, s{sT}")
    e(f"s_addc_u32 s{sIn+1}, s29, 0")
    e(f"s_mov_b32 s{sIn+2}, {20*4096}")
    e(f"s_mov_b32 s{sIn+3}, 0x20000")
    e(f"s_mov_b32 s{sOut}, s24")
    e(f"s_mov_b32 s{sOut+1}, s25")
    e(f"s_mov_b32 s{sOut+2}, 10240")
    e(f"s_mov_b32 s{sOut+3}, 0x20000")
    e(f"s_cmp_lt_u32 s{sH}, 20")
    e(f"s_cselect_b32 s{sCons}, 1, 0")
    e(f"s_cmp_eq_u32 s{sW}, 3")
    e(f"s_cselect_b32 s{sCons}, s{sCons}, 0")
    e(f"v_mul_u32_u24 v{vOffW}, {8*1280}, v{vT0}")
    e(f"v_add_u32 v{vOffW}, v{vOffW}, v{vT3}")
    e(f"v_and_b32 v{vS}, 1, v{vLane}")
    e(f"v_cmp_eq_u32 vcc, 1, v{vS}")
    e(f"v_mov_b32 v{vT1}, 0x0c0c0100")
    e(f"v_mov_b32 v{vT2}, 0x01000c0c")
    e(f"v_cndmask_b32 v{vMax}, v{vT1}, v{vT2}, vcc")
    e(f"v_mov_b32 v{vT1}, 0x0c0c0302")
    e(f"v_mov_b32 v{vT2}, 0x03020c0c")
    e(f"v_cndmask_b32 v{vL}, v{vT1}, v{vT2}, vcc")
    e(f"v_mov_b32 v{vT1}, 0x0c0c0c0c")
    for i in range(4):
        e(f"s_mov_b32 s{sM+2*i}, {hex(0x00030003 << (2*i))}")
        e(f"s_mov_b32 s{sM+2*i+1}, {hex(0x00030003 << (2*i))}")
    for i in range(4):
        m = f"s[{sM+2*i}:{sM+2*i+1}]"
        e(f"v_cndmask_b32 v{vSelE+i}, v{vT1}, v{vMax}, {m}")
        e(f"v_cndmask_b32 v{vSelO+i}, v{vT1}, v{vL}, {m}")
    e(f"v_mov_b32 v{vT1}, 0xffff")
    e(f"s_mov_b32 s{sM}, 0x000f000f")
    e(f"s_mov_b32 s{sM+1}, 0x000f000f")
    e(f"s_mov_b32 s{sM+2}, 0x00f000f0")
    e(f"s_mov_b32 s{sM+3}, 0x00f000f0")
    e(f"v_cndmask_b32 v{vM0}, 0, v{vT1}, s[{sM}:{sM+1}]")
    e(f"v_cndmask_b32 v{vM1}, 0, v{vT1}, s[{sM+2}:{sM+3}]")
    e(f"v_and_b32 v{vIdx}, 3, v{vLane}")
    e(f"v_xor_b32 v{vT1}, 1, v{vIdx}")
    e(f"v_lshl_or_b32 v{vIdx}, v{vT1}, 2, v{vIdx}")
    e(f"v_mul_u32_u24 v{vIdx}, 0x1111, v{vIdx}")
    for t in range(4):
        e(f"s_mov_b32 s{sM+2*t}, {hex(0x11111111 << t)}")
        e(f"s_mov_b32 s{sM+2*t+1}, {hex(0x11111111 << t)}")
    for i in range(4): e(f"v_mov_b32 v{vAcc+i}, 0")
    for i in range(20): e(f"v_accvgpr_write_b32 a{aOut+i}, 0")
    e(f"v_mov_b32 v{vMax}, 0xff800000")
    e(f"v_mov_b32 v{vL}, 0")
    e(f"v_mov_b32 v{vC}, {hex(f2u(math.log2(math.e)))}")
    e(f"s_lshl_b32 s{sT}, s{sW}, 12")
    e(f"s_add_u32 s{sT}, s{sT}, {L_S}")
    e(f"v_lshl_add_u32 v{vLdsS}, v{vLane}, 2, s{sT}")
    e(f"v_and_b32 v{vT1}, 1, v{vT0}")
    e(f"v_lshlrev_b32 v{vT1}, 1, v{vT1}")
    e(f"v_and_b32 v{vT2}, 1, v{vLane}")
    e(f"v_add_u32 v{vT1}, v{vT1}, v{vT2}")
    e(f"v_lshlrev_b32 v{vLdsR}, 4, v{vT1}")
    e(f"v_and_b32 v{vT1}, 14, v{vLane}")
    e(f"v_add_u32 v{vLdsR}, v{vLdsR}, v{vT1}")
    e(f"v_lshrrev_b32 v{vT1}, 1, v{vT0}")
    e(f"v_add_u32 v{vLdsR}, v{vLdsR}, v{vT1}")
    e(f"v_lshl_add_u32 v{vLdsR}, v{vLdsR}, 2, s{sT}")
    e(f"s_lshl_b32 s{sT}, s{sW}, 9")
    e(f"v_lshlrev_b32 v{vLdsA}, 1, v{vT3}")
    e(f"v_lshl_add_u32 v{vLdsA}, v{vT0}, 4, v{vLdsA}")
    e(f"v_add_u32 v{vLdsA}, s{sT}, v{vLdsA}")
    e(f"v_and_b32 v{vT2}, 1, v{vT0}")
    e(f"v_lshl_add_u32 v{vTlO}, v{vT2}, 4, v{vT1}")
    e(f"v_and_b32 v{vT2}, 1, v{vLane}")
    e(f"v_lshl_add_u32 v{vTlO}, v{vT2}, 3, v{vTlO}")
    e(f"v_and_b32 v{vT2}, 6, v{vLane}")
    e(f"v_add_u32 v{vTlO}, v{vTlO}, v{vT2}")
    e(f"s_lshl_b32 s{sT}, s{sW}, 7")
    e(f"v_lshl_add_u32 v{vTlO}, v{vTlO}, 2, s{sT}")
    e(f"s_lshl_b32 s{sT}, s{sW}, 11")
    e(f"v_add_u32 v{vTlW}, s{sT}, v{vLdsA}")
    e(f"v_lshlrev_b32 v{vTlR}, 4, v0")
    e(f"v_lshrrev_b32 v{vTlM}, 3, v0")
    e(f"v_lshlrev_b32 v{vTlM}, 12, v{vTlM}")
    e(f"v_and_b32 v{vT2}, 7, v0")
    e(f"v_lshl_add_u32 v{vTlM}, v{vT2}, 4, v{vTlM}")
    if bal:
        e(f"s_getreg_b32 s{sT}, hwreg(HW_REG_HW_ID)")
        e(f"s_bfe_u32 s{sSlot}, s{sT}, 0x40008")
        e(f"s_bfe_u32 s{sT}, s{sT}, 0x2000d")
        e(f"s_lshl_b32 s{sT}, s{sT}, 4")
        e(f"s_add_u32 s{sSlot}, s{sSlot}, s{sT}")
        e(f"s_lshl_b32 s{sSlot}, s{sSlot}, 2")
        e(f"v_lshlrev_b32 v{vBdA}, 2, v{vLane}")
        e(f"s_mov_b32 s{sPos}, 0")
        e(f"s_mov_b32 s{sC0}, {bal['c0']}")
        if bal["d"]:
            e(f"s_getreg_b32 s{sT}, hwreg(HW_REG_XCC_ID)")
            e(f"s_and_b32 s{sT}, s{sT}, 1")
            if hmap in (0, 4, 5, 6):
                e(f"s_and_b32 s{sT3}, s{sH}, 3")
                e(f"s_cmp_eq_u32 s{sT3}, 1")
                e(f"s_cselect_b32 s{sT}, 0, s{sT}")
            e(f"s_mul_i32 s{sT}, s{sT}, {bal['d']}")
            e(f"s_sub_u32 s{sC0}, s{sC0}, s{sT}")
        e(f"s_mov_b32 s{sC}, s{sC0}")
    e(f"s_mul_i32 s{sT2}, s{sW}, {32*1280}")
    vm.wait("x")
    if bal:
        e(f"s_mov_b32 s{sBd}, s26")
        e(f"s_mov_b32 s{sBd+1}, s27")
        e(f"s_mov_b32 s{sBd+2}, 256")
        e(f"s_mov_b32 s{sBd+3}, 0x20000")
    xsel(0, vA)
    for r in range(40):
        if r < 39: xsel(r+1, vA + 4*((r+1) % 2))
        else: e("s_nop 1")
        vm.wait(f"wq{r}")
        c = "0" if r == 0 else vr(vD)
        e(f"v_mfma_f32_16x16x32_bf16 {vr(vD)}, {vr(vA+4*(r%2))}, {ar(4*r)}, {c}")
        if nk[0] < D and vm.room() > 0: kpre()
    assert nk[0] == D
    stamp(2)
    e(f"v_lshrrev_b32 v{vT1}, 2, v{vLane}")
    e(f"v_lshlrev_b32 v{vT1}, 5, v{vT1}")
    if bal and bal["rot"]:
        e(f"v_mov_b32 v{vCtl}, s{sC0}")
        e(f"v_mov_b32 v{vCtlA}, {L_CTL}")
        e(f"ds_write_b32 v{vCtlA}, v{vCtl}")
    e("s_nop 5")
    e("s_mov_b32 exec_hi, 0")
    e(f"ds_write_b128 v{vLdsA}, {vr(vD)} offset:{L_Q}")
    e("s_mov_b32 exec_hi, -1")
    e("s_waitcnt lgkmcnt(0)")
    e("s_barrier")
    for w in range(4):
        e(f"ds_read_b128 {vr(vX+8*w)}, v{vT1} offset:{L_Q + 512*w}")
        e(f"ds_read_b128 {vr(vX+8*w+4)}, v{vT1} offset:{L_Q + 512*w + 16}")
    e("s_waitcnt lgkmcnt(4)")
    for j in range(8): e(f"v_add_f32 v{vX+j}, v{vX+j}, v{vX+8+j}")
    e("s_waitcnt lgkmcnt(0)")
    for j in range(8): e(f"v_add_f32 v{vX+16+j}, v{vX+16+j}, v{vX+24+j}")
    for j in range(8): e(f"v_add_f32 v{vX+j}, v{vX+j}, v{vX+16+j}")
    for i in range(4): e(f"v_cvt_pk_bf16_f32 v{vX+8+i}, v{vX+2*i}, v{vX+2*i+1}")
    for t in range(4):
        for i in range(4):
            e(f"v_cndmask_b32 v{vQ+4*t+i}, 0, v{vX+8+i}, s[{sM+2*t}:{sM+2*t+1}]")
    e(f"s_mov_b32 s{sIt}, 0")
    stamp(3)

    def wcnt(Wn, s):
        base = math.floor(Wn + 1e-9); fr = Wn - base
        return base - 1 + int(math.floor((s + 1) * fr + 0.5 + 1e-9) - math.floor(s * fr + 0.5 + 1e-9))
    def slotwait(tag, s, Wn, ctl, extra5):
        x = lambda n: n + (5 if (extra5 and s <= n) else 0)
        if not ctl:
            e(f"s_waitcnt vmcnt({x(wcnt(Wn, s))})"); return
        r = brev5(s)
        if r < bal["up"]:
            e(f"s_waitcnt vmcnt({x(5)})")
            e(f"s_cmp_gt_u32 s{sC}, {32 + r}")
            e(f"s_cbranch_scc1 L_{tag}_w{s}")
            e(f"s_waitcnt vmcnt({x(4)})")
            e(f"L_{tag}_w{s}:")
        elif r >= 32 - bal["dn"]:
            e(f"s_waitcnt vmcnt({x(4)})")
            e(f"s_cmp_gt_u32 s{sC}, {r}")
            e(f"s_cbranch_scc1 L_{tag}_w{s}")
            e(f"s_waitcnt vmcnt({x(3)})")
            e(f"L_{tag}_w{s}:")
        else:
            e(f"s_waitcnt vmcnt({x(4)})")
    def bal_mine(tag, lab):
        if bal["rot"]:
            e(f"s_lshr_b32 s{sT}, s{sPos}, 2")
            if bal["every"] > 1:
                e(f"s_and_b32 s{sT3}, s{sT}, {bal['every'] - 1}")
                e(f"s_cmp_lg_u32 s{sT3}, {bal['ph']}")
                e(f"s_cbranch_scc1 {lab}")
                e(f"s_lshr_b32 s{sT}, s{sT}, {bal['every'].bit_length() - 1}")
            e(f"s_and_b32 s{sT}, s{sT}, 3")
            e(f"s_cmp_lg_u32 s{sT}, s{sW}")
            e(f"s_cbranch_scc1 {lab}")
        elif bal["every"] > 1:
            e(f"s_bfe_u32 s{sT}, s{sPos}, {hex(((bal['every'].bit_length() - 1) << 16) + 2)}")
            e(f"s_cmp_lg_u32 s{sT}, {bal['ph']}")
            e(f"s_cbranch_scc1 {lab}")
    def bal_pre(s, tag="k"):
        if s == 0:
            if bal["rot"]:
                if tag == "k": e("s_waitcnt lgkmcnt(0)")
                e(f"v_readfirstlane_b32 s{sC}, v{vCtl}")
            bal_mine(tag, f"L_{tag}_nord")
            e(f"buffer_load_dword v{vBd}, v{vBdA}, {srd(sBd)}, 0 offen {bal['polL']}")
            e(f"L_{tag}_nord:")
        if s == 16:
            g, sh = (bal["gv"] if (bal["gv"] and tag != "k") else (bal["g"], bal["sh"]))
            bal_mine(tag, f"L_{tag}_noup")
            for n in (8, 4, 2, 1):
                e(f"v_add_u32_dpp v{vBd}, v{vBd}, v{vBd} row_ror:{n} row_mask:0xf bank_mask:0xf")
                e("s_nop 1" if n != 1 else "s_nop 0")
            for l in range(4): e(f"v_readlane_b32 s{[sT, sT3, sT4, sT5][l]}, v{vBd}, {16*l}")
            e(f"s_add_u32 s{sT}, s{sT}, s{sT3}")
            e(f"s_add_u32 s{sT4}, s{sT4}, s{sT5}")
            e(f"s_add_u32 s{sT}, s{sT}, s{sT4}")
            e(f"s_lshl_b32 s{sT3}, s{sPos}, 5")
            e(f"s_sub_i32 s{sT}, s{sT}, s{sT3}")
            e(f"s_add_i32 s{sT}, s{sT}, {bal['bias']}")
            if g != 1: e(f"s_mul_i32 s{sT}, s{sT}, {g}")
            e(f"s_ashr_i32 s{sT}, s{sT}, {sh}")
            e(f"s_add_i32 s{sT}, s{sT}, s{sC0}")
            e(f"s_max_i32 s{sT}, s{sT}, {bal['cmin']}")
            e(f"s_min_i32 s{sC}, s{sT}, {bal['cmax']}")
            if bal["rot"]:
                e(f"v_mov_b32 v{vBdT}, s{sC}")
                e(f"ds_write_b32 v{vCtlA}, v{vBdT}")
            e(f"L_{tag}_noup:")
            e(f"s_add_u32 s{sPos}, s{sPos}, 4")
        if s == 28 and bal["rot"]:
            e(f"ds_read_b32 v{vCtl}, v{vCtlA}")
    def bal_post(tag, s):
        if s % 8 != 7: return
        k = s // 8
        if bal["pubs"] == 2 and k % 2 == 0: return
        e(f"s_cmp_lg_u32 s{sW}, {k}")
        e(f"s_cbranch_scc1 L_{tag}_np{k}")
        e(f"s_add_u32 s{sT}, s{sPos}, {(k + 1) - (4 if s >= 16 else 0)}")
        e(f"v_mov_b32 v{vBdT}, s{sT}")
        e("s_mov_b64 exec, 1")
        e(f"buffer_store_dword v{vBdT}, off, {srd(sBd)}, s{sSlot} {bal['polS']}")
        e("s_mov_b64 exec, -1")
        e(f"L_{tag}_np{k}:")

    e("L_k:")
    e(f"s_add_u32 s{sOff}, s{sOff}, {step}")
    def tree(lo, bit):
        if bit < 0:
            for T in range(5):
                e(f"buffer_load_dwordx4 {ar(woreg(lo, T))}, v{vOffW}, {srd(sWo)}, s{sT2} offen offset:{T*256} {polWo}")
            if lo != 7: e("s_branch L_k_wodone")
            return
        e(f"s_bitcmp1_b32 s{sIt}, {bit}")
        e(f"s_cbranch_scc1 L_k_wo{lo + (1 << bit)}_{bit}")
        tree(lo, bit - 1)
        e(f"L_k_wo{lo + (1 << bit)}_{bit}:")
        tree(lo + (1 << bit), bit - 1)
    tree(0, 2)
    e("L_k_wodone:")
    e(f"s_add_u32 s{sT2}, s{sT2}, 1280")
    e(f"s_cmp_lg_u32 s{sIt}, {NIT-1}")
    e("s_cbranch_scc1 L_k_go")
    e(f"s_mov_b32 s{sK}, s{sV}")
    e(f"s_mov_b32 s{sK+1}, s{sV+1}")
    e(f"s_mov_b32 s{sOff}, s{sOff0}")
    e(f"v_mov_b32 v{vOffC}, v{vOffV}")
    for j in range(1, nv): e(f"v_add_u32 v{vOffC+j}, {j*hs}, v{vOffV}")
    e("L_k_go:")
    soffs()
    e(f"s_add_u32 s{sIt}, s{sIt}, 1")
    for u in range(2):
        for s16 in range(16):
            s = u * 16 + s16
            b, t = s16 // 4, s16 % 4
            if bal: bal_pre(s)
            slotwait("k", s, W, bal, True)
            c = "0" if t == 0 else vr(vD+4*b)
            e(f"v_mfma_f32_16x16x32_bf16 {vr(vD+4*b)}, {vr(vRing+4*s)}, {vr(vQ+4*t)}, {c}")
            ringload(s)
            if bal: bal_post("k", s)
        for r in range(4):
            for k in range(4):
                cc = (r + k) % 4
                ror = (4 * (r - cc)) % 16
                ctl = "quad_perm:[0,1,2,3]" if ror == 0 else f"row_ror:{ror}"
                if k == 0:
                    e(f"v_mov_b32_dpp v{vS}, v{vD+4*r+cc} {ctl} row_mask:0xf bank_mask:{hex(1<<r)}")
                else:
                    e(f"v_add_f32_dpp v{vS}, v{vD+4*r+cc}, v{vS} {ctl} row_mask:0xf bank_mask:{hex(1<<r)}")
        e(f"v_cvt_pk_bf16_f32 v{vS}, v{vS}, v{vS}")
        e(f"v_lshlrev_b32 v{vS}, 16, v{vS}")
        e(f"v_mul_f32 v{vS}, {hex(f2u(128 ** -0.5))}, v{vS}")
        e(f"v_cvt_pk_bf16_f32 v{vS}, v{vS}, v{vS}")
        e(f"v_lshlrev_b32 v{vS}, 16, v{vS}")
        e(f"v_max_f32 v{vMax}, v{vMax}, v{vS}")
        e(f"ds_write_b32 v{vLdsS}, v{vS} offset:{256*u}")
    e(f"v_add_u32 v{vLdsS}, 512, v{vLdsS}")
    e(f"s_cmp_lt_u32 s{sIt}, {NIT}")
    e("s_cbranch_scc1 L_k")

    def probs():
        for u in range(2): e(f"v_fma_f32 v{vT0+u}, v{vSn+u}, v{vC}, -v{vMc}")
        e(f"v_add_u32 v{vLdsR}, 512, v{vLdsR}")
        for u in range(2): e(f"v_exp_f32 v{vT0+u}, v{vT0+u}")
        for u in range(2): e(f"ds_read_b32 v{vSn+u}, v{vLdsR} offset:{256*u}")
        for u in range(2): e(f"v_cvt_pk_bf16_f32 v{vPn+u}, v{vT0+u}, v{vT0+u}")
        for u in range(2): e(f"v_add_f32 v{vL}, v{vL}, v{vT0+u}")
    for u in range(2): e(f"ds_read_b32 v{vSn+u}, v{vLdsR} offset:{256*u}")
    wave_reduce("v_max_f32", vMax, vT0)
    e(f"v_mul_f32 v{vMc}, v{vMax}, v{vC}")
    e(f"v_add_u32 v{vFlag}, 0x01010101, v{vFlag}")
    for j in range(4): e(f"v_bfe_u32 v{vTag+j}, v{vFlag}, {8*j}, 8")
    e(f"s_lshl_b32 s{sT2}, s{sH}, 7")
    e("s_waitcnt lgkmcnt(0)")
    probs()
    e(f"s_mov_b32 s{sIt}, 0")
    stamp(4)

    def vslots(tag, Wn, ctl, last):
        ssel(vP, 0)
        for j in range(16):
            if j < 15: ssel(vP + (j+1) // 8, (j+1) % 8)
            else: e("s_nop 0")
            mm = f"v_smfmac_f32_16x16x64_bf16 {vr(vAcc)}, {vr(vA+4*(j%2))}, {vr(vRing+8*j, 8)}, v{vIdx}"
            if last:
                e(f"s_waitcnt vmcnt({30 - 2*j})"); e(mm)
                if j < 14: e("s_nop 1")
                continue
            for s in (2*j, 2*j+1):
                if tag == "vb" and s < bstart:
                    if bal: bal_pre(s, tag)
                    slotwait(tag, s, W, bal, False)
                else:
                    if ctl: bal_pre(s, tag)
                    slotwait(tag, s, Wn, ctl, False)
                if s == 2*j: e(mm)
                ringload(s)
                if ctl or (tag == "vb" and bal and s < bstart and s < 16): bal_post(tag, s)
    def vtrip(tag, Wn, ctl):
        e(f"L_{tag}:")
        e(f"s_add_u32 s{sOff}, s{sOff}, {step}")
        e("s_waitcnt lgkmcnt(0)")
        for u in range(2): e(f"v_mov_b32 v{vP+u}, v{vPn+u}")
        probs()
        soffs()
        e(f"s_add_u32 s{sIt}, s{sIt}, 1")
        e(f"s_cmp_lg_u32 s{sIt}, {NIT-1}")
        e(f"s_cbranch_scc1 L_{tag}_go")
        wave_reduce("v_add_f32", vL, vT0)
        e(f"s_lshl_b32 s{sT}, s{sW}, 3")
        e(f"v_mov_b32 v{vT2}, v{vMc}")
        e(f"v_mov_b32 v{vT3}, v{vL}")
        e(f"v_mov_b32 v{vT1}, s{sT}")
        e(f"ds_write_b64 v{vT1}, v[{vT2}:{vT3}] offset:{L_ML}")
        e(f"L_{tag}_go:")
        vslots(tag, Wn, ctl, False)
    boost = Wboost is not None
    vtrip("va", W, bal)
    e(f"s_cmp_lt_u32 s{sIt}, {NIT - 1 - (1 if boost else 0)}")
    e("s_cbranch_scc1 L_va")
    if boost: vtrip("vb", Wboost, None)
    e(f"v_mov_b32 v{vT0}, 0")
    for u in range(2): e(f"v_mov_b32 v{vP+u}, v{vPn+u}")
    e("s_waitcnt lgkmcnt(0)")
    e("s_barrier")
    e(f"ds_read_b128 {vr(vML)}, v{vT0} offset:{L_ML}")
    e(f"ds_read_b128 {vr(vML+4)}, v{vT0} offset:{L_ML+16}")
    e(f"s_mov_b32 s{sT3}, 0xffffff00")
    e("s_waitcnt lgkmcnt(0)")
    e(f"v_max3_f32 v{vT0}, v{vML}, v{vML+2}, v{vML+4}")
    e(f"v_max_f32 v{vT0}, v{vT0}, v{vML+6}")
    for w in range(4): e(f"v_sub_f32 v{vML+2*w}, v{vML+2*w}, v{vT0}")
    for w in range(4): e(f"v_exp_f32 v{vML+2*w}, v{vML+2*w}")
    e("s_nop 0")
    e(f"v_mul_f32 v{vT0}, v{vML}, v{vML+1}")
    for w in range(1, 4): e(f"v_fmac_f32 v{vT0}, v{vML+2*w}, v{vML+2*w+1}")
    e(f"v_rcp_f32 v{vT0}, v{vT0}")
    e("s_nop 0")
    for w in range(4): e(f"v_mul_f32 v{vBeta+w}, v{vML+2*w}, v{vT0}")
    vslots("vl", None, None, True)
    stamp(5)
    e("s_nop 7")
    e("s_mov_b32 exec_hi, 0")
    e(f"ds_write_b128 v{vLdsA}, {vr(vAcc)} offset:{L_O}")
    e("s_mov_b32 exec_hi, -1")
    e("s_waitcnt lgkmcnt(0)")
    e("s_barrier")
    tstamp(1)
    for w in range(4): e(f"ds_read_b32 v{vX+w}, v{vTlO} offset:{L_O + 512*w}")
    e("s_waitcnt lgkmcnt(2)" if stamps != 2 else "s_waitcnt lgkmcnt(0)")
    e(f"v_mul_f32 v{vX}, v{vX}, v{vBeta}")
    e(f"v_fmac_f32 v{vX}, v{vX+1}, v{vBeta+1}")
    e("s_waitcnt lgkmcnt(0)")
    e(f"v_fmac_f32 v{vX}, v{vX+2}, v{vBeta+2}")
    e(f"v_fmac_f32 v{vX}, v{vX+3}, v{vBeta+3}")
    e(f"v_cvt_pk_bf16_f32 v{vP}, v{vX}, v{vX}")
    tstamp(2)
    e("s_nop 1")
    ssel(vP, 0)
    e("s_nop 1")
    for pr in range(4):
        for T in range(5):
            if T == 2 and pr < 3: ssel(vP, pr+1)
            e(f"v_smfmac_f32_16x16x64_bf16 {ar(aOut+4*T)}, {vr(vA+4*(pr%2))}, {ar(woreg(2*pr, T), 8)}, v{vIdx}")
    tstamp(3)
    e("s_mov_b32 exec_hi, 0")
    e("s_nop 3")
    for T in range(5):
        e(f"ds_write_b128 v{vTlW}, {ar(aOut+4*T)} offset:{L_OUT + 512*T}")
    e("s_mov_b32 exec_hi, -1")
    e("s_waitcnt lgkmcnt(0)")
    e("s_barrier")
    tstamp(4)
    e(f"s_cmp_eq_u32 s{sW}, 3")
    e("s_cbranch_scc1 L_consume")
    for w in range(4):
        e(f"ds_read_b128 {vr(vX+4*w)}, v{vTlR} offset:{L_OUT + 2560*w}")
    e("s_waitcnt lgkmcnt(2)" if stamps != 2 else "s_waitcnt lgkmcnt(0)")
    add4(vX, vX, vX+4)
    e("s_waitcnt lgkmcnt(0)")
    add4(vX+8, vX+8, vX+12)
    add4(vX, vX, vX+8)
    for j in range(4): e(f"v_and_or_b32 v{vX+j}, v{vX+j}, s{sT3}, v{vTag+j}")
    e(f"buffer_store_dwordx4 {vr(vX)}, v{vTlM}, {srd(sIn)}, s{sT2} offen {polSt}")
    if hold:
        e(f"s_cmp_lg_u32 s{sW}, {hold.get('w', 0)}")
        e("s_cbranch_scc1 L_nodone")
        if hold.get("ack"): e("s_waitcnt vmcnt(0)")
        e(f"v_mov_b32 v{vBdT}, 100")
        e("s_mov_b64 exec, 1")
        e(f"buffer_store_dword v{vBdT}, off, {srd(sBd)}, s{sSlot}")
        e("s_mov_b64 exec, -1")
        e("L_nodone:")
    stamp(6)
    e("s_branch L_fin")
    def bump():
        e(f"s_cmp_lg_u32 s{sH}, 0")
        e("s_cbranch_scc1 L_nobump")
        e("s_mov_b64 exec, 1")
        e(f"buffer_store_dword v{vFlag}, off, {srd(sN)}, 0 {polB}")
        e("L_nobump:")
    e("L_consume:")
    e(f"s_cmp_eq_u32 s{sCons}, 0")
    e("s_cbranch_scc1 L_fin")
    e(f"s_lshl_b32 s{sT}, s{sH}, 12")
    e(f"s_mov_b32 s{sSpin}, 0")
    e(f"v_mov_b32 v{vT2}, 0x0c0c0400")
    e(f"v_mov_b32 v{vT3}, 0x04000c0c")
    e(f"s_mul_i32 s{sIt}, s{sB}, 2560")
    e(f"s_mul_i32 s{sT2}, s{sBr}, 1280")
    e(f"s_add_u32 s{sIt}, s{sIt}, s{sT2}")
    e(f"s_lshl_b32 s{sT2}, s{sH}, 6")
    e(f"s_add_u32 s{sIt}, s{sIt}, s{sT2}")
    if fin2:
        e(f"v_and_b32 v{vS}, 7, v{vLane}")
        e(f"v_lshrrev_b32 v{vT0}, 4, v{vLane}")
        e(f"v_lshlrev_b32 v{vT0}, 1, v{vT0}")
        e(f"v_lshl_add_u32 v{vS}, v{vS}, 3, v{vT0}")
    else: e(f"v_lshlrev_b32 v{vS}, 3, v{vLane}")
    if hold:
        e(f"s_mov_b32 s{sT4}, 0")
        e("L_hold:")
        e(f"buffer_load_dword v{vBd}, v{vBdA}, {srd(sBd)}, 0 offen sc1")
        e(f"s_add_u32 s{sT4}, s{sT4}, 1")
        e("s_waitcnt vmcnt(0)")
        e(f"v_cmp_eq_u32 vcc, 100, v{vBd}")
        e(f"s_cmp_ge_u32 s{sT4}, {hold.get('max', 12)}")
        e("s_cbranch_scc1 L_held")
        e(f"s_bcnt1_i32_b64 s{sT5}, vcc")
        e(f"s_cmp_lt_u32 s{sT5}, {hold.get('n', 32)}")
        e("s_cbranch_scc1 L_hold")
        e("L_held:")
    if diagdelay:
        assert stamps
        e("L_dd:")
        e("s_memrealtime s[74:75]")
        e("s_waitcnt lgkmcnt(0)")
        e(f"s_sub_u32 s74, s74, s{sSt}")
        e(f"s_cmp_lt_u32 s74, {diagdelay}")
        e("s_cbranch_scc1 L_dd")
    if npoll == 1:
        e("L_poll:")
        for i in range(4):
            e(f"buffer_load_dwordx4 {vr(vX+4*i)}, v{vOffV}, {srd(sIn)}, s{sT} offen offset:{1024*i} {polLd}")
        e(f"s_add_u32 s{sSpin}, s{sSpin}, 1")
        for i in range(4):
            e(f"s_waitcnt vmcnt({3-i})")
            e(f"v_perm_b32 v{vT0}, v{vX+4*i+1}, v{vX+4*i}, v{vT2}")
            e(f"v_perm_b32 v{vT1}, v{vX+4*i+3}, v{vX+4*i+2}, v{vT3}")
            for j in range(4): e(f"v_and_b32 v{vX+4*i+j}, s{sT3}, v{vX+4*i+j}")
            e(f"v_or_b32 v{vT0}, v{vT0}, v{vT1}")
            e(f"v_xor_b32 v{vX+16+i}, v{vT0}, v{vFlag}")
            if i == 1: add4(vX, vX, vX+4)
        e(f"v_or3_b32 v{vT0}, v{vX+16}, v{vX+17}, v{vX+18}")
        e(f"v_or_b32 v{vT0}, v{vT0}, v{vX+19}")
        e(f"v_cmp_ne_u32 vcc, 0, v{vT0}")
        add4(vX+8, vX+8, vX+12)
        add4(vX, vX, vX+8)
        e(f"s_cmp_ge_u32 s{sSpin}, 0x200000")
        e("s_cbranch_scc1 L_polled")
        e("s_cbranch_vccnz L_poll")
        e("L_polled:")
    else:
        def pr(k): return vRing + 20 * k
        def issue(k):
            for i in range(4):
                e(f"buffer_load_dwordx4 {vr(pr(k)+4*i)}, v{vOffV}, {srd(sIn)}, s{sT} offen offset:{1024*i} {polLd}")
        for k in range(npoll): issue(k)
        e("L_poll:")
        e(f"s_add_u32 s{sSpin}, s{sSpin}, 1")
        for k in range(npoll):
            r = pr(k)
            for i in range(4):
                e(f"s_waitcnt vmcnt({4*(npoll-1) + 3 - i})")
                e(f"v_perm_b32 v{vT0}, v{r+4*i+1}, v{r+4*i}, v{vT2}")
                e(f"v_perm_b32 v{vT1}, v{r+4*i+3}, v{r+4*i+2}, v{vT3}")
                for j in range(4): e(f"v_and_b32 v{vX+4*i+j}, s{sT3}, v{r+4*i+j}")
                e(f"v_or_b32 v{vT0}, v{vT0}, v{vT1}")
                e(f"v_xor_b32 v{vX+16+i}, v{vT0}, v{vFlag}")
                if i == 1:
                    for j in range(4): e(f"v_add_f32 v{vX+j}, v{vX+j}, v{vX+4+j}")
            e(f"v_or3_b32 v{vT0}, v{vX+16}, v{vX+17}, v{vX+18}")
            e(f"v_or_b32 v{vT0}, v{vT0}, v{vX+19}")
            e(f"v_cmp_ne_u32 vcc, 0, v{vT0}")
            e("s_cbranch_vccz L_polled")
            issue(k)
        e(f"s_cmp_lt_u32 s{sSpin}, 0x100000")
        e("s_cbranch_scc1 L_poll")
        e("L_polled:")
        for j in range(4): e(f"v_add_f32 v{vX+8+j}, v{vX+8+j}, v{vX+12+j}")
        for j in range(4): e(f"v_add_f32 v{vX+j}, v{vX+j}, v{vX+8+j}")
    if early:
        bump()
        e("s_mov_b64 exec, -1")
    if not fin2:
        e("s_nop 1")
        for j in range(4): e(f"v_add_f32_dpp v{vX+j}, v{vX+j}, v{vX+j} row_ror:8 row_mask:0xf bank_mask:0xf")
        for j in range(4): e(f"v_mov_b32 v{vX+4+j}, v{vX+j}")
        e("s_nop 1")
        for j in range(4): e(f"v_permlane16_swap_b32 v{vX+j}, v{vX+4+j}")
        for j in range(4): e(f"v_add_f32 v{vX+j}, v{vX+j}, v{vX+4+j}")
        for j in range(4): e(f"v_mov_b32 v{vX+4+j}, v{vX+j}")
        e("s_nop 1")
        for j in range(4): e(f"v_permlane32_swap_b32 v{vX+j}, v{vX+4+j}")
        for j in range(4): e(f"v_add_f32 v{vX+j}, v{vX+j}, v{vX+4+j}")
        e(f"v_cvt_pk_bf16_f32 v{vX}, v{vX}, v{vX+1}")
        e(f"v_cvt_pk_bf16_f32 v{vX+1}, v{vX+2}, v{vX+3}")
        e("s_mov_b64 exec, 0xff")
        e(f"buffer_store_dwordx2 v[{vX}:{vX+1}], v{vS}, {srd(sOut)}, s{sIt} offen {polOut}")
    else:
        e("s_mov_b32 s74, 0x00ff00ff")
        e("s_mov_b32 s75, 0x00ff00ff")
        e(f"v_permlane16_swap_b32 v{vX}, v{vX+1}")
        e(f"v_permlane16_swap_b32 v{vX+2}, v{vX+3}")
        e("s_nop 0")
        e(f"v_add_f32 v{vX}, v{vX}, v{vX+1}")
        e(f"v_add_f32 v{vX+2}, v{vX+2}, v{vX+3}")
        e("s_nop 1")
        e(f"v_permlane32_swap_b32 v{vX}, v{vX+2}")
        e("s_nop 0")
        e(f"v_add_f32 v{vX}, v{vX}, v{vX+2}")
        e("s_nop 1")
        e(f"v_add_f32_dpp v{vX}, v{vX}, v{vX} row_ror:8 row_mask:0xf bank_mask:0xf")
        e(f"v_cvt_pk_bf16_f32 v{vX}, v{vX}, v{vX}")
        e("s_mov_b64 exec, s[74:75]")
        e(f"buffer_store_short v{vX}, v{vS}, {srd(sOut)}, s{sIt} offen {polOut}")
    if not early: bump()
    e("s_mov_b64 exec, -1")
    stamp(6)
    e("L_fin:")
    if stamps == 3:
        e("s_waitcnt vmcnt(0) lgkmcnt(0)")
        e(f"s_memrealtime s[{sSt+14}:{sSt+15}]")
        e(f"s_mov_b32 s{sIn}, s26")
        e(f"s_mov_b32 s{sIn+1}, s27")
        e(f"s_mov_b32 s{sIn+2}, 256")
        e("s_waitcnt lgkmcnt(0)")
        e("s_mov_b64 exec, 1")
        for w, (i, neg) in enumerate([(0, 1), (0, 0), (1, 0), (3, 1), (3, 0), (4, 0), (5, 1), (5, 0), (7, 0)]):
            if neg: e(f"s_not_b32 s{sT}, s{sSt+2*i}")
            else: e(f"s_mov_b32 s{sT}, s{sSt+2*i}")
            e(f"v_mov_b32 v{vX+w}, s{sT}")
            e(f"buffer_atomic_umax v{vX+w}, off, {srd(sIn)}, 0 offset:{4*w} sc1")
    elif stamps:
        e("s_waitcnt vmcnt(0) lgkmcnt(0)")
        e(f"s_memrealtime s[{sSt+14}:{sSt+15}]")
        e(f"s_getreg_b32 s{sT3}, hwreg(HW_REG_XCC_ID)")
        e(f"s_add_u32 s{sIn}, s28, 0x100000")
        e(f"s_addc_u32 s{sIn+1}, s29, 0")
        e(f"s_mov_b32 s{sIn+2}, 0x20000")
        e(f"s_lshl_b32 s{sT}, s2, 2")
        e(f"s_add_u32 s{sT}, s{sT}, s{sW}")
        e(f"s_lshl_b32 s{sT}, s{sT}, 7")
        e("s_waitcnt lgkmcnt(0)")
        e(f"v_mov_b32 v{vT0}, 0")
        e("s_mov_b64 exec, 1")
        for i in range(8):
            e(f"v_mov_b32 v{vX+2*i}, s{sSt+2*i}")
            e(f"v_mov_b32 v{vX+2*i+1}, s{sSt+2*i+1}")
        e(f"s_getreg_b32 s{sT2}, hwreg(HW_REG_HW_ID)")
        e(f"v_mov_b32 v{vX+16}, s{sT3}")
        e(f"v_mov_b32 v{vX+17}, s{sT2}")
        for i in range(4):
            e(f"buffer_store_dwordx4 {vr(vX+4*i)}, v{vT0}, {srd(sIn)}, s{sT} offen offset:{16*i}")
        e(f"buffer_store_dwordx2 v[{vX+16}:{vX+17}], v{vT0}, {srd(sIn)}, s{sT} offen offset:64")
    e("L_end:")
    e("s_endpgm")
    e('.section .rodata,"a"')
    e(".p2align 6")
    e(f".amdhsa_kernel {KNAME}")
    e(f"  .amdhsa_next_free_vgpr {ACC_OFF + NA}")
    e("  .amdhsa_next_free_sgpr 102")
    e(f"  .amdhsa_accum_offset {ACC_OFF}")
    e("  .amdhsa_group_segment_fixed_size 0")
    e("  .amdhsa_kernarg_size 104")
    e("  .amdhsa_user_sgpr_count 2")
    e("  .amdhsa_user_sgpr_kernarg_segment_ptr 1")
    e("  .amdhsa_system_sgpr_workgroup_id_x 1")
    e("  .amdhsa_float_denorm_mode_32 3")
    e(".end_amdhsa_kernel")
    return "\n".join(o) + "\n"

if __name__ == "__main__":
    cfg = eval("dict(" + (sys.argv[2] if len(sys.argv) > 2 else "") + ")")
    open(sys.argv[1], "w").write(gen(**cfg))
```
